```python
import torch

def _softmax(x, axis=-1):
    return torch.softmax(x, dim=axis)
def _gelu(x):
    return torch.nn.functional.gelu(x, approximate="tanh")
def _silu(x):
    return torch.nn.functional.silu(x)
def _sigmoid(x):
    return torch.sigmoid(x)
def _layernorm(x, axis=-1, eps=1e-5):
    m = x.mean(dim=axis, keepdim=True)
    v = x.var(dim=axis, keepdim=True, unbiased=False)
    return (x - m) / torch.sqrt(v + eps)
def _scatter_add(tgt, idx, src, axis=0):
    return tgt.clone().index_add_(axis, idx, src)
def _segment_sum(src, seg, n):
    out = torch.zeros((n,) + src.shape[1:], dtype=src.dtype)
    return out.index_add_(0, seg, src)
def _pad(x, pw):
    flat = tuple(v for pair in reversed(pw) for v in pair)
    return torch.nn.functional.pad(x, flat)

kernel_name = 'interleave_layers__sliding_block_cached__mixer_token_mlp__decode'

def setup_inputs():

    _w = (lambda a: (lambda t: t.to(torch.bfloat16) if t.is_floating_point() else t)(torch.as_tensor(a)))
    def _A_setup():
        B, Sq, D = 1, 1, 512
        Hq, Hkv, Sk, Dh = 32, 8, 65536, 128
        assert Hq % Hkv == 0, (Hq, Hkv)
        return {
            "x": _w((lambda *s: torch.randn(*s, dtype=torch.bfloat16) * 0.05)(B, Sq, D)),
            "k_cache": _w((lambda *s: torch.randn(*s, dtype=torch.bfloat16) * 0.8)(B, Hkv, Sk, Dh)),
            "v_cache": _w((lambda *s: torch.randn(*s, dtype=torch.bfloat16) * 1.6)(B, Hkv, Sk, Dh)),
            "wq": _w((lambda *s: torch.randn(*s, dtype=torch.bfloat16) * 0.8)(D, Hq * Dh) * (D ** -0.5)),
            "wo": _w((lambda *s: torch.randn(*s, dtype=torch.bfloat16) * 1.6)(Hq * Dh, D) * ((Hq * Dh) ** -0.5)),
        }
    _A_in = _A_setup()

    def _B_setup():
        B, S, D, F = 1, 1, 512, 1792
        return {
            "x": _w((lambda *s: torch.randn(*s, dtype=torch.bfloat16) * 0.05)(B, S, D)),
            "w1": _w((lambda *s: torch.randn(*s, dtype=torch.bfloat16) * 0.8)(S, F) * (S ** -0.5)),
            "b1": _w((lambda *s: torch.randn(*s, dtype=torch.bfloat16) * 0.2)(F) * 0.02),
            "w2": _w((lambda *s: torch.randn(*s, dtype=torch.bfloat16) * 0.2)(F, S) * (F ** -0.5)),
            "b2": _w((lambda *s: torch.randn(*s, dtype=torch.bfloat16) * 0.2)(S) * 0.02),
        }
    _B_in = _B_setup()

    return {
        "A_x": _A_in["x"],
        "A_k_cache": _A_in["k_cache"],
        "A_v_cache": _A_in["v_cache"],
        "A_wq": _A_in["wq"],
        "A_wo": _A_in["wo"],
        "B_x": _B_in["x"],
        "B_w1": _B_in["w1"],
        "B_b1": _B_in["b1"],
        "B_w2": _B_in["w2"],
        "B_b2": _B_in["b2"],
    }

def reference(A_x, A_k_cache, A_v_cache, A_wq, A_wo, B_x, B_w1, B_b1, B_w2, B_b2):
    def _A_ref(x, k_cache, v_cache, wq, wo):
        B, Sq, D = x.shape
        Hq, Dh = 32, 128
        Hkv, Sk = k_cache.shape[1], k_cache.shape[2]
        W = min(4096, max(256, Sk // 4))
        rep = Hq // Hkv
        q = (lambda x, *d: x.permute(*d))((x @ wq).reshape(B, Sq, Hq, Dh), 0, 2, 1, 3)
        k = (lambda x, n, axis: torch.repeat_interleave(x, n, dim=axis))(k_cache[:, :, Sk - W:, :], rep, axis=1)
        v = (lambda x, n, axis: torch.repeat_interleave(x, n, dim=axis))(v_cache[:, :, Sk - W:, :], rep, axis=1)
        scores = torch.einsum("bhqd,bhkd->bhqk", q, k) * (Dh ** -0.5)
        p = _softmax(scores, axis=-1)
        o = torch.einsum("bhqk,bhkd->bhqd", p, v)
        return (lambda x, *d: x.permute(*d))(o, 0, 2, 1, 3).reshape(B, Sq, Hq * Dh) @ wo

    def _B_ref(x, w1, b1, w2, b2):
        B, S, D = x.shape
        h = _layernorm(x, axis=-1)
        u = torch.einsum("bsd,sf->bdf", h, w1) + b1
        u = _gelu(u)
        y = torch.einsum("bdf,fs->bds", u, w2) + b2
        return (lambda x, *d: x.permute(*d))(y, 0, 2, 1)

    x = A_x
    x = x + _A_ref(_layernorm(x, axis=-1), A_k_cache, A_v_cache, A_wq, A_wo)
    x = x + _B_ref(_layernorm(x, axis=-1), B_w1, B_b1, B_w2, B_b2)
    x = x + _A_ref(_layernorm(x, axis=-1), A_k_cache, A_v_cache, A_wq, A_wo)
    x = x + _B_ref(_layernorm(x, axis=-1), B_w1, B_b1, B_w2, B_b2)
    return x
```

```python
import sys, struct

KNAME = "interleave_layers__sliding_block_cached__mixer_token_mlp__decode_kernel"
DEBUG_DUMP = False
FORCE_SLOW = False
for a in sys.argv[1:]:
    if a == "--dump": DEBUG_DUMP = True
    if a == "--slow": FORCE_SLOW = True

out = []
def A(s=""):
    out.append(s)

def f32bits(x):
    return struct.unpack("<I", struct.pack("<f", x))[0]

_lbl = [0]
def newlabel(p="L"):
    _lbl[0] += 1
    return f"{p}_{_lbl[0]}"

FL1 = 0x0000
FL2 = 0x4000
LAYER_BASE = 0x100000
LAYER_STRIDE = 0x1000000
CU_STRIDE = 0x8000
Q_OFF = 0x0000
ML_OFF = 0x0400
O_OFF = 0x0800
R_OFF = 0x2800
LOC_CLEAR_BYTES = 0x4800
P_OFF = 0x800000
X2_OFF = 0x810000
DUMP_BASE = 0x4000000

LDS_V = 0x0000
LDS_XS = 0x8000
LDS_QS = 0x8800
LDS_MODE = 0x8C00
LDS_YS = 0x8C10
LDS_BYTES = 0x9000

sX, sK, sV, sWQ, sWO, sBX, sW1, sB1, sW2, sB2, sOUT, sDBG, sWS = [4 + 2 * i for i in range(13)]
sG, sIDX, sWAVE, sCU, sMODE, sTO = 30, 31, 32, 33, 34, 35
sLOC = 36
sMY = 38
sGL = 40
sT0, sT1, sT2, sT3 = 42, 43, 44, 45
sO = 46
sEX = 50
sC = 52
sCM = 64
sJ = 66
def sp(r): return f"s[{r}:{r+1}]"

vTID, vLANE = 0, 1
vK = 64
vVT = 96
vWQ = 128
vWO = 144
vW1, vB1, vW2 = 160, 167, 174
vX0, vX1 = 182, 183
vB2 = 181
vAQ = 184
vAO = 188
vAML = 190
vAR = 192
vAP = 194
vAX2 = 195
vT = 2
vU = 200
def vr(r, n): return f"v[{r}:{r+n-1}]"

NOP2 = "    s_nop 1"

def nops(n):
    while n > 0:
        k = min(n, 16)
        A(f"    s_nop {k-1}")
        n -= k

def dpp_all_reduce(regs, op, tmp, full=True):
    steps = ["quad_perm:[1,0,3,2]", "quad_perm:[2,3,0,1]", "row_ror:4", "row_ror:8"]
    n = len(regs)
    for st in steps:
        if n < 3: nops(3 - n)
        for r in regs:
            A(f"    {op}_dpp v{r}, v{r}, v{r} {st} row_mask:0xf bank_mask:0xf")
    for sw in ("v_permlane16_swap_b32", "v_permlane32_swap_b32"):
        for r, t in zip(regs, tmp):
            A(f"    v_mov_b32 v{t}, v{r}")
        if n < 3: nops(3 - n)
        else: nops(1)
        for r, t in zip(regs, tmp):
            A(f"    {sw} v{t}, v{r}")
        nops(1)
        for r, t in zip(regs, tmp):
            A(f"    {op} v{r}, v{r}, v{t}")

def reduce_slabs(regs, op, tmp):
    n = len(regs)
    for sw in ("v_permlane16_swap_b32", "v_permlane32_swap_b32"):
        for r, t in zip(regs, tmp):
            A(f"    v_mov_b32 v{t}, v{r}")
        nops(2)
        for r, t in zip(regs, tmp):
            A(f"    {sw} v{t}, v{r}")
        nops(1)
        for r, t in zip(regs, tmp):
            A(f"    {op} v{r}, v{r}, v{t}")

def bf16r_pair(a, b, t):
    A(f"    v_cvt_pk_bf16_f32 v{t}, v{a}, v{b}")
    A(f"    v_lshlrev_b32 v{a}, 16, v{t}")
    A(f"    v_and_b32 v{b}, 0xffff0000, v{t}")

def bf16r(a, t):
    A(f"    v_cvt_pk_bf16_f32 v{t}, v{a}, v{a}")
    A(f"    v_lshlrev_b32 v{a}, 16, v{t}")

def max_chain(dst, regs):
    regs = list(regs)
    if len(regs) == 1:
        A(f"    v_mov_b32 v{dst}, v{regs[0]}"); return
    if len(regs) == 2:
        A(f"    v_max_u32 v{dst}, v{regs[0]}, v{regs[1]}"); return
    A(f"    v_max3_u32 v{dst}, v{regs[0]}, v{regs[1]}, v{regs[2]}")
    rest = regs[3:]
    while len(rest) >= 2:
        A(f"    v_max3_u32 v{dst}, v{dst}, v{rest[0]}, v{rest[1]}")
        rest = rest[2:]
    if rest:
        A(f"    v_max_u32 v{dst}, v{dst}, v{rest[0]}")

def poll(loads, check_regs, vtmp, extra_check=None):
    L = newlabel("poll"); D = newlabel("polld")
    A(f"    s_mov_b32 s{sTO}, 0x8000")
    A(f"{L}:")
    for l in loads: A("    " + l)
    A("    s_waitcnt vmcnt(0)")
    max_chain(vtmp, check_regs)
    A(f"    v_cmp_eq_u32 vcc, -1, v{vtmp}")
    if extra_check: extra_check()
    A(f"    s_cbranch_vccz {D}")
    A(f"    s_sub_u32 s{sTO}, s{sTO}, 1")
    A(f"    s_cbranch_scc0 {L}")
    A(f"{D}:")

def store_local(stores):
    S = newlabel("sl"); D = newlabel("sld")
    A(f"    s_cmp_eq_u32 s{sMODE}, 0")
    A(f"    s_cbranch_scc0 {S}")
    for s in stores: A("    " + s)
    A(f"    s_branch {D}")
    A(f"{S}:")
    for s in stores: A("    " + s + " sc1")
    A(f"{D}:")

def set_layer(L):
    base = LAYER_BASE + L * LAYER_STRIDE
    A(f"    ; ---- layer {L} bases")
    A(f"    s_add_u32 s{sGL}, s{sWS}, {base}")
    A(f"    s_addc_u32 s{sGL+1}, s{sWS+1}, 0")
    A(f"    s_lshl_b32 s{sT0}, s{sG}, 20            ; g*32*CU_STRIDE")
    A(f"    s_add_u32 s{sLOC}, s{sGL}, s{sT0}")
    A(f"    s_addc_u32 s{sLOC+1}, s{sGL+1}, 0")
    A(f"    s_lshl_b32 s{sT0}, s{sIDX}, 15")
    A(f"    s_add_u32 s{sMY}, s{sLOC}, s{sT0}")
    A(f"    s_addc_u32 s{sMY+1}, s{sLOC+1}, 0")

def ln_stats(xregs, vmean, vrs, t):
    s1, s2, t0, t1 = t[0], t[1], t[2], t[3]
    A(f"    v_add_f32 v{s1}, v{xregs[0]}, v{xregs[1]}")
    A(f"    v_mul_f32 v{s2}, v{xregs[0]}, v{xregs[0]}")
    A(f"    v_fmac_f32 v{s2}, v{xregs[1]}, v{xregs[1]}")
    for r in xregs[2:]:
        A(f"    v_add_f32 v{s1}, v{s1}, v{r}")
        A(f"    v_fmac_f32 v{s2}, v{r}, v{r}")
    dpp_all_reduce([s1, s2], "v_add_f32", [t0, t1])
    A(f"    v_mul_f32 v{s1}, {f32bits(1/512):#x}, v{s1}")
    A(f"    v_mul_f32 v{s2}, {f32bits(1/512):#x}, v{s2}")
    A(f"    v_fma_f32 v{s2}, -v{s1}, v{s1}, v{s2}")
    A(f"    v_max_f32 v{s2}, 0, v{s2}")
    bf16r_pair(s1, s2, t0)
    A(f"    v_add_f32 v{s2}, {f32bits(1e-5):#x}, v{s2}")
    bf16r(s2, t0)
    A(f"    v_sqrt_f32 v{s2}, v{s2}")
    A("    s_nop 0")
    bf16r(s2, t0)
    A(f"    v_rcp_f32 v{vrs}, v{s2}")
    A(f"    v_mov_b32 v{vmean}, v{s1}")
    A("    s_nop 0")

def ln_apply(regs, vmean, vrs, t):
    for a, b in zip(regs[0::2], regs[1::2]):
        A(f"    v_sub_f32 v{a}, v{a}, v{vmean}")
        A(f"    v_sub_f32 v{b}, v{b}, v{vmean}")
        bf16r_pair(a, b, t)
        A(f"    v_mul_f32 v{a}, v{a}, v{vrs}")
        A(f"    v_mul_f32 v{b}, v{b}, v{vrs}")
        bf16r_pair(a, b, t)

def unpack(dst_lo, dst_hi, src):
    A(f"    v_lshlrev_b32 v{dst_lo}, 16, v{src}")
    A(f"    v_and_b32 v{dst_hi}, 0xffff0000, v{src}")

def dump(slot, regs, per_thread_bytes=64):
    if not DEBUG_DUMP: return
    A(f"    s_lshl_b32 s{sT0}, s2, 14")
    A(f"    s_add_u32 s{sT0}, s{sT0}, {DUMP_BASE + slot * 0x400000}")
    A(f"    v_lshlrev_b32 v255, 6, v{vTID}")
    A(f"    v_add_u32 v255, s{sT0}, v255")
    for i, r in enumerate(regs):
        A(f"    global_store_dword v255, v{r}, {sp(sWS)} offset:{4*i}")
    A("    s_waitcnt vmcnt(0)")

hdr = open("interleave_layers__sliding_block_cached__mixer_token_mlp__decode.s.ref").read().split("\n")
for line in hdr:
    if line.startswith("; @launch"):
        A(f"; @launch grid=(256,1,1) block=(320,1,1) lds={LDS_BYTES}")
        break
    A(line)
A('.amdgcn_target "amdgcn-amd-amdhsa--gfx950"')
A(".text")
A(f".globl {KNAME}")
A(".p2align 8")
A(f".type {KNAME},@function")
A(f"{KNAME}:")
A("    s_cmp_ge_u32 s2, 256")
A("    s_cbranch_scc1 L_end")
A("    s_load_dwordx16 s[4:19], s[0:1], 0")
A("    s_load_dwordx8 s[20:27], s[0:1], 64")
A("    s_load_dwordx2 s[28:29], s[0:1], 96")
A(f"    s_and_b32 s{sG}, s2, 7")
A(f"    s_lshr_b32 s{sIDX}, s2, 3")
A(f"    s_lshl_b32 s{sCU}, s{sG}, 5")
A(f"    s_add_u32 s{sCU}, s{sCU}, s{sIDX}")
A(f"    v_and_b32 v{vLANE}, 63, v0")
A(f"    v_lshrrev_b32 v2, 6, v0")
A("    s_nop 0")
A(f"    v_readfirstlane_b32 s{sWAVE}, v2")
A("    s_waitcnt lgkmcnt(0)")
A(f"    s_cmp_eq_u32 s{sWAVE}, 4")
A("    s_cbranch_scc1 L_helper")

vXA = 2
vXR = 6
vXP = 8
A("    ; ---- prologue loads")
A(f"    v_lshlrev_b32 v10, 4, v{vLANE}")
A(f"    global_load_dwordx4 {vr(vXA,4)}, v10, {sp(sX)}")
A(f"    s_lshr_b32 s{sT0}, s{sIDX}, 3            ; kb")
A(f"    s_lshl_b32 s{sT1}, s{sT0}, 8")
A(f"    v_lshrrev_b32 v11, 3, v{vTID}")
A(f"    v_lshlrev_b32 v12, 3, v11")
A(f"    v_add_u32 v12, s{sT1}, v12")
A(f"    global_load_dwordx2 {vr(vXR,2)}, v12, {sp(sX)}")
A(f"    v_lshlrev_b32 v13, 2, v{vTID}")
A(f"    global_load_dword v{vXP}, v13, {sp(sX)}")
A(f"    s_lshl_b32 s{sT1}, s{sT0}, 20            ; kb*128*8192")
A(f"    s_lshl_b32 s{sT2}, s{sG}, 10")
A(f"    s_add_u32 s{sT1}, s{sT1}, s{sT2}")
A(f"    s_and_b32 s{sT2}, s{sIDX}, 7")
A(f"    s_lshl_b32 s{sT2}, s{sT2}, 7")
A(f"    s_add_u32 s{sT1}, s{sT1}, s{sT2}")
A(f"    v_lshlrev_b32 v14, 15, v11               ; (t>>3)*4*8192")
A(f"    v_and_b32 v15, 7, v{vTID}")
A(f"    v_lshlrev_b32 v15, 4, v15")
A(f"    v_add3_u32 v14, v14, v15, s{sT1}")
for p in range(4):
    if p: A(f"    v_add_u32 v14, 8192, v14")
    A(f"    global_load_dwordx4 {vr(vWQ+4*p,4)}, v14, {sp(sWQ)} nt")
A(f"    s_lshl_b32 s{sT1}, s{sG}, 24")
A(f"    s_add_u32 s{sT1}, s{sT1}, {(65536-4096)*256}")
A(f"    s_lshl_b32 s{sT2}, s{sIDX}, 15")
A(f"    s_add_u32 s{sT1}, s{sT1}, s{sT2}")
A(f"    s_lshl_b32 s{sT2}, s{sWAVE}, 13")
A(f"    s_add_u32 s{sT1}, s{sT1}, s{sT2}")
A(f"    v_and_b32 v16, 15, v{vLANE}")
A(f"    v_lshlrev_b32 v16, 8, v16                ; key*256")
A(f"    v_lshrrev_b32 v17, 4, v{vLANE}")
A(f"    v_lshlrev_b32 v17, 4, v17                ; slab*16")
A(f"    v_add3_u32 v16, v16, v17, s{sT1}")
A(f"    v_add_u32 v17, 4096, v16")
for T in range(2):
    for j in range(4):
        A(f"    global_load_dwordx4 {vr(vK+16*T+4*j,4)}, v{16+T}, {sp(sK)} offset:{j*64} nt")
vVS = 200
A(f"    v_add_u32 v18, s{sT1}, v10")
A(f"    v_add_u32 v19, 4096, v18")
for i in range(8):
    A(f"    global_load_dwordx4 {vr(vVS+4*i,4)}, v{18+i//4}, {sp(sV)} offset:{(i%4)*1024} nt")
A(f"    s_lshl_b32 s{sT1}, s{sG}, 19")
A(f"    s_lshl_b32 s{sT2}, s{sIDX}, 14")
A(f"    s_add_u32 s{sT1}, s{sT1}, s{sT2}")
A(f"    s_lshl_b32 s{sT2}, s{sWAVE}, 12")
A(f"    s_add_u32 s{sT1}, s{sT1}, s{sT2}")
A(f"    v_add_u32 v20, s{sT1}, v10")
for p in range(4):
    A(f"    global_load_dwordx4 {vr(vWO+4*p,4)}, v20, {sp(sWO)} offset:{p*1024} nt")
A(f"    v_lshlrev_b32 v21, 1, v{vTID}")
for i in range(7):
    A(f"    global_load_ushort v{vW1+i}, v21, {sp(sW1)} offset:{512*i}")
    A(f"    global_load_ushort v{vB1+i}, v21, {sp(sB1)} offset:{512*i}")
    A(f"    global_load_ushort v{vW2+i}, v21, {sp(sW2)} offset:{512*i}")
A(f"    v_mov_b32 v22, 0")
A(f"    global_load_ushort v{vB2}, v22, {sp(sB2)}")
N_AFTER_WQ = 8 + 8 + 4 + 21 + 1
N_AFTER_V = 4 + 21 + 1

A("    ; ---- gather offsets")
A(f"    v_lshrrev_b32 v23, 5, v{vTID}")
A(f"    v_lshlrev_b32 v23, 15, v23               ; cb*CU_STRIDE")
A(f"    v_and_b32 v24, 31, v{vTID}")
A(f"    v_lshlrev_b32 v24, 3, v24")
A(f"    v_add_u32 v{vAQ}, v23, v24")
for kb in range(1, 4):
    A(f"    v_add_u32 v{vAQ+kb}, {kb*8*CU_STRIDE:#x}, v{vAQ}")
A(f"    v_lshrrev_b32 v23, 2, v{vLANE}")
A(f"    v_lshlrev_b32 v23, 15, v23               ; idx_p*CU_STRIDE")
A(f"    v_and_b32 v24, 3, v{vLANE}")
A(f"    v_lshlrev_b32 v25, 11, v24               ; wave_p*2048")
A(f"    v_lshlrev_b32 v26, 5, v24                ; wave_p*32")
A(f"    s_lshr_b32 s{sT0}, s{sIDX}, 3            ; head")
A(f"    s_and_b32 s{sT1}, s{sIDX}, 7             ; T")
A(f"    s_lshl_b32 s{sT2}, s{sT0}, 9             ; head*512")
A(f"    s_lshl_b32 s{sT3}, s{sT1}, 6             ; T*64")
A(f"    s_add_u32 s{sT2}, s{sT2}, s{sT3}")
A(f"    s_lshl_b32 s{sT3}, s{sWAVE}, 4           ; 4w*4")
A(f"    s_add_u32 s{sT2}, s{sT2}, s{sT3}")
A(f"    s_add_u32 s{sT2}, s{sT2}, {O_OFF}")
A(f"    v_add3_u32 v{vAO}, v23, v25, s{sT2}")
A(f"    v_add_u32 v{vAO+1}, {16*CU_STRIDE:#x}, v{vAO}")
A(f"    s_lshl_b32 s{sT2}, s{sT0}, 3             ; head*8")
A(f"    s_add_u32 s{sT2}, s{sT2}, {ML_OFF}")
A(f"    v_add3_u32 v{vAML}, v23, v26, s{sT2}")
A(f"    v_add_u32 v{vAML+1}, {16*CU_STRIDE:#x}, v{vAML}")
A(f"    s_lshl_b32 s{sT2}, s{sIDX}, 6")
A(f"    s_lshl_b32 s{sT3}, s{sWAVE}, 4")
A(f"    s_add_u32 s{sT2}, s{sT2}, s{sT3}")
A(f"    s_add_u32 s{sT2}, s{sT2}, {R_OFF}")
A(f"    v_add3_u32 v{vAR}, v23, v25, s{sT2}")
A(f"    v_add_u32 v{vAR+1}, {16*CU_STRIDE:#x}, v{vAR}")
A(f"    v_lshlrev_b32 v{vAP}, 3, v{vTID}")
A(f"    v_add_u32 v{vAP}, {P_OFF:#x}, v{vAP}")
A(f"    v_lshlrev_b32 v{vAX2}, 6, v{vTID}")
A(f"    v_add_u32 v{vAX2}, {X2_OFF:#x}, v{vAX2}")

def q_phase(L, xa, xr):
    vm, vrs = 40, 41
    ln_stats(xa, vm, vrs, [42, 43, 44, 45])
    ln_apply(xr, vm, vrs, 42)
    acc = list(range(46, 54))
    lo, hi = 54, 55
    for p in range(4):
        for c in range(4):
            unpack(lo, hi, vWQ + 4 * p + c)
            if p == 0:
                A(f"    v_mul_f32 v{acc[2*c]}, v{xr[p]}, v{lo}")
                A(f"    v_mul_f32 v{acc[2*c+1]}, v{xr[p]}, v{hi}")
            else:
                A(f"    v_fmac_f32 v{acc[2*c]}, v{xr[p]}, v{lo}")
                A(f"    v_fmac_f32 v{acc[2*c+1]}, v{xr[p]}, v{hi}")
    nops(2)
    for c in range(4):
        A(f"    v_permlane32_swap_b32 v{acc[c]}, v{acc[c+4]}")
    nops(1)
    for c in range(4):
        A(f"    v_add_f32 v{acc[c]}, v{acc[c]}, v{acc[c+4]}")
    nops(2)
    for c in range(2):
        A(f"    v_permlane16_swap_b32 v{acc[c]}, v{acc[c+2]}")
    nops(1)
    for c in range(2):
        A(f"    v_add_f32 v{acc[c]}, v{acc[c]}, v{acc[c+2]}")
    nops(2)
    for c in range(2):
        A(f"    v_add_f32_dpp v{acc[c]}, v{acc[c]}, v{acc[c]} row_ror:8 row_mask:0xf bank_mask:0xf")
    A(f"    v_and_b32 v56, 7, v{vLANE}")
    A(f"    v_lshlrev_b32 v56, 5, v56")
    A(f"    v_lshrrev_b32 v57, 4, v{vLANE}")
    A(f"    v_lshlrev_b32 v57, 3, v57")
    A(f"    s_lshl_b32 s{sT0}, s{sWAVE}, 8")
    A(f"    v_add3_u32 v56, v56, v57, s{sT0}")
    A(f"    v_and_b32 v57, 8, v{vLANE}")
    return acc

def q_publish(acc):
    A(f"    v_cmp_eq_u32 vcc, 0, v57")
    A(f"    s_and_saveexec_b64 {sp(sEX)}, vcc")
    store_local([f"global_store_dwordx2 v56, {vr(acc[0],2)}, {sp(sMY)} offset:{Q_OFF}"])
    A(f"    s_mov_b64 exec, {sp(sEX)}")

def q_gather():
    base = 2
    loads = []
    regs = []
    for kb in range(4):
        for w in range(4):
            r = base + 2 * (kb * 4 + w)
            loads.append(f"global_load_dwordx2 {vr(r,2)}, v{vAQ+kb}, {sp(sLOC)} offset:{Q_OFF + w*256} sc1")
            regs += [r, r + 1]
    poll(loads, regs, 40)
    for i in range(1, 16):
        A(f"    v_add_f32 v{base}, v{base}, v{base+2*i}")
        A(f"    v_add_f32 v{base+1}, v{base+1}, v{base+2*i+1}")
    A(f"    v_cvt_pk_bf16_f32 v40, v{base}, v{base+1}")
    A(f"    v_lshlrev_b32 v41, 2, v{vTID}")
    A(f"    ds_write_b32 v41, v40 offset:{LDS_QS}")
    A("    s_waitcnt lgkmcnt(0)")
    A("    s_barrier")

def attention(L):
    vQ = 2
    A("    ; ---- attention")
    A(f"    v_and_b32 v40, 3, v{vLANE}")
    A(f"    v_lshlrev_b32 v40, 8, v40")
    A(f"    v_lshrrev_b32 v41, 4, v{vLANE}")
    A(f"    v_lshl_add_u32 v40, v41, 4, v40")
    for j in range(4):
        A(f"    ds_read_b128 {vr(vQ+4*j,4)}, v40 offset:{LDS_QS + j*64}")
    S = 24
    for r in range(8):
        A(f"    v_mov_b32 v{S+r}, 0")
    A("    s_waitcnt lgkmcnt(0)")
    nops(2)
    for j in range(4):
        for T in range(2):
            A(f"    v_mfma_f32_16x16x32_bf16 {vr(S+4*T,4)}, {vr(vK+16*T+4*j,4)}, {vr(vQ+4*j,4)}, {vr(S+4*T,4)}")
    nops(10)
    dump(3 + 8 * L, list(range(S, S + 8)))
    A(f"    s_mov_b32 s{sC}, {f32bits(128 ** -0.5):#x}")
    A(f"    s_mov_b32 s{sC+1}, {f32bits(1.4426950408889634):#x}")
    for r in range(0, 8, 2):
        bf16r_pair(S + r, S + r + 1, 40)
        A(f"    v_mul_f32 v{S+r}, s{sC}, v{S+r}")
        A(f"    v_mul_f32 v{S+r+1}, s{sC}, v{S+r+1}")
        bf16r_pair(S + r, S + r + 1, 40)
    vm, vl = 34, 35
    A(f"    v_max3_f32 v{vm}, v{S}, v{S+1}, v{S+2}")
    A(f"    v_max3_f32 v{vm}, v{vm}, v{S+3}, v{S+4}")
    A(f"    v_max3_f32 v{vm}, v{vm}, v{S+5}, v{S+6}")
    A(f"    v_max_f32 v{vm}, v{vm}, v{S+7}")
    reduce_slabs([vm], "v_max_f32", [40])
    A(f"    v_mul_f32 v41, s{sC+1}, v{vm}          ; m*log2e")
    for r in range(8):
        A(f"    v_fma_f32 v{S+r}, v{S+r}, s{sC+1}, -v41")
    for r in range(8):
        A(f"    v_exp_f32 v{S+r}, v{S+r}")
    A("    s_nop 0")
    A(f"    v_add_f32 v{vl}, v{S}, v{S+1}")
    for r in range(2, 8):
        A(f"    v_add_f32 v{vl}, v{vl}, v{S+r}")
    P = 36
    for i in range(4):
        A(f"    v_cvt_pk_bf16_f32 v{P+i}, v{S+2*i}, v{S+2*i+1}")
    reduce_slabs([vl], "v_add_f32", [40])
    O = 200
    for r in range(32):
        A(f"    v_mov_b32 v{O+r}, 0")
    nops(2)
    for T in range(8):
        A(f"    v_mfma_f32_16x16x32_bf16 {vr(O+4*T,4)}, {vr(vVT+4*T,4)}, {vr(P,4)}, {vr(O+4*T,4)}")
    A(f"    v_and_b32 v40, 15, v{vLANE}            ; col")
    A(f"    v_lshlrev_b32 v42, 9, v40              ; head*512")
    A(f"    v_lshrrev_b32 v41, 4, v{vLANE}")
    A(f"    v_lshl_add_u32 v42, v41, 4, v42        ; + slab*16")
    A(f"    s_lshl_b32 s{sT0}, s{sWAVE}, 11")
    A(f"    v_add_u32 v42, s{sT0}, v42")
    A(f"    s_lshl_b32 s{sT0}, s{sWAVE}, 5")
    A(f"    v_lshlrev_b32 v43, 3, v{vLANE}")
    A(f"    v_add_u32 v43, s{sT0}, v43")
    nops(8)
    A(f"    v_cmp_gt_u32 vcc, 4, v40")
    A(f"    s_and_saveexec_b64 {sp(sEX)}, vcc")
    store_local([f"global_store_dwordx4 v42, {vr(O+4*T,4)}, {sp(sMY)} offset:{O_OFF + T*64}" for T in range(8)])
    A(f"    v_cmp_gt_u32 vcc, 4, v{vLANE}")
    A(f"    s_and_b64 exec, exec, vcc")
    store_local([f"global_store_dwordx2 v43, {vr(vm,2)}, {sp(sMY)} offset:{ML_OFF}"])
    A(f"    s_mov_b64 exec, {sp(sEX)}")

def o_combine_wo(L):
    A("    ; ---- o combine")
    o0, o1, ml0, ml1 = 2, 6, 10, 12
    loads = [f"global_load_dwordx4 {vr(o0,4)}, v{vAO}, {sp(sLOC)} sc1",
             f"global_load_dwordx4 {vr(o1,4)}, v{vAO+1}, {sp(sLOC)} sc1",
             f"global_load_dwordx2 {vr(ml0,2)}, v{vAML}, {sp(sLOC)} sc1",
             f"global_load_dwordx2 {vr(ml1,2)}, v{vAML+1}, {sp(sLOC)} sc1"]
    poll(loads, list(range(2, 14)), 40)
    M = 14
    A(f"    v_max_f32 v{M}, v{ml0}, v{ml1}")
    dpp_all_reduce([M], "v_max_f32", [40])
    A(f"    s_mov_b32 s{sC+1}, {f32bits(1.4426950408889634):#x}")
    A(f"    v_sub_f32 v{ml0}, v{ml0}, v{M}")
    A(f"    v_sub_f32 v{ml1}, v{ml1}, v{M}")
    A(f"    v_mul_f32 v{ml0}, s{sC+1}, v{ml0}")
    A(f"    v_mul_f32 v{ml1}, s{sC+1}, v{ml1}")
    A(f"    v_exp_f32 v{ml0}, v{ml0}")
    A(f"    v_exp_f32 v{ml1}, v{ml1}")
    A("    s_nop 0")
    Lr = 15
    A(f"    v_mul_f32 v{Lr}, v{ml0}, v{ml0+1}")
    A(f"    v_fmac_f32 v{Lr}, v{ml1}, v{ml1+1}")
    for e in range(4):
        A(f"    v_mul_f32 v{o0+e}, v{ml0}, v{o0+e}")
        A(f"    v_fmac_f32 v{o0+e}, v{ml1}, v{o1+e}")
    dpp_all_reduce([Lr, o0, o0 + 1, o0 + 2, o0 + 3], "v_add_f32", [40, 41, 42, 43, 44])
    A(f"    v_rcp_f32 v{Lr}, v{Lr}")
    A("    s_nop 0")
    for e in range(4):
        A(f"    v_mul_f32 v{o0+e}, v{o0+e}, v{Lr}")
    bf16r_pair(o0, o0 + 1, 40)
    bf16r_pair(o0 + 2, o0 + 3, 40)
    dump(4 + 8 * L, [o0, o0 + 1, o0 + 2, o0 + 3])
    A("    ; ---- wo")
    acc = list(range(16, 24))
    lo, hi = 24, 25
    for p in range(4):
        for c in range(4):
            unpack(lo, hi, vWO + 4 * p + c)
            if p == 0:
                A(f"    v_mul_f32 v{acc[2*c]}, v{o0+p}, v{lo}")
                A(f"    v_mul_f32 v{acc[2*c+1]}, v{o0+p}, v{hi}")
            else:
                A(f"    v_fmac_f32 v{acc[2*c]}, v{o0+p}, v{lo}")
                A(f"    v_fmac_f32 v{acc[2*c+1]}, v{o0+p}, v{hi}")
    A(f"    v_lshlrev_b32 v26, 5, v{vLANE}")
    A(f"    s_lshl_b32 s{sT0}, s{sWAVE}, 11")
    A(f"    s_add_u32 s{sT0}, s{sT0}, {R_OFF}")
    A(f"    v_add_u32 v26, s{sT0}, v26")
    store_local([f"global_store_dwordx4 v26, {vr(acc[0],4)}, {sp(sMY)}",
                 f"global_store_dwordx4 v26, {vr(acc[4],4)}, {sp(sMY)} offset:16"])

def r_reduce(L):
    A("    ; ---- local reduce of wo partials")
    r0, r1 = 2, 6
    loads = [f"global_load_dwordx4 {vr(r0,4)}, v{vAR}, {sp(sLOC)} sc1",
             f"global_load_dwordx4 {vr(r1,4)}, v{vAR+1}, {sp(sLOC)} sc1"]
    poll(loads, list(range(2, 10)), 40)
    for e in range(4):
        A(f"    v_add_f32 v{r0+e}, v{r0+e}, v{r1+e}")
    dpp_all_reduce([r0, r0 + 1, r0 + 2, r0 + 3], "v_add_f32", [40, 41, 42, 43])
    A(f"    s_lshl_b32 s{sT0}, s{sG}, 11")
    A(f"    s_lshl_b32 s{sT1}, s{sIDX}, 6")
    A(f"    s_add_u32 s{sT0}, s{sT0}, s{sT1}")
    A(f"    s_lshl_b32 s{sT1}, s{sWAVE}, 4")
    A(f"    s_add_u32 s{sT0}, s{sT0}, s{sT1}")
    A(f"    s_add_u32 s{sT0}, s{sT0}, {P_OFF:#x}")
    A(f"    v_mov_b32 v40, s{sT0}")
    A(f"    v_cmp_eq_u32 vcc, 0, v{vLANE}")
    A(f"    s_and_saveexec_b64 {sp(sEX)}, vcc")
    A(f"    global_store_dwordx4 v40, {vr(r0,4)}, {sp(sGL)} sc1")
    A(f"    s_mov_b64 exec, {sp(sEX)}")

def x1_gather(L):
    A("    ; ---- gather P -> x1")
    base = 2
    loads = []
    regs = []
    for g in range(8):
        r = base + 2 * g
        if g * 2048 < 4096:
            loads.append(f"global_load_dwordx2 {vr(r,2)}, v{vAP}, {sp(sGL)} offset:{g*2048} sc1")
        else:
            loads.append(f"global_load_dwordx2 {vr(r,2)}, v{20 + g//2}, {sp(sGL)} offset:{(g%2)*2048} sc1")
        regs += [r, r + 1]
    for k in (1, 2, 3):
        A(f"    v_add_u32 v{20+k}, {k*4096}, v{vAP}")
    extra = None
    if L == 0:
        A(f"    v_and_b32 v24, 7, v{vLANE}")
        A(f"    v_lshlrev_b32 v24, 2, v24")
        loads.append(f"global_load_dword v25, v24, {sp(sDBG)} offset:64 sc1")
        def extra():
            A(f"    v_cmp_eq_u32 {sp(sCM)}, 0, v25")
            A(f"    s_or_b64 vcc, vcc, {sp(sCM)}")
    poll(loads, regs, 40, extra)
    for g in range(1, 8):
        A(f"    v_add_f32 v{base}, v{base}, v{base+2*g}")
        A(f"    v_add_f32 v{base+1}, v{base+1}, v{base+2*g+1}")
    bf16r_pair(base, base + 1, 40)
    A(f"    v_add_f32 v{vX0}, v{vX0}, v{base}")
    A(f"    v_add_f32 v{vX1}, v{vX1}, v{base+1}")
    bf16r_pair(vX0, vX1, 40)
    dump(5 + 8 * L, [vX0, vX1, base, base + 1])
    A(f"    v_lshlrev_b32 v41, 3, v{vTID}")
    A(f"    ds_write_b64 v41, {vr(vX0,2)} offset:{LDS_XS}")
    A("    s_waitcnt lgkmcnt(0)")
    A("    s_barrier")

def b_phase(L):
    A("    ; ---- mixer MLP")
    xa = list(range(2, 10))
    ha, hb = 10, 11
    xa_, xb_ = 12, 13
    A(f"    v_lshlrev_b32 v40, 5, v{vLANE}")
    A(f"    ds_read_b128 {vr(2,4)}, v40 offset:{LDS_XS}")
    A(f"    ds_read_b128 {vr(6,4)}, v40 offset:{LDS_XS+16}")
    A(f"    s_lshl_b32 s{sT0}, s2, 3")
    A(f"    v_mov_b32 v41, s{sT0}")
    A(f"    ds_read_b64 {vr(ha,2)}, v41 offset:{LDS_XS}")
    A("    s_waitcnt lgkmcnt(0)")
    A(f"    v_mov_b32 v{xa_}, v{ha}")
    A(f"    v_mov_b32 v{xb_}, v{hb}")
    vm, vrs = 14, 15
    ln_stats(xa, vm, vrs, [42, 43, 44, 45])
    ln_apply(xa + [ha, hb], vm, vrs, 42)
    ln_stats(xa, vm, vrs, [42, 43, 44, 45])
    ln_apply([ha, hb], vm, vrs, 42)
    dump(6 + 8 * L, [ha, hb])
    c1 = -2.0 * 0.7978845608028654 * 1.4426950408889634
    A(f"    s_mov_b32 s{sC+2}, {f32bits(c1):#x}")
    A(f"    s_mov_b32 s{sC+3}, {f32bits(c1*0.044715):#x}")
    acca, accb = 16, 17
    A(f"    v_mov_b32 v{acca}, 0")
    A(f"    v_mov_b32 v{accb}, 0")
    A(f"    v_mov_b32 v30, s{sC+2}")
    for i in range(7):
        ua, ub, za, zb = 20, 21, 22, 23
        A(f"    v_mul_f32 v{ua}, v{ha}, v{vW1+i}")
        A(f"    v_mul_f32 v{ub}, v{hb}, v{vW1+i}")
        bf16r_pair(ua, ub, 24)
        A(f"    v_add_f32 v{ua}, v{ua}, v{vB1+i}")
        A(f"    v_add_f32 v{ub}, v{ub}, v{vB1+i}")
        bf16r_pair(ua, ub, 24)
        A(f"    v_mul_f32 v{za}, v{ua}, v{ua}")
        A(f"    v_mul_f32 v{zb}, v{ub}, v{ub}")
        A(f"    v_fma_f32 v{za}, v{za}, s{sC+3}, v30")
        A(f"    v_fma_f32 v{zb}, v{zb}, s{sC+3}, v30")
        A(f"    v_mul_f32 v{za}, v{za}, v{ua}")
        A(f"    v_mul_f32 v{zb}, v{zb}, v{ub}")
        A(f"    v_exp_f32 v{za}, v{za}")
        A(f"    v_exp_f32 v{zb}, v{zb}")
        A("    s_nop 0")
        A(f"    v_add_f32 v{za}, 1.0, v{za}")
        A(f"    v_add_f32 v{zb}, 1.0, v{zb}")
        A(f"    v_rcp_f32 v{za}, v{za}")
        A(f"    v_rcp_f32 v{zb}, v{zb}")
        A("    s_nop 0")
        A(f"    v_mul_f32 v{ua}, v{ua}, v{za}")
        A(f"    v_mul_f32 v{ub}, v{ub}, v{zb}")
        bf16r_pair(ua, ub, 24)
        A(f"    v_fmac_f32 v{acca}, v{ua}, v{vW2+i}")
        A(f"    v_fmac_f32 v{accb}, v{ub}, v{vW2+i}")
    dpp_all_reduce([acca, accb], "v_add_f32", [40, 41])
    return acca, accb, xa_, xb_

def x2_publish(acca):
    A(f"    s_lshl_b32 s{sT0}, s2, 6")
    A(f"    s_lshl_b32 s{sT1}, s{sWAVE}, 3")
    A(f"    s_add_u32 s{sT0}, s{sT0}, s{sT1}")
    A(f"    s_add_u32 s{sT0}, s{sT0}, {X2_OFF:#x}")
    A(f"    v_mov_b32 v40, s{sT0}")
    A(f"    v_cmp_eq_u32 vcc, 0, v{vLANE}")
    A(f"    s_and_saveexec_b64 {sp(sEX)}, vcc")
    A(f"    global_store_dwordx2 v40, {vr(acca,2)}, {sp(sGL)} sc1")
    A(f"    s_mov_b64 exec, {sp(sEX)}")

def x2_gather():
    A("    ; ---- gather B partials -> x2")
    loads = [f"global_load_dwordx4 {vr(2,4)}, v{vAX2}, {sp(sGL)} sc1",
             f"global_load_dwordx4 {vr(6,4)}, v{vAX2}, {sp(sGL)} offset:16 sc1"]
    poll(loads, list(range(2, 10)), 40)
    for w in range(1, 4):
        A(f"    v_add_f32 v2, v2, v{2+2*w}")
        A(f"    v_add_f32 v3, v3, v{3+2*w}")
    bf16r_pair(2, 3, 40)
    A(f"    v_add_f32 v2, v2, v{vB2}")
    A(f"    v_add_f32 v3, v3, v{vB2}")
    bf16r_pair(2, 3, 40)
    A(f"    v_add_f32 v{vX0}, v{vX0}, v2")
    A(f"    v_add_f32 v{vX1}, v{vX1}, v3")
    bf16r_pair(vX0, vX1, 40)
    dump(7, [vX0, vX1])
    A(f"    v_lshlrev_b32 v41, 3, v{vTID}")
    A(f"    ds_write_b64 v41, {vr(vX0,2)} offset:{LDS_XS}")
    A("    s_waitcnt lgkmcnt(0)")
    A("    s_barrier")

set_layer(0)
A(f"    s_waitcnt vmcnt({N_AFTER_WQ})")
xa = list(range(24, 32)); xr = list(range(32, 36))
for i in range(4):
    unpack(xa[2 * i], xa[2 * i + 1], vXA + i)
for i in range(2):
    unpack(xr[2 * i], xr[2 * i + 1], vXR + i)
unpack(vX0, vX1, vXP)
acc = q_phase(0, xa, xr)
dump(1, acc[:2])
A("    s_barrier")
A(f"    v_mov_b32 v58, {LDS_MODE}")
A(f"    ds_read_b32 v58, v58")
A("    s_waitcnt lgkmcnt(0)")
A(f"    v_readfirstlane_b32 s{sMODE}, v58")
A("    s_nop 3")
q_publish(acc)
A("    ; ---- V transpose")
A(f"    s_waitcnt vmcnt({N_AFTER_V + 1})")
A(f"    s_lshl_b32 s{sT0}, s{sWAVE}, 13")
A(f"    v_lshlrev_b32 v40, 4, v{vLANE}")
A(f"    v_add_u32 v40, s{sT0}, v40")
for i in range(8):
    A(f"    ds_write_b128 v40, {vr(vVS+4*i,4)} offset:{LDS_V + i*1024}")
A(f"    v_lshrrev_b32 v41, 4, v{vLANE}           ; slab")
A(f"    v_and_b32 v42, 15, v{vLANE}")
A(f"    v_lshrrev_b32 v43, 2, v42")
A(f"    v_lshl_add_u32 v43, v41, 2, v43")
A(f"    v_lshlrev_b32 v43, 8, v43")
A(f"    v_and_b32 v42, 3, v42")
A(f"    v_lshl_add_u32 v43, v42, 3, v43")
A(f"    v_add_u32 v43, s{sT0}, v43")
A("    s_waitcnt lgkmcnt(0)")
for T in range(8):
    A(f"    ds_read_b64_tr_b16 {vr(vVT+4*T,2)}, v43 offset:{LDS_V + T*32}")
    A(f"    ds_read_b64_tr_b16 {vr(vVT+4*T+2,2)}, v43 offset:{LDS_V + T*32 + 4096}")
A("    s_waitcnt vmcnt(0)")
for i in range(7):
    A(f"    v_lshlrev_b32 v{vW1+i}, 16, v{vW1+i}")
    A(f"    v_lshlrev_b32 v{vB1+i}, 16, v{vB1+i}")
    A(f"    v_lshlrev_b32 v{vW2+i}, 16, v{vW2+i}")
A(f"    v_lshlrev_b32 v{vB2}, 16, v{vB2}")
A("    s_waitcnt lgkmcnt(0)")
q_gather()
attention(0)
o_combine_wo(0)
r_reduce(0)
x1_gather(0)
acca, accb, xa_, xb_ = b_phase(0)
x2_publish(acca)
x2_gather()
set_layer(1)
A(f"    v_lshlrev_b32 v40, 5, v{vLANE}")
A(f"    ds_read_b128 {vr(24,4)}, v40 offset:{LDS_XS}")
A(f"    ds_read_b128 {vr(28,4)}, v40 offset:{LDS_XS+16}")
A(f"    s_lshr_b32 s{sT0}, s{sIDX}, 3")
A(f"    s_lshl_b32 s{sT0}, s{sT0}, 9             ; kb*128*4")
A(f"    v_lshrrev_b32 v41, 3, v{vTID}")
A(f"    v_lshlrev_b32 v41, 4, v41")
A(f"    v_add_u32 v41, s{sT0}, v41")
A(f"    ds_read_b128 {vr(32,4)}, v41 offset:{LDS_XS}")
A("    s_waitcnt lgkmcnt(0)")
acc = q_phase(1, xa, xr)
q_publish(acc)
q_gather()
attention(1)
o_combine_wo(1)
r_reduce(1)
x1_gather(1)
acca, accb, xa_, xb_ = b_phase(1)
A("    ; ---- final")
A(f"    s_lshl_b32 s{sT0}, s{sWAVE}, 3")
A(f"    v_mov_b32 v40, s{sT0}")
A(f"    ds_write_b64 v40, {vr(acca,2)} offset:{LDS_YS}")
A("    s_waitcnt lgkmcnt(0)")
A("    s_barrier")
A(f"    s_cmp_eq_u32 s{sWAVE}, 0")
A("    s_cbranch_scc0 L_end")
A(f"    v_mov_b32 v40, 0")
A(f"    ds_read_b128 {vr(2,4)}, v40 offset:{LDS_YS}")
A(f"    ds_read_b128 {vr(6,4)}, v40 offset:{LDS_YS+16}")
A("    s_waitcnt lgkmcnt(0)")
for w in range(1, 4):
    A(f"    v_add_f32 v2, v2, v{2+2*w}")
    A(f"    v_add_f32 v3, v3, v{3+2*w}")
bf16r_pair(2, 3, 40)
A(f"    v_add_f32 v2, v2, v{vB2}")
A(f"    v_add_f32 v3, v3, v{vB2}")
bf16r_pair(2, 3, 40)
A(f"    v_add_f32 v2, v{xa_}, v2")
A(f"    v_add_f32 v3, v{xb_}, v3")
A(f"    v_cvt_pk_bf16_f32 v4, v2, v3")
A(f"    s_lshl_b32 s{sT0}, s2, 2")
A(f"    v_mov_b32 v40, s{sT0}")
A(f"    v_cmp_eq_u32 vcc, 0, v{vLANE}")
A(f"    s_and_saveexec_b64 {sp(sEX)}, vcc")
A(f"    global_store_dword v40, v4, {sp(sOUT)}")
A("    s_waitcnt vmcnt(0)")
A("    s_branch L_end")

A("L_helper:")
A(f"    v_mov_b32 v4, -1")
A(f"    v_mov_b32 v5, -1")
A(f"    v_mov_b32 v6, -1")
A(f"    v_mov_b32 v7, -1")
A(f"    v_lshlrev_b32 v2, 4, v{vLANE}")
def clear_local(flag):
    for L in range(2):
        set_layer(L)
        A(f"    v_mov_b32 v3, v2")
        for i in range(LOC_CLEAR_BYTES // 1024):
            if i and i % 4 == 0:
                A(f"    v_add_u32 v3, 4096, v3")
            A(f"    global_store_dwordx4 v3, v[4:7], {sp(sMY)} offset:{(i%4)*1024}{flag}")
clear_local("")
A(f"    s_lshl_b32 s{sT0}, s{sG}, 11")
A(f"    s_lshl_b32 s{sT1}, s{sIDX}, 6")
A(f"    s_add_u32 s{sT0}, s{sT0}, s{sT1}")
A(f"    s_add_u32 s{sT0}, s{sT0}, {LAYER_BASE + P_OFF:#x}")
A(f"    v_add_u32 v8, s{sT0}, v2")
A(f"    v_add_u32 v9, {LAYER_STRIDE:#x}, v8")
A(f"    s_lshl_b32 s{sT0}, s2, 6")
A(f"    s_add_u32 s{sT0}, s{sT0}, {LAYER_BASE + X2_OFF:#x}")
A(f"    v_add_u32 v10, s{sT0}, v2")
A(f"    v_cmp_gt_u32 vcc, 4, v{vLANE}")
A(f"    s_and_saveexec_b64 {sp(sEX)}, vcc")
A(f"    global_store_dwordx4 v8, v[4:7], {sp(sWS)} sc1")
A(f"    global_store_dwordx4 v9, v[4:7], {sp(sWS)} sc1")
A(f"    global_store_dwordx4 v10, v[4:7], {sp(sWS)} sc1")
A(f"    s_mov_b64 exec, {sp(sEX)}")
A(f"    s_lshl_b32 s{sT0}, s{sG}, 3")
A(f"    v_mov_b32 v11, s{sT0}")
A(f"    s_cmp_eq_u32 s{sIDX}, 0")
A("    s_cbranch_scc0 L_h_nolead")
A(f"    s_memrealtime s[{sC}:{sC+1}]")
A("    s_waitcnt lgkmcnt(0)")
A(f"    s_or_b32 s{sC}, s{sC}, 1")
A(f"    v_mov_b32 v12, s{sC}")
A(f"    v_mov_b32 v13, s{sC+1}")
A(f"    v_cmp_eq_u32 vcc, 0, v{vLANE}")
A(f"    s_and_saveexec_b64 {sp(sEX)}, vcc")
A(f"    global_store_dwordx2 v11, v[12:13], {sp(sDBG)} sc1")
A(f"    s_mov_b64 exec, {sp(sEX)}")
A("L_h_nolead:")
A(f"    s_mov_b32 s{sTO}, 0x8000")
A("L_h_nonce:")
A(f"    global_load_dwordx2 v[12:13], v11, {sp(sDBG)} sc1")
A("    s_waitcnt vmcnt(0)")
A(f"    v_cmp_eq_u32 vcc, 0, v12")
A("    s_cbranch_vccz L_h_gotn")
A(f"    s_sub_u32 s{sTO}, s{sTO}, 1")
A("    s_cbranch_scc0 L_h_nonce")
A("L_h_gotn:")
A(f"    s_getreg_b32 s{sT2}, hwreg(HW_REG_XCC_ID)")
A(f"    s_and_b32 s{sT2}, s{sT2}, 0xffff")
A(f"    v_mov_b32 v14, s{sT2}")
A(f"    v_mov_b32 v15, 0")
A(f"    s_lshl_b32 s{sT0}, s{sCU}, 6")
A(f"    v_mov_b32 v16, s{sT0}")
A(f"    s_lshl_b32 s{sT1}, s{sG}, 11")
A(f"    v_and_b32 v17, 31, v{vLANE}")
A(f"    v_lshlrev_b32 v17, 6, v17")
A(f"    v_add_u32 v17, s{sT1}, v17")
def flag_round(off, lab):
    A(f"    v_cmp_eq_u32 vcc, 0, v{vLANE}")
    A(f"    s_and_saveexec_b64 {sp(sEX)}, vcc")
    A(f"    global_store_dwordx4 v16, v[12:15], {sp(sWS)} offset:{off if off < 4096 else 0} sc1" if off < 4096 else
      f"    v_add_u32 v18, {off}, v16\n    global_store_dwordx4 v18, v[12:15], {sp(sWS)} sc1")
    A(f"    s_mov_b64 exec, {sp(sEX)}")
    A(f"    v_add_u32 v19, {off}, v17")
    A(f"    s_mov_b32 s{sTO}, 0x8000")
    A(f"{lab}:")
    A(f"    global_load_dwordx4 v[20:23], v19, {sp(sWS)} sc1")
    A("    s_waitcnt vmcnt(0)")
    A(f"    v_cmp_ne_u32 vcc, v20, v12")
    A(f"    v_cmp_ne_u32 {sp(sCM)}, v21, v13")
    A(f"    s_or_b64 vcc, vcc, {sp(sCM)}")
    A(f"    s_cbranch_vccz {lab}_d")
    A(f"    s_sub_u32 s{sTO}, s{sTO}, 1")
    A(f"    s_cbranch_scc0 {lab}")
    A(f"{lab}_d:")
flag_round(FL1, "L_h_f1")
A(f"    v_cmp_ne_u32 vcc, v22, v14")
A(f"    s_mov_b32 s{sMODE}, 0")
if FORCE_SLOW:
    A("    s_branch L_h_slow")
A("    s_cbranch_vccz L_h_fast")
A("L_h_slow:")
A(f"    s_mov_b32 s{sMODE}, 1")
clear_local(" sc1")
A("    s_waitcnt vmcnt(0)")
flag_round(FL2, "L_h_f2")
A("L_h_fast:")
A(f"    v_mov_b32 v24, {LDS_MODE}")
A(f"    v_mov_b32 v25, s{sMODE}")
A(f"    ds_write_b32 v24, v25")
A("    s_waitcnt lgkmcnt(0)")
A("    s_barrier")
A(f"    s_cmp_eq_u32 s{sIDX}, 0")
A("    s_cbranch_scc0 L_end")
A(f"    s_lshl_b32 s{sT0}, s{sG}, 2")
A(f"    v_mov_b32 v24, s{sT0}")
A(f"    v_mov_b32 v25, 1")
A(f"    v_cmp_eq_u32 vcc, 0, v{vLANE}")
A(f"    s_and_saveexec_b64 {sp(sEX)}, vcc")
A(f"    global_store_dword v24, v25, {sp(sDBG)} offset:64 sc1")
A("    s_waitcnt vmcnt(0)")
A("L_end:")
A("    s_endpgm")
A('.section .rodata,"a"')
A(".p2align 6")
A(f".amdhsa_kernel {KNAME}")
A("  .amdhsa_next_free_vgpr 256")
A("  .amdhsa_next_free_sgpr 80")
A("  .amdhsa_accum_offset 256")
A("  .amdhsa_group_segment_fixed_size 0")
A("  .amdhsa_kernarg_size 104")
A("  .amdhsa_user_sgpr_count 2")
A("  .amdhsa_user_sgpr_kernarg_segment_ptr 1")
A("  .amdhsa_system_sgpr_workgroup_id_x 1")
A(".end_amdhsa_kernel")

dst = [a for a in sys.argv[1:] if not a.startswith("--")]
path = dst[0] if dst else "interleave_layers__sliding_block_cached__mixer_token_mlp__decode.s"
open(path, "w").write("\n".join(out) + "\n")
print("wrote", path, len(out), "lines")
```

```python
import sys, struct

KNAME = "interleave_layers__sliding_block_cached__mixer_token_mlp__decode_kernel"
DEBUG_DUMP = "--dump" in sys.argv
FORCE_SLOW = "--slow" in sys.argv
TS = "--ts" in sys.argv

out = []
def A(s=""):
    out.append(s)
def f32bits(x):
    return struct.unpack("<I", struct.pack("<f", x))[0]
_lbl = [0]; _pc = [0]; _ts = [0]
def newlabel(p="L"):
    _lbl[0] += 1
    return f"{p}_{_lbl[0]}"

FL1 = 0x0000
FL2 = 0x4000
LAYER_BASE = 0x100000
LAYER_STRIDE = 0x400000
GRP_STRIDE = 0x40000
CS = 2048 + 128
Q_OFF = 0x0000
ML_OFF = 0x2000
XL_OFF = 0x2400
XL2_OFF = 0x2C00
O_OFF = 0x3400
R_OFF = O_OFF + 32 * CS
GRP_USED = R_OFF + 32 * CS
CLR_PER_CU = (GRP_USED + 32 * 1024 - 1) // (32 * 1024) * 1024
assert CLR_PER_CU * 32 <= GRP_STRIDE
P_OFF = 0x200000
Y_OFF = 0x210000
DUMP_BASE = 0x4000000

LDS_V = 0x0000
LDS_CMB = 0x0000
LDS_MLW = 0x2000
LDS_CMB2 = 0x4000
LDS_QS = 0x8000
LDS_MODE = 0x8400
LDS_YS = 0x8410
LDS_BYTES = 0x8800

sX, sK, sV, sWQ, sWO, sBX, sW1, sB1, sW2, sB2, sOUT, sDBG, sWS = [4 + 2 * i for i in range(13)]
sG, sIDX, sWAVE, sCU, sMODE, sTO = 30, 31, 32, 33, 34, 35
sLOC = 36; sMY = 38; sGL = 40
sT0, sT1, sT2, sT3 = 42, 43, 44, 45
sO = 46
sEX = 50
sC = 52
sCM = 64
def sp(r): return f"s[{r}:{r+1}]"

vTID, vLANE = 0, 1
vK = 64; vVT = 96; vWQ = 128; vWO = 144
vW1, vB1, vW2 = 160, 167, 174
vB2 = 181
vXM = 182
vL16 = 184
vT8 = 185
vAO = 186
vAML = 187
vAP = 188
vAY = 189
vAXR = 190
vAPUB = 191
def vr(r, n): return f"v[{r}:{r+n-1}]"

def nops(n):
    while n > 0:
        k = min(n, 16)
        A(f"    s_nop {k-1}")
        n -= k

DPP = {1: "quad_perm:[1,0,3,2]", 2: "quad_perm:[2,3,0,1]", 4: "row_ror:4", 8: "row_ror:8"}
def xreduce(regs, op, tmp, bits=(1, 2, 4, 8, 16, 32)):
    n = len(regs)
    for b in bits:
        if b <= 8:
            if n < 3: nops(3 - n)
            for r in regs:
                A(f"    {op}_dpp v{r}, v{r}, v{r} {DPP[b]} row_mask:0xf bank_mask:0xf")
        else:
            sw = "v_permlane16_swap_b32" if b == 16 else "v_permlane32_swap_b32"
            for r, t in zip(regs, tmp):
                A(f"    v_mov_b32 v{t}, v{r}")
            nops(2 if n < 2 else 1)
            for r, t in zip(regs, tmp):
                A(f"    {sw} v{t}, v{r}")
            nops(1)
            for r, t in zip(regs, tmp):
                A(f"    {op} v{r}, v{r}, v{t}")

def bf16r_pair(a, b, t):
    A(f"    v_cvt_pk_bf16_f32 v{t}, v{a}, v{b}")
    A(f"    v_lshlrev_b32 v{a}, 16, v{t}")
    A(f"    v_and_b32 v{b}, 0xffff0000, v{t}")
def bf16r(a, t):
    A(f"    v_cvt_pk_bf16_f32 v{t}, v{a}, v{a}")
    A(f"    v_lshlrev_b32 v{a}, 16, v{t}")
def unpack(dst_lo, dst_hi, src):
    A(f"    v_lshlrev_b32 v{dst_lo}, 16, v{src}")
    A(f"    v_and_b32 v{dst_hi}, 0xffff0000, v{src}")

def max_chain(dst, regs):
    regs = list(regs)
    if len(regs) == 1:
        A(f"    v_mov_b32 v{dst}, v{regs[0]}"); return
    if len(regs) == 2:
        A(f"    v_max_u32 v{dst}, v{regs[0]}, v{regs[1]}"); return
    A(f"    v_max3_u32 v{dst}, v{regs[0]}, v{regs[1]}, v{regs[2]}")
    rest = regs[3:]
    while len(rest) >= 2:
        A(f"    v_max3_u32 v{dst}, v{dst}, v{rest[0]}, v{rest[1]}")
        rest = rest[2:]
    if rest:
        A(f"    v_max_u32 v{dst}, v{dst}, v{rest[0]}")

def ts(name=""):
    if not TS: return
    k = _ts[0]; _ts[0] += 1
    A(f"    s_memrealtime s[70:71]")
    A(f"    s_waitcnt lgkmcnt(0)")
    A(f"    v_writelane_b32 v254, s70, {k}")
def ts_flush():
    if not TS: return
    A(f"    s_lshl_b32 s{sT0}, s2, 11")
    A(f"    s_lshl_b32 s{sT1}, s{sWAVE}, 8")
    A(f"    s_add_u32 s{sT0}, s{sT0}, s{sT1}")
    A(f"    s_add_u32 s{sT0}, s{sT0}, {DUMP_BASE + 30 * 0x400000}")
    A(f"    v_lshlrev_b32 v255, 2, v{vLANE}")
    A(f"    v_add_u32 v255, s{sT0}, v255")
    A(f"    global_store_dword v255, v254, {sp(sWS)}")
    A(f"    global_store_dword v255, v253, {sp(sWS)} offset:1024")
    A("    s_waitcnt vmcnt(0)")
def dump(slot, regs):
    if not DEBUG_DUMP: return
    A(f"    s_lshl_b32 s{sT0}, s2, 14")
    A(f"    s_add_u32 s{sT0}, s{sT0}, {DUMP_BASE + slot * 0x400000}")
    A(f"    v_lshlrev_b32 v255, 6, v{vTID}")
    A(f"    v_add_u32 v255, s{sT0}, v255")
    for i, r in enumerate(regs):
        A(f"    global_store_dword v255, v{r}, {sp(sWS)} offset:{4*i}")
    A("    s_waitcnt vmcnt(0)")

def poll(loads, check_regs, vtmp, extra_check=None, name=""):
    L = newlabel("poll"); D = newlabel("polld")
    A(f"    s_mov_b32 s{sTO}, 0x8000")
    ts("  poll begin " + name)
    A(f"{L}:")
    for l in loads: A("    " + l)
    A("    s_waitcnt vmcnt(0)")
    max_chain(vtmp, check_regs)
    A(f"    v_cmp_eq_u32 vcc, -1, v{vtmp}")
    if extra_check: extra_check()
    A(f"    s_cbranch_vccz {D}")
    A(f"    s_sub_u32 s{sTO}, s{sTO}, 1")
    A(f"    s_cbranch_scc0 {L}")
    A(f"{D}:")
    ts("  poll end " + name)
    if TS:
        k = _pc[0]; _pc[0] += 1
        A(f"    s_sub_u32 s72, 0x8000, s{sTO}")
        A(f"    v_writelane_b32 v253, s72, {k}")

def store_local(stores):
    S = newlabel("sl"); D = newlabel("sld")
    A(f"    s_cmp_eq_u32 s{sMODE}, 0")
    A(f"    s_cbranch_scc0 {S}")
    for s in stores: A("    " + s)
    A(f"    s_branch {D}")
    A(f"{S}:")
    for s in stores: A("    " + s + " sc1")
    A(f"{D}:")

def set_layer(L):
    base = LAYER_BASE + L * LAYER_STRIDE
    A(f"    ; ---- layer {L} bases")
    A(f"    s_add_u32 s{sGL}, s{sWS}, {base}")
    A(f"    s_addc_u32 s{sGL+1}, s{sWS+1}, 0")
    A(f"    s_lshl_b32 s{sT0}, s{sG}, 18            ; g*GRP_STRIDE")
    A(f"    s_add_u32 s{sLOC}, s{sGL}, s{sT0}")
    A(f"    s_addc_u32 s{sLOC+1}, s{sGL+1}, 0")

def ln_stats(xregs, vmean, vrs, t):
    s1, s2, t0, t1 = t[0], t[1], t[2], t[3]
    A(f"    v_add_f32 v{s1}, v{xregs[0]}, v{xregs[1]}")
    A(f"    v_mul_f32 v{s2}, v{xregs[0]}, v{xregs[0]}")
    A(f"    v_fmac_f32 v{s2}, v{xregs[1]}, v{xregs[1]}")
    for r in xregs[2:]:
        A(f"    v_add_f32 v{s1}, v{s1}, v{r}")
        A(f"    v_fmac_f32 v{s2}, v{r}, v{r}")
    xreduce([s1, s2], "v_add_f32", [t0, t1])
    A(f"    v_mul_f32 v{s1}, {f32bits(1/512):#x}, v{s1}")
    A(f"    v_mul_f32 v{s2}, {f32bits(1/512):#x}, v{s2}")
    A(f"    v_fma_f32 v{s2}, -v{s1}, v{s1}, v{s2}")
    A(f"    v_max_f32 v{s2}, 0, v{s2}")
    bf16r_pair(s1, s2, t0)
    A(f"    v_add_f32 v{s2}, {f32bits(1e-5):#x}, v{s2}")
    bf16r(s2, t0)
    A(f"    v_sqrt_f32 v{s2}, v{s2}")
    A("    s_nop 0")
    bf16r(s2, t0)
    A(f"    v_rcp_f32 v{vrs}, v{s2}")
    A(f"    v_mov_b32 v{vmean}, v{s1}")
    A("    s_nop 0")

def ln_apply(regs, vmean, vrs, t):
    for a, b in zip(regs[0::2], regs[1::2]):
        A(f"    v_sub_f32 v{a}, v{a}, v{vmean}")
        A(f"    v_sub_f32 v{b}, v{b}, v{vmean}")
        bf16r_pair(a, b, t)
        A(f"    v_mul_f32 v{a}, v{a}, v{vrs}")
        A(f"    v_mul_f32 v{b}, v{b}, v{vrs}")
        bf16r_pair(a, b, t)

hdr = open("interleave_layers__sliding_block_cached__mixer_token_mlp__decode.s.ref").read().split("\n")
for line in hdr:
    if line.startswith("; @launch"):
        A(f"; @launch grid=(256,1,1) block=(320,1,1) lds={LDS_BYTES}")
        break
    A(line)
A('.amdgcn_target "amdgcn-amd-amdhsa--gfx950"')
A(".text")
A(f".globl {KNAME}")
A(".p2align 8")
A(f".type {KNAME},@function")
A(f"{KNAME}:")
A("    s_cmp_ge_u32 s2, 256")
A("    s_cbranch_scc1 L_end")
A("    s_load_dwordx16 s[4:19], s[0:1], 0")
A("    s_load_dwordx8 s[20:27], s[0:1], 64")
A("    s_load_dwordx2 s[28:29], s[0:1], 96")
A(f"    s_and_b32 s{sG}, s2, 7")
A(f"    s_lshr_b32 s{sIDX}, s2, 3")
A(f"    s_lshl_b32 s{sCU}, s{sG}, 5")
A(f"    s_add_u32 s{sCU}, s{sCU}, s{sIDX}")
A(f"    v_and_b32 v{vLANE}, 63, v0")
A(f"    v_lshrrev_b32 v2, 6, v0")
A("    s_nop 0")
A(f"    v_readfirstlane_b32 s{sWAVE}, v2")
A("    s_waitcnt lgkmcnt(0)")
A(f"    s_cmp_eq_u32 s{sWAVE}, 4")
A("    s_cbranch_scc1 L_helper")
if TS:
    A("    v_mov_b32 v254, 0")
    A("    v_mov_b32 v253, 0")
ts("entry")

vXA = 2; vXR = 6; vXP = 8
A("    ; ---- prologue loads")
A(f"    v_lshlrev_b32 v{vL16}, 4, v{vLANE}")
A(f"    global_load_dwordx4 {vr(vXA,4)}, v{vL16}, {sp(sX)}")
A(f"    s_lshr_b32 s{sT0}, s{sIDX}, 3            ; kb")
A(f"    s_lshl_b32 s{sT1}, s{sT0}, 8")
A(f"    v_lshrrev_b32 v11, 3, v{vTID}")
A(f"    v_lshlrev_b32 v12, 3, v11")
A(f"    v_add_u32 v12, s{sT1}, v12")
A(f"    global_load_dwordx2 {vr(vXR,2)}, v12, {sp(sX)}")
A(f"    v_lshlrev_b32 v{vAXR}, 1, v12")
A(f"    v_and_b32 v13, 7, v{vLANE}")
A(f"    v_lshlrev_b32 v13, 2, v13")
A(f"    s_lshl_b32 s{sT1}, s{sIDX}, 5")
A(f"    v_add_u32 v13, s{sT1}, v13")
A(f"    global_load_dword v{vXP}, v13, {sp(sX)}")
A(f"    s_lshl_b32 s{sT1}, s{sT0}, 20")
A(f"    s_lshl_b32 s{sT2}, s{sG}, 10")
A(f"    s_add_u32 s{sT1}, s{sT1}, s{sT2}")
A(f"    s_and_b32 s{sT2}, s{sIDX}, 7")
A(f"    s_lshl_b32 s{sT2}, s{sT2}, 7")
A(f"    s_add_u32 s{sT1}, s{sT1}, s{sT2}")
A(f"    v_lshlrev_b32 v14, 15, v11")
A(f"    v_and_b32 v15, 7, v{vTID}")
A(f"    v_lshlrev_b32 v15, 4, v15")
A(f"    v_add3_u32 v14, v14, v15, s{sT1}")
for p in range(4):
    if p: A(f"    v_add_u32 v14, 8192, v14")
    A(f"    global_load_dwordx4 {vr(vWQ+4*p,4)}, v14, {sp(sWQ)} nt")
A(f"    s_lshl_b32 s{sT1}, s{sG}, 24")
A(f"    s_add_u32 s{sT1}, s{sT1}, {(65536-4096)*256}")
A(f"    s_lshl_b32 s{sT2}, s{sIDX}, 15")
A(f"    s_add_u32 s{sT1}, s{sT1}, s{sT2}")
A(f"    s_lshl_b32 s{sT2}, s{sWAVE}, 13")
A(f"    s_add_u32 s{sT1}, s{sT1}, s{sT2}")
A(f"    v_and_b32 v16, 15, v{vLANE}")
A(f"    v_lshlrev_b32 v16, 8, v16")
A(f"    v_lshrrev_b32 v17, 4, v{vLANE}")
A(f"    v_lshlrev_b32 v17, 4, v17")
A(f"    v_add3_u32 v16, v16, v17, s{sT1}")
A(f"    v_add_u32 v17, 4096, v16")
for T in range(2):
    for j in range(4):
        A(f"    global_load_dwordx4 {vr(vK+16*T+4*j,4)}, v{16+T}, {sp(sK)} offset:{j*64} nt")
vVS = 200
A(f"    v_add_u32 v18, s{sT1}, v{vL16}")
A(f"    v_add_u32 v19, 4096, v18")
for i in range(8):
    A(f"    global_load_dwordx4 {vr(vVS+4*i,4)}, v{18+i//4}, {sp(sV)} offset:{(i%4)*1024} nt")
A(f"    s_lshl_b32 s{sT1}, s{sG}, 19")
A(f"    s_lshl_b32 s{sT2}, s{sIDX}, 14")
A(f"    s_add_u32 s{sT1}, s{sT1}, s{sT2}")
A(f"    s_lshl_b32 s{sT2}, s{sWAVE}, 12")
A(f"    s_add_u32 s{sT1}, s{sT1}, s{sT2}")
A(f"    v_add_u32 v20, s{sT1}, v{vL16}")
for p in range(4):
    A(f"    global_load_dwordx4 {vr(vWO+4*p,4)}, v20, {sp(sWO)} offset:{p*1024} nt")
A(f"    v_lshlrev_b32 v21, 1, v{vTID}")
for i in range(7):
    A(f"    global_load_ushort v{vW1+i}, v21, {sp(sW1)} offset:{512*i}")
    A(f"    global_load_ushort v{vB1+i}, v21, {sp(sB1)} offset:{512*i}")
    A(f"    global_load_ushort v{vW2+i}, v21, {sp(sW2)} offset:{512*i}")
A(f"    v_mov_b32 v22, 0")
A(f"    global_load_ushort v{vB2}, v22, {sp(sB2)}")
N_AFTER_WQ = 8 + 8 + 4 + 21 + 1
N_AFTER_V = 4 + 21 + 1

A("    ; ---- persistent offsets")
A(f"    v_lshlrev_b32 v{vT8}, 3, v{vTID}")
A(f"    s_mul_i32 s{sT0}, s{sIDX}, {CS}")
A(f"    v_add_u32 v{vAO}, s{sT0}, v{vL16}")
A(f"    s_lshr_b32 s{sT0}, s{sIDX}, 3            ; head")
A(f"    s_lshl_b32 s{sT0}, s{sT0}, 8")
A(f"    s_add_u32 s{sT0}, s{sT0}, {ML_OFF}")
A(f"    v_lshrrev_b32 v23, 2, v{vLANE}")
A(f"    v_lshlrev_b32 v23, 3, v23")
A(f"    v_add_u32 v{vAML}, s{sT0}, v23")
A(f"    v_lshrrev_b32 v23, 3, v{vLANE}")
A(f"    v_lshlrev_b32 v24, 11, v23")
A(f"    v_and_b32 v25, 7, v{vLANE}")
A(f"    v_lshlrev_b32 v26, 3, v25")
A(f"    s_lshl_b32 s{sT0}, s{sIDX}, 6")
A(f"    s_add_u32 s{sT0}, s{sT0}, {P_OFF:#x}")
A(f"    v_add3_u32 v{vAP}, v24, v26, s{sT0}")
A(f"    v_and_b32 v23, 3, v23")
A(f"    v_lshlrev_b32 v23, 3, v23")
A(f"    v_lshlrev_b32 v26, 6, v25")
A(f"    s_lshl_b32 s{sT0}, s{sIDX}, 9")
A(f"    s_add_u32 s{sT0}, s{sT0}, {Y_OFF:#x}")
A(f"    v_add3_u32 v{vAY}, v23, v26, s{sT0}")
A(f"    v_lshrrev_b32 v23, 3, v{vTID}")
A(f"    s_mov_b32 s{sT0}, {CS}")
A(f"    v_mul_lo_u32 v23, v23, s{sT0}")
A(f"    v_and_b32 v24, 7, v{vTID}")
A(f"    v_lshlrev_b32 v24, 3, v24")
A(f"    s_lshl_b32 s{sT0}, s{sIDX}, 6")
A(f"    v_add3_u32 v{vAPUB}, v23, v24, s{sT0}")

def cmb_read4(dst, off):
    for w in range(4):
        A(f"    ds_read_b64 {vr(dst+2*w,2)}, v{vT8} offset:{off + w*2048}")

def q_phase(L, xa, xr, first):
    vm, vrs = 40, 41
    ln_stats(xa, vm, vrs, [42, 43, 44, 45])
    ln_apply(xr, vm, vrs, 42)
    acc = list(range(46, 54))
    lo, hi = 54, 55
    for p in range(4):
        for c in range(4):
            unpack(lo, hi, vWQ + 4 * p + c)
            op = "v_mul_f32" if p == 0 else "v_fmac_f32"
            A(f"    {op} v{acc[2*c]}, v{xr[p]}, v{lo}")
            A(f"    {op} v{acc[2*c+1]}, v{xr[p]}, v{hi}")
    nops(2)
    for c in range(4):
        A(f"    v_permlane32_swap_b32 v{acc[c]}, v{acc[c+4]}")
    nops(1)
    for c in range(4):
        A(f"    v_add_f32 v{acc[c]}, v{acc[c]}, v{acc[c+4]}")
    nops(2)
    for c in range(2):
        A(f"    v_permlane16_swap_b32 v{acc[c]}, v{acc[c+2]}")
    nops(1)
    for c in range(2):
        A(f"    v_add_f32 v{acc[c]}, v{acc[c]}, v{acc[c+2]}")
    nops(2)
    for c in range(2):
        A(f"    v_add_f32_dpp v{acc[c]}, v{acc[c]}, v{acc[c]} row_ror:8 row_mask:0xf bank_mask:0xf")
    A(f"    v_and_b32 v56, 7, v{vLANE}")
    A(f"    v_lshlrev_b32 v56, 5, v56")
    A(f"    v_lshrrev_b32 v57, 4, v{vLANE}")
    A(f"    v_lshlrev_b32 v57, 3, v57")
    A(f"    s_lshl_b32 s{sT0}, s{sWAVE}, 8")
    A(f"    v_add3_u32 v56, v56, v57, s{sT0}")
    A(f"    ds_write_b64 v56, {vr(acc[0],2)} offset:{LDS_QS}")
    A("    s_waitcnt lgkmcnt(0)")
    ts("q partial")
    A("    s_barrier")
    if first:
        ts("B0")
        A(f"    v_mov_b32 v58, {LDS_MODE}")
        A(f"    ds_read_b32 v58, v58")
    A(f"    v_lshlrev_b32 v56, 3, v{vLANE}")
    for w in range(4):
        A(f"    ds_read_b64 {vr(46+2*w,2)}, v56 offset:{LDS_QS + w*256}")
    A("    s_waitcnt lgkmcnt(0)")
    if first:
        A(f"    v_readfirstlane_b32 s{sMODE}, v58")
    for w in range(1, 4):
        A(f"    v_add_f32 v46, v46, v{46+2*w}")
        A(f"    v_add_f32 v47, v47, v{47+2*w}")
    A(f"    s_lshr_b32 s{sT0}, s{sIDX}, 3")
    A(f"    s_lshl_b32 s{sT0}, s{sT0}, 11           ; kb*2048")
    A(f"    s_and_b32 s{sT1}, s{sIDX}, 7")
    A(f"    s_lshl_b32 s{sT1}, s{sT1}, 8            ; cb*256")
    A(f"    s_add_u32 s{sT0}, s{sT0}, s{sT1}")
    A(f"    v_add_u32 v56, s{sT0}, v56")
    A(f"    v_cmp_gt_u32 vcc, 32, v{vTID}")
    A(f"    s_and_saveexec_b64 {sp(sEX)}, vcc")
    Lskip = newlabel("qsk")
    A(f"    s_cbranch_execz {Lskip}")
    store_local([f"global_store_dwordx2 v56, v[46:47], {sp(sLOC)}"])
    A(f"{Lskip}:")
    A(f"    s_mov_b64 exec, {sp(sEX)}")

def q_gather():
    base = 2
    loads = []; regs = []
    A(f"    v_add_u32 v60, 4096, v{vT8}")
    for kb in range(4):
        r = base + 2 * kb
        loads.append(f"global_load_dwordx2 {vr(r,2)}, v{vT8 if kb < 2 else 60}, {sp(sLOC)} offset:{(kb%2)*2048} sc1")
        regs += [r, r + 1]
    poll(loads, regs, 40, name="Q")
    for i in range(1, 4):
        A(f"    v_add_f32 v{base}, v{base}, v{base+2*i}")
        A(f"    v_add_f32 v{base+1}, v{base+1}, v{base+2*i+1}")
    A(f"    v_cvt_pk_bf16_f32 v40, v{base}, v{base+1}")
    A(f"    v_lshlrev_b32 v41, 2, v{vTID}")
    A("    s_barrier")
    A(f"    ds_write_b32 v41, v40 offset:{LDS_QS}")
    A("    s_waitcnt lgkmcnt(0)")
    A("    s_barrier")

def attention(L):
    vQ = 2
    A("    ; ---- attention")
    A(f"    v_and_b32 v40, 3, v{vLANE}")
    A(f"    v_lshlrev_b32 v40, 8, v40")
    A(f"    v_lshrrev_b32 v41, 4, v{vLANE}")
    A(f"    v_lshl_add_u32 v40, v41, 4, v40")
    for j in range(4):
        A(f"    ds_read_b128 {vr(vQ+4*j,4)}, v40 offset:{LDS_QS + j*64}")
    S = 24
    for r in range(8):
        A(f"    v_mov_b32 v{S+r}, 0")
    O = 200
    for r in range(32):
        A(f"    v_mov_b32 v{O+r}, 0")
    A(f"    s_mov_b32 s{sC}, {f32bits(128 ** -0.5):#x}")
    A(f"    s_mov_b32 s{sC+1}, {f32bits(1.4426950408889634):#x}")
    A("    s_waitcnt lgkmcnt(0)")
    nops(1)
    for j in range(4):
        for T in range(2):
            A(f"    v_mfma_f32_16x16x32_bf16 {vr(S+4*T,4)}, {vr(vK+16*T+4*j,4)}, {vr(vQ+4*j,4)}, {vr(S+4*T,4)}")
    A(f"    v_and_b32 v40, 15, v{vLANE}            ; col")
    A(f"    v_lshlrev_b32 v42, 9, v40              ; head*512")
    A(f"    v_lshl_add_u32 v42, v41, 4, v42        ; + slab*16")
    A(f"    s_lshl_b32 s{sT0}, s{sWAVE}, 11")
    A(f"    v_add_u32 v42, s{sT0}, v42")
    A(f"    s_lshl_b32 s{sT0}, s{sWAVE}, 3")
    A(f"    v_lshlrev_b32 v43, 5, v{vLANE}         ; head*32")
    A(f"    v_add_u32 v43, s{sT0}, v43")
    nops(3)
    dump(3 + 8 * L, list(range(S, S + 8)))
    for r in range(0, 8, 2):
        bf16r_pair(S + r, S + r + 1, 44)
        A(f"    v_mul_f32 v{S+r}, s{sC}, v{S+r}")
        A(f"    v_mul_f32 v{S+r+1}, s{sC}, v{S+r+1}")
        bf16r_pair(S + r, S + r + 1, 44)
    vm, vl = 34, 35
    A(f"    v_max3_f32 v{vm}, v{S}, v{S+1}, v{S+2}")
    A(f"    v_max3_f32 v{vm}, v{vm}, v{S+3}, v{S+4}")
    A(f"    v_max3_f32 v{vm}, v{vm}, v{S+5}, v{S+6}")
    A(f"    v_max_f32 v{vm}, v{vm}, v{S+7}")
    xreduce([vm], "v_max_f32", [44], bits=(16, 32))
    A(f"    v_mul_f32 v45, s{sC+1}, v{vm}")
    for r in range(8):
        A(f"    v_fma_f32 v{S+r}, v{S+r}, s{sC+1}, -v45")
    for r in range(8):
        A(f"    v_exp_f32 v{S+r}, v{S+r}")
    A("    s_nop 0")
    P = 36
    for i in range(4):
        A(f"    v_cvt_pk_bf16_f32 v{P+i}, v{S+2*i}, v{S+2*i+1}")
    A(f"    v_add_f32 v{vl}, v{S}, v{S+1}")
    A(f"    v_add_f32 v{vl}, v{vl}, v{S+2}")
    for T in range(8):
        A(f"    v_mfma_f32_16x16x32_bf16 {vr(O+4*T,4)}, {vr(vVT+4*T,4)}, {vr(P,4)}, {vr(O+4*T,4)}")
    for r in range(3, 8):
        A(f"    v_add_f32 v{vl}, v{vl}, v{S+r}")
    xreduce([vl], "v_add_f32", [44], bits=(16, 32))
    nops(4)
    A(f"    v_cmp_gt_u32 vcc, 4, v40")
    A(f"    s_and_saveexec_b64 {sp(sEX)}, vcc")
    for T in range(8):
        A(f"    ds_write_b128 v42, {vr(O+4*T,4)} offset:{LDS_CMB + T*64}")
    A(f"    v_cmp_gt_u32 vcc, 4, v{vLANE}")
    A(f"    s_and_b64 exec, exec, vcc")
    A(f"    ds_write_b64 v43, {vr(vm,2)} offset:{LDS_MLW}")
    A(f"    s_mov_b64 exec, {sp(sEX)}")
    A("    s_waitcnt lgkmcnt(0)")
    A("    s_barrier")
    cmb_read4(2, LDS_CMB)
    A(f"    s_lshl_b32 s{sT0}, s{sWAVE}, 5")
    A(f"    v_mov_b32 v40, s{sT0}")
    A(f"    ds_read_b128 {vr(12,4)}, v40 offset:{LDS_MLW}")
    A(f"    ds_read_b128 {vr(16,4)}, v40 offset:{LDS_MLW+16}")
    A("    s_waitcnt lgkmcnt(0)")
    M, Lr = 20, 21
    A(f"    v_max3_f32 v{M}, v12, v14, v16")
    A(f"    v_max_f32 v{M}, v{M}, v18")
    for w in range(4):
        A(f"    v_sub_f32 v{12+2*w}, v{12+2*w}, v{M}")
    for w in range(4):
        A(f"    v_mul_f32 v{12+2*w}, s{sC+1}, v{12+2*w}")
    for w in range(4):
        A(f"    v_exp_f32 v{12+2*w}, v{12+2*w}")
    A("    s_nop 0")
    A(f"    v_mul_f32 v{Lr}, v12, v13")
    A(f"    v_mul_f32 v2, v12, v2")
    A(f"    v_mul_f32 v3, v12, v3")
    for w in range(1, 4):
        A(f"    v_fmac_f32 v{Lr}, v{12+2*w}, v{13+2*w}")
        A(f"    v_fmac_f32 v2, v{12+2*w}, v{2+2*w}")
        A(f"    v_fmac_f32 v3, v{12+2*w}, v{3+2*w}")
    A(f"    s_lshl_b32 s{sT0}, s{sWAVE}, 8")
    A(f"    s_lshl_b32 s{sT1}, s{sIDX}, 3")
    A(f"    s_add_u32 s{sT0}, s{sT0}, s{sT1}")
    A(f"    s_add_u32 s{sT0}, s{sT0}, {ML_OFF}")
    A(f"    v_mov_b32 v41, s{sT0}")
    A(f"    v_add_u32 v40, {O_OFF}, v{vAPUB}")
    store_local([f"global_store_dwordx2 v40, v[2:3], {sp(sLOC)}"])
    A(f"    v_cmp_eq_u32 vcc, 0, v{vLANE}")
    A(f"    s_and_saveexec_b64 {sp(sEX)}, vcc")
    store_local([f"global_store_dwordx2 v41, {vr(M,2)}, {sp(sLOC)}"])
    A(f"    s_mov_b64 exec, {sp(sEX)}")

def o_combine_wo(L):
    A("    ; ---- o combine")
    o0, o1, ml0, ml1 = 2, 6, 10, 12
    A(f"    v_add_u32 v40, {O_OFF}, v{vAO}")
    loads = [f"global_load_dwordx4 {vr(o0,4)}, v40, {sp(sLOC)} sc1",
             f"global_load_dwordx4 {vr(o1,4)}, v40, {sp(sLOC)} offset:1024 sc1",
             f"global_load_dwordx2 {vr(ml0,2)}, v{vAML}, {sp(sLOC)} sc1",
             f"global_load_dwordx2 {vr(ml1,2)}, v{vAML}, {sp(sLOC)} offset:128 sc1"]
    poll(loads, list(range(2, 14)), 41, name="O")
    M = 14
    A(f"    v_max_f32 v{M}, v{ml0}, v{ml1}")
    xreduce([M], "v_max_f32", [40], bits=(4, 8, 16, 32))
    A(f"    v_sub_f32 v{ml0}, v{ml0}, v{M}")
    A(f"    v_sub_f32 v{ml1}, v{ml1}, v{M}")
    A(f"    v_mul_f32 v{ml0}, s{sC+1}, v{ml0}")
    A(f"    v_mul_f32 v{ml1}, s{sC+1}, v{ml1}")
    A(f"    v_exp_f32 v{ml0}, v{ml0}")
    A(f"    v_exp_f32 v{ml1}, v{ml1}")
    A("    s_nop 0")
    Lr = 15
    A(f"    v_mul_f32 v{Lr}, v{ml0}, v{ml0+1}")
    A(f"    v_fmac_f32 v{Lr}, v{ml1}, v{ml1+1}")
    for e in range(4):
        A(f"    v_mul_f32 v{o0+e}, v{ml0}, v{o0+e}")
        A(f"    v_fmac_f32 v{o0+e}, v{ml1}, v{o1+e}")
    xreduce([Lr, o0, o0 + 1, o0 + 2, o0 + 3], "v_add_f32", [40, 41, 42, 43, 44], bits=(4, 8, 16, 32))
    A(f"    v_rcp_f32 v{Lr}, v{Lr}")
    A("    s_nop 0")
    for e in range(4):
        A(f"    v_mul_f32 v{o0+e}, v{o0+e}, v{Lr}")
    bf16r_pair(o0, o0 + 1, 40)
    bf16r_pair(o0 + 2, o0 + 3, 40)
    A("    s_nop 0")
    for e in range(4):
        A(f"    v_readlane_b32 s{sO+e}, v{o0+e}, s{sWAVE}")
    if DEBUG_DUMP:
        nops(2)
        for e in range(4):
            A(f"    v_mov_b32 v{o1+e}, s{sO+e}")
        dump(4 + 8 * L, [o1, o1 + 1, o1 + 2, o1 + 3])
    A("    ; ---- wo")
    acc = list(range(16, 24))
    lo, hi = 24, 25
    for p in range(4):
        for c in range(4):
            unpack(lo, hi, vWO + 4 * p + c)
            op = "v_mul_f32" if p == 0 else "v_fmac_f32"
            A(f"    {op} v{acc[2*c]}, s{sO+p}, v{lo}")
            A(f"    {op} v{acc[2*c+1]}, s{sO+p}, v{hi}")
    A(f"    v_lshlrev_b32 v26, 5, v{vLANE}")
    A(f"    s_lshl_b32 s{sT0}, s{sWAVE}, 11")
    A(f"    v_add_u32 v26, s{sT0}, v26")
    A(f"    ds_write_b128 v26, {vr(acc[0],4)} offset:{LDS_CMB2}")
    A(f"    ds_write_b128 v26, {vr(acc[4],4)} offset:{LDS_CMB2+16}")
    A("    s_waitcnt lgkmcnt(0)")
    A("    s_barrier")
    cmb_read4(2, LDS_CMB2)
    A("    s_waitcnt lgkmcnt(0)")
    for w in range(1, 4):
        A(f"    v_add_f32 v2, v2, v{2+2*w}")
        A(f"    v_add_f32 v3, v3, v{3+2*w}")
    A(f"    v_add_u32 v40, {R_OFF}, v{vAPUB}")
    store_local([f"global_store_dwordx2 v40, v[2:3], {sp(sLOC)}"])

def x1_chain(L):
    Lskip = newlabel("w0")
    A(f"    s_cmp_eq_u32 s{sWAVE}, 0")
    A(f"    s_cbranch_scc0 {Lskip}")
    r0, r1 = 2, 6
    A(f"    v_add_u32 v40, {R_OFF}, v{vAO}")
    loads = [f"global_load_dwordx4 {vr(r0,4)}, v40, {sp(sLOC)} sc1",
             f"global_load_dwordx4 {vr(r1,4)}, v40, {sp(sLOC)} offset:1024 sc1"]
    poll(loads, list(range(2, 10)), 41, name="R")
    for e in range(4):
        A(f"    v_add_f32 v{r0+e}, v{r0+e}, v{r1+e}")
    xreduce([r0, r0 + 1, r0 + 2, r0 + 3], "v_add_f32", [40, 41, 42, 43], bits=(4, 8, 16, 32))
    A(f"    s_lshl_b32 s{sT0}, s{sG}, 11")
    A(f"    s_lshl_b32 s{sT1}, s{sIDX}, 6")
    A(f"    s_add_u32 s{sT0}, s{sT0}, s{sT1}")
    A(f"    s_add_u32 s{sT0}, s{sT0}, {P_OFF:#x}")
    A(f"    v_add_u32 v40, s{sT0}, v{vL16}")
    A(f"    v_cmp_gt_u32 vcc, 4, v{vLANE}")
    A(f"    s_and_saveexec_b64 {sp(sEX)}, vcc")
    A(f"    global_store_dwordx4 v40, {vr(r0,4)}, {sp(sGL)} sc1")
    A(f"    s_mov_b64 exec, {sp(sEX)}")
    loads = [f"global_load_dwordx2 v[2:3], v{vAP}, {sp(sGL)} sc1"]
    extra = None
    if L == 0:
        A(f"    v_and_b32 v24, 7, v{vLANE}")
        A(f"    v_lshlrev_b32 v24, 2, v24")
        loads.append(f"global_load_dword v25, v24, {sp(sDBG)} offset:64 sc1")
        def extra():
            A(f"    v_cmp_eq_u32 {sp(sCM)}, 0, v25")
            A(f"    s_or_b64 vcc, vcc, {sp(sCM)}")
    poll(loads, [2, 3], 40, extra, name="P")
    xreduce([2, 3], "v_add_f32", [40, 41], bits=(8, 16, 32))
    bf16r_pair(2, 3, 40)
    A(f"    v_add_f32 v{vXM}, v{vXM}, v2")
    A(f"    v_add_f32 v{vXM+1}, v{vXM+1}, v3")
    bf16r_pair(vXM, vXM + 1, 40)
    xl_publish(XL_OFF)
    A(f"{Lskip}:")

def xl_publish(off):
    A(f"    s_lshl_b32 s{sT0}, s{sIDX}, 6")
    A(f"    s_add_u32 s{sT0}, s{sT0}, {off}")
    A(f"    v_lshlrev_b32 v40, 3, v{vLANE}")
    A(f"    v_add_u32 v40, s{sT0}, v40")
    A(f"    v_cmp_gt_u32 vcc, 8, v{vLANE}")
    A(f"    s_and_saveexec_b64 {sp(sEX)}, vcc")
    store_local([f"global_store_dwordx2 v40, {vr(vXM,2)}, {sp(sLOC)}"])
    A(f"    s_mov_b64 exec, {sp(sEX)}")

def b_phase(L):
    A("    ; ---- mixer MLP")
    xa = list(range(2, 10))
    ha, hb = 10, 11
    xa_, xb_ = 12, 13
    A(f"    v_lshlrev_b32 v40, 5, v{vLANE}")
    A(f"    v_add_u32 v40, {XL_OFF}, v40")
    A(f"    s_lshl_b32 s{sT0}, s2, 3")
    A(f"    s_add_u32 s{sT0}, s{sT0}, {XL_OFF}")
    A(f"    v_mov_b32 v41, s{sT0}")
    loads = [f"global_load_dwordx4 v[2:5], v40, {sp(sLOC)} sc1",
             f"global_load_dwordx4 v[6:9], v40, {sp(sLOC)} offset:16 sc1",
             f"global_load_dwordx2 v[10:11], v41, {sp(sLOC)} sc1"]
    poll(loads, list(range(2, 12)), 42, name="XL")
    dump(5 + 8 * L, xa)
    A(f"    v_mov_b32 v{xa_}, v{ha}")
    A(f"    v_mov_b32 v{xb_}, v{hb}")
    vm, vrs = 14, 15
    ln_stats(xa, vm, vrs, [42, 43, 44, 45])
    ln_apply(xa + [ha, hb], vm, vrs, 42)
    ln_stats(xa, vm, vrs, [42, 43, 44, 45])
    ln_apply([ha, hb], vm, vrs, 42)
    dump(6 + 8 * L, [ha, hb])
    c1 = -2.0 * 0.7978845608028654 * 1.4426950408889634
    A(f"    s_mov_b32 s{sC+2}, {f32bits(c1):#x}")
    A(f"    s_mov_b32 s{sC+3}, {f32bits(c1*0.044715):#x}")
    acca, accb = 16, 17
    A(f"    v_mov_b32 v{acca}, 0")
    A(f"    v_mov_b32 v{accb}, 0")
    A(f"    v_mov_b32 v30, s{sC+2}")
    U = 200
    Z = 216
    for i in range(7):
        A(f"    v_mul_f32 v{U+2*i}, v{ha}, v{vW1+i}")
        A(f"    v_mul_f32 v{U+2*i+1}, v{hb}, v{vW1+i}")
    for i in range(7): bf16r_pair(U + 2 * i, U + 2 * i + 1, 24)
    for i in range(7):
        A(f"    v_add_f32 v{U+2*i}, v{U+2*i}, v{vB1+i}")
        A(f"    v_add_f32 v{U+2*i+1}, v{U+2*i+1}, v{vB1+i}")
    for i in range(7): bf16r_pair(U + 2 * i, U + 2 * i + 1, 24)
    for k in range(14): A(f"    v_mul_f32 v{Z+k}, v{U+k}, v{U+k}")
    for k in range(14): A(f"    v_fma_f32 v{Z+k}, v{Z+k}, s{sC+3}, v30")
    for k in range(14): A(f"    v_mul_f32 v{Z+k}, v{Z+k}, v{U+k}")
    for k in range(14): A(f"    v_exp_f32 v{Z+k}, v{Z+k}")
    for k in range(14): A(f"    v_add_f32 v{Z+k}, 1.0, v{Z+k}")
    for k in range(14): A(f"    v_rcp_f32 v{Z+k}, v{Z+k}")
    for k in range(14): A(f"    v_mul_f32 v{U+k}, v{U+k}, v{Z+k}")
    for i in range(7): bf16r_pair(U + 2 * i, U + 2 * i + 1, 24)
    for i in range(7):
        A(f"    v_fmac_f32 v{acca}, v{U+2*i}, v{vW2+i}")
        A(f"    v_fmac_f32 v{accb}, v{U+2*i+1}, v{vW2+i}")
    xreduce([acca, accb], "v_add_f32", [40, 41])
    return acca, accb, xa_, xb_

def x2_chain(acca):
    A(f"    s_lshl_b32 s{sT0}, s2, 6")
    A(f"    s_lshl_b32 s{sT1}, s{sWAVE}, 3")
    A(f"    s_add_u32 s{sT0}, s{sT0}, s{sT1}")
    A(f"    s_add_u32 s{sT0}, s{sT0}, {Y_OFF:#x}")
    A(f"    v_mov_b32 v40, s{sT0}")
    A(f"    v_cmp_eq_u32 vcc, 0, v{vLANE}")
    A(f"    s_and_saveexec_b64 {sp(sEX)}, vcc")
    A(f"    global_store_dwordx2 v40, {vr(acca,2)}, {sp(sGL)} sc1")
    A(f"    s_mov_b64 exec, {sp(sEX)}")
    Lskip = newlabel("w0")
    A(f"    s_cmp_eq_u32 s{sWAVE}, 0")
    A(f"    s_cbranch_scc0 {Lskip}")
    poll([f"global_load_dwordx2 v[2:3], v{vAY}, {sp(sGL)} sc1"], [2, 3], 40, name="Y")
    xreduce([2, 3], "v_add_f32", [40, 41], bits=(8, 16))
    bf16r_pair(2, 3, 40)
    A(f"    v_add_f32 v2, v2, v{vB2}")
    A(f"    v_add_f32 v3, v3, v{vB2}")
    bf16r_pair(2, 3, 40)
    A(f"    v_add_f32 v{vXM}, v{vXM}, v2")
    A(f"    v_add_f32 v{vXM+1}, v{vXM+1}, v3")
    bf16r_pair(vXM, vXM + 1, 40)
    xl_publish(XL2_OFF)
    A(f"{Lskip}:")

ts("start")
set_layer(0)
A(f"    s_waitcnt vmcnt({N_AFTER_WQ})")
ts("wq arrived")
xa = list(range(24, 32)); xr = list(range(32, 36))
for i in range(4): unpack(xa[2 * i], xa[2 * i + 1], vXA + i)
for i in range(2): unpack(xr[2 * i], xr[2 * i + 1], vXR + i)
unpack(vXM, vXM + 1, vXP)
q_phase(0, xa, xr, True)
A("    ; ---- V transpose")
A(f"    s_waitcnt vmcnt({N_AFTER_V + 1})")
ts("V arrived")
A(f"    s_lshl_b32 s{sT0}, s{sWAVE}, 13")
A(f"    v_add_u32 v40, s{sT0}, v{vL16}")
for i in range(8):
    A(f"    ds_write_b128 v40, {vr(vVS+4*i,4)} offset:{LDS_V + i*1024}")
A(f"    v_lshrrev_b32 v41, 4, v{vLANE}")
A(f"    v_and_b32 v42, 15, v{vLANE}")
A(f"    v_lshrrev_b32 v43, 2, v42")
A(f"    v_lshl_add_u32 v43, v41, 2, v43")
A(f"    v_lshlrev_b32 v43, 8, v43")
A(f"    v_and_b32 v42, 3, v42")
A(f"    v_lshl_add_u32 v43, v42, 3, v43")
A(f"    v_add_u32 v43, s{sT0}, v43")
A("    s_waitcnt lgkmcnt(0)")
for T in range(8):
    A(f"    ds_read_b64_tr_b16 {vr(vVT+4*T,2)}, v43 offset:{LDS_V + T*32}")
    A(f"    ds_read_b64_tr_b16 {vr(vVT+4*T+2,2)}, v43 offset:{LDS_V + T*32 + 4096}")
A("    s_waitcnt vmcnt(0)")
for i in range(7):
    A(f"    v_lshlrev_b32 v{vW1+i}, 16, v{vW1+i}")
    A(f"    v_lshlrev_b32 v{vB1+i}, 16, v{vB1+i}")
    A(f"    v_lshlrev_b32 v{vW2+i}, 16, v{vW2+i}")
A(f"    v_lshlrev_b32 v{vB2}, 16, v{vB2}")
A("    s_waitcnt lgkmcnt(0)")
ts("all loads+transpose")
q_gather()
ts("q gathered")
attention(0)
ts("attn")
o_combine_wo(0)
ts("o+wo")
x1_chain(0)
ts("x1 chain")
acca, accb, xa_, xb_ = b_phase(0)
ts("B")
x2_chain(acca)
ts("x2 chain")
A(f"    v_lshlrev_b32 v40, 5, v{vLANE}")
A(f"    v_add_u32 v40, {XL2_OFF}, v40")
A(f"    v_add_u32 v41, {XL2_OFF}, v{vAXR}")
poll([f"global_load_dwordx4 v[24:27], v40, {sp(sLOC)} sc1",
      f"global_load_dwordx4 v[28:31], v40, {sp(sLOC)} offset:16 sc1",
      f"global_load_dwordx4 v[32:35], v41, {sp(sLOC)} sc1"], list(range(24, 36)), 42, name="XL2")
dump(7, xa)
set_layer(1)
q_phase(1, xa, xr, False)
ts("q2 pub")
q_gather()
ts("q2 gathered")
attention(1)
ts("attn2")
o_combine_wo(1)
ts("o+wo 2")
x1_chain(1)
ts("x1 chain 2")
acca, accb, xa_, xb_ = b_phase(1)
ts("B2")
ts_flush()
A("    ; ---- final")
A(f"    s_lshl_b32 s{sT0}, s{sWAVE}, 3")
A(f"    v_mov_b32 v40, s{sT0}")
A(f"    ds_write_b64 v40, {vr(acca,2)} offset:{LDS_YS}")
A("    s_waitcnt lgkmcnt(0)")
A("    s_barrier")
A(f"    s_cmp_eq_u32 s{sWAVE}, 0")
A("    s_cbranch_scc0 L_end")
A(f"    v_mov_b32 v40, 0")
A(f"    ds_read_b128 {vr(2,4)}, v40 offset:{LDS_YS}")
A(f"    ds_read_b128 {vr(6,4)}, v40 offset:{LDS_YS+16}")
A("    s_waitcnt lgkmcnt(0)")
for w in range(1, 4):
    A(f"    v_add_f32 v2, v2, v{2+2*w}")
    A(f"    v_add_f32 v3, v3, v{3+2*w}")
bf16r_pair(2, 3, 40)
A(f"    v_add_f32 v2, v2, v{vB2}")
A(f"    v_add_f32 v3, v3, v{vB2}")
bf16r_pair(2, 3, 40)
A(f"    v_add_f32 v2, v{xa_}, v2")
A(f"    v_add_f32 v3, v{xb_}, v3")
A(f"    v_cvt_pk_bf16_f32 v4, v2, v3")
A(f"    s_lshl_b32 s{sT0}, s2, 2")
A(f"    v_mov_b32 v40, s{sT0}")
A(f"    v_cmp_eq_u32 vcc, 0, v{vLANE}")
A(f"    s_and_saveexec_b64 {sp(sEX)}, vcc")
A(f"    global_store_dword v40, v4, {sp(sOUT)}")
A("    s_waitcnt vmcnt(0)")
A("    s_branch L_end")

A("L_helper:")
for r in range(4, 8): A(f"    v_mov_b32 v{r}, -1")
A(f"    v_lshlrev_b32 v2, 4, v{vLANE}")
def clear_local(flag):
    for L in range(2):
        set_layer(L)
        A(f"    s_mul_i32 s{sT0}, s{sIDX}, {CLR_PER_CU}")
        A(f"    v_add_u32 v3, s{sT0}, v2")
        for i in range(CLR_PER_CU // 1024):
            if i and i % 4 == 0:
                A(f"    v_add_u32 v3, 4096, v3")
            A(f"    global_store_dwordx4 v3, v[4:7], {sp(sLOC)} offset:{(i%4)*1024}{flag}")
clear_local("")
A(f"    s_lshl_b32 s{sT0}, s{sG}, 11")
A(f"    s_lshl_b32 s{sT1}, s{sIDX}, 6")
A(f"    s_add_u32 s{sT0}, s{sT0}, s{sT1}")
A(f"    s_add_u32 s{sT0}, s{sT0}, {LAYER_BASE + P_OFF:#x}")
A(f"    v_add_u32 v8, s{sT0}, v2")
A(f"    v_add_u32 v9, {LAYER_STRIDE:#x}, v8")
A(f"    s_lshl_b32 s{sT0}, s2, 6")
A(f"    s_add_u32 s{sT0}, s{sT0}, {LAYER_BASE + Y_OFF:#x}")
A(f"    v_add_u32 v10, s{sT0}, v2")
A(f"    v_cmp_gt_u32 vcc, 4, v{vLANE}")
A(f"    s_and_saveexec_b64 {sp(sEX)}, vcc")
A(f"    global_store_dwordx4 v8, v[4:7], {sp(sWS)} sc1")
A(f"    global_store_dwordx4 v9, v[4:7], {sp(sWS)} sc1")
A(f"    global_store_dwordx4 v10, v[4:7], {sp(sWS)} sc1")
A(f"    s_mov_b64 exec, {sp(sEX)}")
A(f"    s_lshl_b32 s{sT0}, s{sG}, 3")
A(f"    v_mov_b32 v11, s{sT0}")
A(f"    s_cmp_eq_u32 s{sIDX}, 0")
A("    s_cbranch_scc0 L_h_nolead")
A(f"    s_memrealtime s[{sC}:{sC+1}]")
A("    s_waitcnt lgkmcnt(0)")
A(f"    s_or_b32 s{sC}, s{sC}, 1")
A(f"    v_mov_b32 v12, s{sC}")
A(f"    v_mov_b32 v13, s{sC+1}")
A(f"    v_cmp_eq_u32 vcc, 0, v{vLANE}")
A(f"    s_and_saveexec_b64 {sp(sEX)}, vcc")
A(f"    global_store_dwordx2 v11, v[12:13], {sp(sDBG)} sc1")
A(f"    s_mov_b64 exec, {sp(sEX)}")
A("L_h_nolead:")
A(f"    s_mov_b32 s{sTO}, 0x8000")
A("L_h_nonce:")
A(f"    global_load_dwordx2 v[12:13], v11, {sp(sDBG)} sc1")
A("    s_waitcnt vmcnt(0)")
A(f"    v_cmp_eq_u32 vcc, 0, v12")
A("    s_cbranch_vccz L_h_gotn")
A(f"    s_sub_u32 s{sTO}, s{sTO}, 1")
A("    s_cbranch_scc0 L_h_nonce")
A("L_h_gotn:")
A(f"    s_getreg_b32 s{sT2}, hwreg(HW_REG_XCC_ID)")
A(f"    s_and_b32 s{sT2}, s{sT2}, 0xffff")
A(f"    v_mov_b32 v14, s{sT2}")
A(f"    v_mov_b32 v15, 0")
A(f"    s_lshl_b32 s{sT0}, s{sCU}, 6")
A(f"    v_mov_b32 v16, s{sT0}")
A(f"    s_lshl_b32 s{sT1}, s{sG}, 11")
A(f"    v_and_b32 v17, 31, v{vLANE}")
A(f"    v_lshlrev_b32 v17, 6, v17")
A(f"    v_add_u32 v17, s{sT1}, v17")
def flag_round(off, lab):
    A(f"    v_add_u32 v18, {off}, v16")
    A(f"    v_add_u32 v19, {off}, v17")
    A(f"    v_cmp_eq_u32 vcc, 0, v{vLANE}")
    A(f"    s_and_saveexec_b64 {sp(sEX)}, vcc")
    A(f"    global_store_dwordx4 v18, v[12:15], {sp(sWS)} sc1")
    A(f"    s_mov_b64 exec, {sp(sEX)}")
    A(f"    s_mov_b32 s{sTO}, 0x8000")
    A(f"{lab}:")
    A(f"    global_load_dwordx4 v[20:23], v19, {sp(sWS)} sc1")
    A("    s_waitcnt vmcnt(0)")
    A(f"    v_cmp_ne_u32 vcc, v20, v12")
    A(f"    v_cmp_ne_u32 {sp(sCM)}, v21, v13")
    A(f"    s_or_b64 vcc, vcc, {sp(sCM)}")
    A(f"    s_cbranch_vccz {lab}_d")
    A(f"    s_sub_u32 s{sTO}, s{sTO}, 1")
    A(f"    s_cbranch_scc0 {lab}")
    A(f"{lab}_d:")
flag_round(FL1, "L_h_f1")
A(f"    v_cmp_ne_u32 vcc, v22, v14")
A(f"    s_mov_b32 s{sMODE}, 0")
if FORCE_SLOW:
    A("    s_branch L_h_slow")
A("    s_cbranch_vccz L_h_fast")
A("L_h_slow:")
A(f"    s_mov_b32 s{sMODE}, 1")
clear_local(" sc1")
A("    s_waitcnt vmcnt(0)")
flag_round(FL2, "L_h_f2")
A("L_h_fast:")
A(f"    v_mov_b32 v24, {LDS_MODE}")
A(f"    v_mov_b32 v25, s{sMODE}")
A(f"    ds_write_b32 v24, v25")
A("    s_waitcnt lgkmcnt(0)")
A("    s_barrier")
A(f"    s_cmp_eq_u32 s{sIDX}, 0")
A("    s_cbranch_scc0 L_end")
A(f"    s_lshl_b32 s{sT0}, s{sG}, 2")
A(f"    v_mov_b32 v24, s{sT0}")
A(f"    v_mov_b32 v25, 1")
A(f"    v_cmp_eq_u32 vcc, 0, v{vLANE}")
A(f"    s_and_saveexec_b64 {sp(sEX)}, vcc")
A(f"    global_store_dword v24, v25, {sp(sDBG)} offset:64 sc1")
A("    s_waitcnt vmcnt(0)")
A("L_end:")
A("    s_endpgm")
A('.section .rodata,"a"')
A(".p2align 6")
A(f".amdhsa_kernel {KNAME}")
A("  .amdhsa_next_free_vgpr 256")
A("  .amdhsa_next_free_sgpr 80")
A("  .amdhsa_accum_offset 256")
A("  .amdhsa_group_segment_fixed_size 0")
A("  .amdhsa_kernarg_size 104")
A("  .amdhsa_user_sgpr_count 2")
A("  .amdhsa_user_sgpr_kernarg_segment_ptr 1")
A("  .amdhsa_system_sgpr_workgroup_id_x 1")
A(".end_amdhsa_kernel")

dst = [a for a in sys.argv[1:] if not a.startswith("--")]
path = dst[0] if dst else "interleave_layers__sliding_block_cached__mixer_token_mlp__decode.s"
open(path, "w").write("\n".join(out) + "\n")
print("wrote", path, len(out), "lines")
```

```python
import sys, struct

KNAME = "interleave_layers__sliding_block_cached__mixer_token_mlp__decode_kernel"
DEBUG_DUMP = "--dump" in sys.argv
FORCE_SLOW = "--slow" in sys.argv
TS = "--ts" in sys.argv

out = []
def A(s=""):
    out.append(s)
def f32bits(x):
    return struct.unpack("<I", struct.pack("<f", x))[0]
_lbl = [0]; _pc = [0]; _ts = [0]
def newlabel(p="L"):
    _lbl[0] += 1
    return f"{p}_{_lbl[0]}"

FL1 = 0x0000
FL2 = 0x4000
LAYER_BASE = 0x100000
LAYER_STRIDE = 0x400000
GRP_STRIDE = 0x40000
CS = 2048 + 128
Q_OFF = 0x0000
ML_OFF = 0x2000
XL_OFF = 0x2400
XL2_OFF = 0x2C00
O_OFF = 0x3400
R_OFF = O_OFF + 32 * CS
GRP_USED = R_OFF + 32 * CS
CLR_PER_CU = (GRP_USED + 32 * 1024 - 1) // (32 * 1024) * 1024
assert CLR_PER_CU * 32 <= GRP_STRIDE
P_OFF = 0x200000
Y_OFF = 0x210000
DUMP_BASE = 0x4000000

LDS_V = 0x0000
LDS_CMB = 0x0000
LDS_MLW = 0x2000
LDS_CMB2 = 0x4000
LDS_QS = 0x8000
LDS_MODE = 0x8400
LDS_YS = 0x8410
LDS_BYTES = 0x8800

sX, sK, sV, sWQ, sWO, sBX, sW1, sB1, sW2, sB2, sOUT, sDBG, sWS = [4 + 2 * i for i in range(13)]
sG, sIDX, sWAVE, sCU, sMODE, sTO = 30, 31, 32, 33, 34, 35
sLOC = 36; sMY = 38; sGL = 40
sT0, sT1, sT2, sT3 = 42, 43, 44, 45
sO = 46
sEX = 50
sC = 52
sCM = 64
def sp(r): return f"s[{r}:{r+1}]"

vTID, vLANE = 0, 1
vK = 64; vVT = 96; vWQ = 128; vWO = 144
vW1, vB1, vW2 = 160, 167, 174
vB2 = 181
vXM = 182
vL16 = 184
vT8 = 185
vAO = 186
vAML = 187
vAP = 188
vAY = 189
vAXR = 190
vAPUB = 191
def vr(r, n): return f"v[{r}:{r+n-1}]"

def nops(n):
    while n > 0:
        k = min(n, 16)
        A(f"    s_nop {k-1}")
        n -= k

DPP = {1: "quad_perm:[1,0,3,2]", 2: "quad_perm:[2,3,0,1]", 4: "row_ror:4", 8: "row_ror:8"}
def xreduce(regs, op, tmp, bits=(1, 2, 4, 8, 16, 32)):
    n = len(regs)
    for b in bits:
        if b <= 8:
            if n < 3: nops(3 - n)
            for r in regs:
                A(f"    {op}_dpp v{r}, v{r}, v{r} {DPP[b]} row_mask:0xf bank_mask:0xf")
        else:
            sw = "v_permlane16_swap_b32" if b == 16 else "v_permlane32_swap_b32"
            for r, t in zip(regs, tmp):
                A(f"    v_mov_b32 v{t}, v{r}")
            nops(2 if n < 2 else 1)
            for r, t in zip(regs, tmp):
                A(f"    {sw} v{t}, v{r}")
            nops(1)
            for r, t in zip(regs, tmp):
                A(f"    {op} v{r}, v{r}, v{t}")

def bf16r_pair(a, b, t):
    A(f"    v_cvt_pk_bf16_f32 v{t}, v{a}, v{b}")
    A(f"    v_lshlrev_b32 v{a}, 16, v{t}")
    A(f"    v_and_b32 v{b}, 0xffff0000, v{t}")
def bf16r(a, t):
    A(f"    v_cvt_pk_bf16_f32 v{t}, v{a}, v{a}")
    A(f"    v_lshlrev_b32 v{a}, 16, v{t}")
def unpack(dst_lo, dst_hi, src):
    A(f"    v_lshlrev_b32 v{dst_lo}, 16, v{src}")
    A(f"    v_and_b32 v{dst_hi}, 0xffff0000, v{src}")

def max_chain(dst, regs):
    regs = list(regs)
    if len(regs) == 1:
        A(f"    v_mov_b32 v{dst}, v{regs[0]}"); return
    if len(regs) == 2:
        A(f"    v_max_u32 v{dst}, v{regs[0]}, v{regs[1]}"); return
    A(f"    v_max3_u32 v{dst}, v{regs[0]}, v{regs[1]}, v{regs[2]}")
    rest = regs[3:]
    while len(rest) >= 2:
        A(f"    v_max3_u32 v{dst}, v{dst}, v{rest[0]}, v{rest[1]}")
        rest = rest[2:]
    if rest:
        A(f"    v_max_u32 v{dst}, v{dst}, v{rest[0]}")

def ts(name=""):
    if not TS: return
    k = _ts[0]; _ts[0] += 1
    A(f"    s_memrealtime s[70:71]")
    A(f"    s_waitcnt lgkmcnt(0)")
    A(f"    v_writelane_b32 v254, s70, {k}")
def ts_flush():
    if not TS: return
    A(f"    s_lshl_b32 s{sT0}, s2, 11")
    A(f"    s_lshl_b32 s{sT1}, s{sWAVE}, 8")
    A(f"    s_add_u32 s{sT0}, s{sT0}, s{sT1}")
    A(f"    s_add_u32 s{sT0}, s{sT0}, {DUMP_BASE + 30 * 0x400000}")
    A(f"    v_lshlrev_b32 v255, 2, v{vLANE}")
    A(f"    v_add_u32 v255, s{sT0}, v255")
    A(f"    global_store_dword v255, v254, {sp(sWS)}")
    A(f"    global_store_dword v255, v253, {sp(sWS)} offset:1024")
    A("    s_waitcnt vmcnt(0)")
def diag_flush():
    if "--diag" not in sys.argv: return
    L = newlabel("dg")
    A(f"    s_cmp_eq_u32 s2, 37")
    A(f"    s_cbranch_scc0 {L}")
    A(f"    s_cmp_eq_u32 s{sWAVE}, 0")
    A(f"    s_cbranch_scc0 {L}")
    A(f"    v_readlane_b32 s72, v254, 0")
    A("    s_nop 3")
    A(f"    v_subrev_u32 v255, s72, v254")
    A(f"    v_mul_u32_u24 v252, 86, v{vLANE}")
    A(f"    v_lshrrev_b32 v252, 8, v252            ; lane/3")
    A(f"    v_mul_u32_u24 v251, 3, v252")
    A(f"    v_cmp_eq_u32 vcc, v251, v{vLANE}")
    A(f"    v_cmp_gt_u32 {sp(sCM)}, 16, v252")
    A(f"    s_and_b64 vcc, vcc, {sp(sCM)}")
    A(f"    v_lshlrev_b32 v252, 2, v252")
    A(f"    s_and_saveexec_b64 {sp(sEX)}, vcc")
    A(f"    global_store_dword v252, v255, {sp(sDBG)}")
    A(f"    s_mov_b64 exec, {sp(sEX)}")
    A("    s_waitcnt vmcnt(0)")
    A(f"{L}:")

def dump(slot, regs):
    if not DEBUG_DUMP: return
    A(f"    s_lshl_b32 s{sT0}, s2, 14")
    A(f"    s_add_u32 s{sT0}, s{sT0}, {DUMP_BASE + slot * 0x400000}")
    A(f"    v_lshlrev_b32 v255, 6, v{vTID}")
    A(f"    v_add_u32 v255, s{sT0}, v255")
    for i, r in enumerate(regs):
        A(f"    global_store_dword v255, v{r}, {sp(sWS)} offset:{4*i}")
    A("    s_waitcnt vmcnt(0)")

def poll(loads, check_regs, vtmp, extra_check=None, name=""):
    L = newlabel("poll"); D = newlabel("polld")
    A(f"    s_mov_b32 s{sTO}, 0x8000")
    ts("  poll begin " + name)
    A(f"{L}:")
    for l in loads: A("    " + l)
    A("    s_waitcnt vmcnt(0)")
    max_chain(vtmp, check_regs)
    A(f"    v_cmp_eq_u32 vcc, -1, v{vtmp}")
    if extra_check: extra_check()
    A(f"    s_cbranch_vccz {D}")
    A(f"    s_sub_u32 s{sTO}, s{sTO}, 1")
    A(f"    s_cbranch_scc0 {L}")
    A(f"{D}:")
    ts("  poll end " + name)
    if TS:
        k = _pc[0]; _pc[0] += 1
        A(f"    s_sub_u32 s72, 0x8000, s{sTO}")
        A(f"    v_writelane_b32 v253, s72, {k}")

def store_local(stores):
    S = newlabel("sl"); D = newlabel("sld")
    A(f"    s_cmp_eq_u32 s{sMODE}, 0")
    A(f"    s_cbranch_scc0 {S}")
    for s in stores: A("    " + s)
    A(f"    s_branch {D}")
    A(f"{S}:")
    for s in stores: A("    " + s + " sc1")
    A(f"{D}:")

def set_layer(L):
    base = LAYER_BASE + L * LAYER_STRIDE
    A(f"    ; ---- layer {L} bases")
    A(f"    s_add_u32 s{sGL}, s{sWS}, {base}")
    A(f"    s_addc_u32 s{sGL+1}, s{sWS+1}, 0")
    A(f"    s_lshl_b32 s{sT0}, s{sG}, 18            ; g*GRP_STRIDE")
    A(f"    s_add_u32 s{sLOC}, s{sGL}, s{sT0}")
    A(f"    s_addc_u32 s{sLOC+1}, s{sGL+1}, 0")

def ln_stats(xregs, vmean, vrs, t):
    s1, s2, t0, t1 = t[0], t[1], t[2], t[3]
    A(f"    v_add_f32 v{s1}, v{xregs[0]}, v{xregs[1]}")
    A(f"    v_mul_f32 v{s2}, v{xregs[0]}, v{xregs[0]}")
    A(f"    v_fmac_f32 v{s2}, v{xregs[1]}, v{xregs[1]}")
    for r in xregs[2:]:
        A(f"    v_add_f32 v{s1}, v{s1}, v{r}")
        A(f"    v_fmac_f32 v{s2}, v{r}, v{r}")
    xreduce([s1, s2], "v_add_f32", [t0, t1])
    A(f"    v_mul_f32 v{s1}, {f32bits(1/512):#x}, v{s1}")
    A(f"    v_mul_f32 v{s2}, {f32bits(1/512):#x}, v{s2}")
    A(f"    v_fma_f32 v{s2}, -v{s1}, v{s1}, v{s2}")
    A(f"    v_max_f32 v{s2}, 0, v{s2}")
    bf16r_pair(s1, s2, t0)
    A(f"    v_add_f32 v{s2}, {f32bits(1e-5):#x}, v{s2}")
    bf16r(s2, t0)
    A(f"    v_sqrt_f32 v{s2}, v{s2}")
    A("    s_nop 0")
    bf16r(s2, t0)
    A(f"    v_rcp_f32 v{vrs}, v{s2}")
    A(f"    v_mov_b32 v{vmean}, v{s1}")
    A("    s_nop 0")

def ln_apply(regs, vmean, vrs, t):
    for a, b in zip(regs[0::2], regs[1::2]):
        A(f"    v_sub_f32 v{a}, v{a}, v{vmean}")
        A(f"    v_sub_f32 v{b}, v{b}, v{vmean}")
        bf16r_pair(a, b, t)
        A(f"    v_mul_f32 v{a}, v{a}, v{vrs}")
        A(f"    v_mul_f32 v{b}, v{b}, v{vrs}")
        bf16r_pair(a, b, t)

hdr = open("interleave_layers__sliding_block_cached__mixer_token_mlp__decode.s.ref").read().split("\n")
for line in hdr:
    if line.startswith("; @launch"):
        A(f"; @launch grid=(256,1,1) block=(320,1,1) lds={LDS_BYTES}")
        break
    A(line)
A('.amdgcn_target "amdgcn-amd-amdhsa--gfx950"')
A(".text")
A(f".globl {KNAME}")
A(".p2align 8")
A(f".type {KNAME},@function")
A(f"{KNAME}:")
A("    s_cmp_ge_u32 s2, 256")
A("    s_cbranch_scc1 L_end")
A("    s_load_dwordx16 s[4:19], s[0:1], 0")
A("    s_load_dwordx8 s[20:27], s[0:1], 64")
A("    s_load_dwordx2 s[28:29], s[0:1], 96")
A(f"    s_and_b32 s{sG}, s2, 7")
A(f"    s_lshr_b32 s{sIDX}, s2, 3")
A(f"    s_lshl_b32 s{sCU}, s{sG}, 5")
A(f"    s_add_u32 s{sCU}, s{sCU}, s{sIDX}")
A(f"    v_and_b32 v{vLANE}, 63, v0")
A(f"    v_lshrrev_b32 v2, 6, v0")
A("    s_nop 0")
A(f"    v_readfirstlane_b32 s{sWAVE}, v2")
A("    s_waitcnt lgkmcnt(0)")
A(f"    s_cmp_eq_u32 s{sWAVE}, 4")
A("    s_cbranch_scc1 L_helper")
if TS:
    A("    v_mov_b32 v254, 0")
    A("    v_mov_b32 v253, 0")
ts("entry")

vXA = 2; vXR = 6; vXP = 8
A("    ; ---- prologue loads")
A(f"    v_lshlrev_b32 v{vL16}, 4, v{vLANE}")
A(f"    global_load_dwordx4 {vr(vXA,4)}, v{vL16}, {sp(sX)}")
A(f"    s_lshr_b32 s{sT0}, s{sIDX}, 3            ; kb")
A(f"    s_lshl_b32 s{sT1}, s{sT0}, 8")
A(f"    v_lshrrev_b32 v11, 3, v{vTID}")
A(f"    v_lshlrev_b32 v12, 3, v11")
A(f"    v_add_u32 v12, s{sT1}, v12")
A(f"    global_load_dwordx2 {vr(vXR,2)}, v12, {sp(sX)}")
A(f"    v_lshlrev_b32 v{vAXR}, 1, v12")
A(f"    v_and_b32 v13, 7, v{vLANE}")
A(f"    v_lshlrev_b32 v13, 2, v13")
A(f"    s_lshl_b32 s{sT1}, s{sIDX}, 5")
A(f"    v_add_u32 v13, s{sT1}, v13")
A(f"    global_load_dword v{vXP}, v13, {sp(sX)}")
A(f"    s_lshl_b32 s{sT1}, s{sT0}, 20")
A(f"    s_lshl_b32 s{sT2}, s{sG}, 10")
A(f"    s_add_u32 s{sT1}, s{sT1}, s{sT2}")
A(f"    s_and_b32 s{sT2}, s{sIDX}, 7")
A(f"    s_lshl_b32 s{sT2}, s{sT2}, 7")
A(f"    s_add_u32 s{sT1}, s{sT1}, s{sT2}")
A(f"    v_lshlrev_b32 v14, 15, v11")
A(f"    v_and_b32 v15, 7, v{vTID}")
A(f"    v_lshlrev_b32 v15, 4, v15")
A(f"    v_add3_u32 v14, v14, v15, s{sT1}")
for p in range(4):
    if p: A(f"    v_add_u32 v14, 8192, v14")
    A(f"    global_load_dwordx4 {vr(vWQ+4*p,4)}, v14, {sp(sWQ)} nt")
A(f"    s_lshl_b32 s{sT1}, s{sG}, 24")
A(f"    s_add_u32 s{sT1}, s{sT1}, {(65536-4096)*256}")
A(f"    s_lshl_b32 s{sT2}, s{sIDX}, 15")
A(f"    s_add_u32 s{sT1}, s{sT1}, s{sT2}")
A(f"    s_lshl_b32 s{sT2}, s{sWAVE}, 13")
A(f"    s_add_u32 s{sT1}, s{sT1}, s{sT2}")
A(f"    v_and_b32 v16, 15, v{vLANE}")
A(f"    v_lshlrev_b32 v16, 8, v16")
A(f"    v_lshrrev_b32 v17, 4, v{vLANE}")
A(f"    v_lshlrev_b32 v17, 4, v17")
A(f"    v_add3_u32 v16, v16, v17, s{sT1}")
A(f"    v_add_u32 v17, 4096, v16")
for T in range(2):
    for j in range(4):
        A(f"    global_load_dwordx4 {vr(vK+16*T+4*j,4)}, v{16+T}, {sp(sK)} offset:{j*64} nt")
vVS = 200
A(f"    v_add_u32 v18, s{sT1}, v{vL16}")
A(f"    v_add_u32 v19, 4096, v18")
for i in range(8):
    A(f"    global_load_dwordx4 {vr(vVS+4*i,4)}, v{18+i//4}, {sp(sV)} offset:{(i%4)*1024} nt")
A(f"    s_lshl_b32 s{sT1}, s{sG}, 19")
A(f"    s_lshl_b32 s{sT2}, s{sIDX}, 14")
A(f"    s_add_u32 s{sT1}, s{sT1}, s{sT2}")
A(f"    s_lshl_b32 s{sT2}, s{sWAVE}, 12")
A(f"    s_add_u32 s{sT1}, s{sT1}, s{sT2}")
A(f"    v_add_u32 v20, s{sT1}, v{vL16}")
for p in range(4):
    A(f"    global_load_dwordx4 {vr(vWO+4*p,4)}, v20, {sp(sWO)} offset:{p*1024} nt")
A(f"    v_lshlrev_b32 v21, 1, v{vTID}")
for i in range(7):
    A(f"    global_load_ushort v{vW1+i}, v21, {sp(sW1)} offset:{512*i}")
    A(f"    global_load_ushort v{vB1+i}, v21, {sp(sB1)} offset:{512*i}")
    A(f"    global_load_ushort v{vW2+i}, v21, {sp(sW2)} offset:{512*i}")
A(f"    v_mov_b32 v22, 0")
A(f"    global_load_ushort v{vB2}, v22, {sp(sB2)}")
N_AFTER_WQ = 8 + 8 + 4 + 21 + 1
N_AFTER_V = 4 + 21 + 1

A("    ; ---- persistent offsets")
A(f"    v_lshlrev_b32 v{vT8}, 3, v{vTID}")
A(f"    s_mul_i32 s{sT0}, s{sIDX}, {CS}")
A(f"    v_add_u32 v{vAO}, s{sT0}, v{vL16}")
A(f"    s_lshr_b32 s{sT0}, s{sIDX}, 3            ; head")
A(f"    s_lshl_b32 s{sT0}, s{sT0}, 8")
A(f"    s_add_u32 s{sT0}, s{sT0}, {ML_OFF}")
A(f"    v_lshrrev_b32 v23, 2, v{vLANE}")
A(f"    v_lshlrev_b32 v23, 3, v23")
A(f"    v_add_u32 v{vAML}, s{sT0}, v23")
A(f"    v_lshrrev_b32 v23, 3, v{vLANE}")
A(f"    v_lshlrev_b32 v24, 11, v23")
A(f"    v_and_b32 v25, 7, v{vLANE}")
A(f"    v_lshlrev_b32 v26, 3, v25")
A(f"    s_lshl_b32 s{sT0}, s{sIDX}, 6")
A(f"    s_add_u32 s{sT0}, s{sT0}, {P_OFF:#x}")
A(f"    v_add3_u32 v{vAP}, v24, v26, s{sT0}")
A(f"    v_and_b32 v23, 3, v23")
A(f"    v_lshlrev_b32 v23, 3, v23")
A(f"    v_lshlrev_b32 v26, 6, v25")
A(f"    s_lshl_b32 s{sT0}, s{sIDX}, 9")
A(f"    s_add_u32 s{sT0}, s{sT0}, {Y_OFF:#x}")
A(f"    v_add3_u32 v{vAY}, v23, v26, s{sT0}")
A(f"    v_lshrrev_b32 v23, 3, v{vTID}")
A(f"    s_mov_b32 s{sT0}, {CS}")
A(f"    v_mul_lo_u32 v23, v23, s{sT0}")
A(f"    v_and_b32 v24, 7, v{vTID}")
A(f"    v_lshlrev_b32 v24, 3, v24")
A(f"    s_lshl_b32 s{sT0}, s{sIDX}, 6")
A(f"    v_add3_u32 v{vAPUB}, v23, v24, s{sT0}")

def cmb_read4(dst, off):
    for w in range(4):
        A(f"    ds_read_b64 {vr(dst+2*w,2)}, v{vT8} offset:{off + w*2048}")

def q_phase(L, xa, xr, first):
    vm, vrs = 40, 41
    ln_stats(xa, vm, vrs, [42, 43, 44, 45])
    ln_apply(xr, vm, vrs, 42)
    acc = list(range(46, 54))
    lo, hi = 54, 55
    for p in range(4):
        for c in range(4):
            unpack(lo, hi, vWQ + 4 * p + c)
            op = "v_mul_f32" if p == 0 else "v_fmac_f32"
            A(f"    {op} v{acc[2*c]}, v{xr[p]}, v{lo}")
            A(f"    {op} v{acc[2*c+1]}, v{xr[p]}, v{hi}")
    nops(2)
    for c in range(4):
        A(f"    v_permlane32_swap_b32 v{acc[c]}, v{acc[c+4]}")
    nops(1)
    for c in range(4):
        A(f"    v_add_f32 v{acc[c]}, v{acc[c]}, v{acc[c+4]}")
    nops(2)
    for c in range(2):
        A(f"    v_permlane16_swap_b32 v{acc[c]}, v{acc[c+2]}")
    nops(1)
    for c in range(2):
        A(f"    v_add_f32 v{acc[c]}, v{acc[c]}, v{acc[c+2]}")
    nops(2)
    for c in range(2):
        A(f"    v_add_f32_dpp v{acc[c]}, v{acc[c]}, v{acc[c]} row_ror:8 row_mask:0xf bank_mask:0xf")
    A(f"    v_and_b32 v56, 7, v{vLANE}")
    A(f"    v_lshlrev_b32 v56, 5, v56")
    A(f"    v_lshrrev_b32 v57, 4, v{vLANE}")
    A(f"    v_lshlrev_b32 v57, 3, v57")
    A(f"    s_lshl_b32 s{sT0}, s{sWAVE}, 8")
    A(f"    v_add3_u32 v56, v56, v57, s{sT0}")
    A(f"    ds_write_b64 v56, {vr(acc[0],2)} offset:{LDS_QS}")
    A("    s_waitcnt lgkmcnt(0)")
    ts("q partial")
    A("    s_barrier")
    if first:
        ts("B0")
        A(f"    v_mov_b32 v58, {LDS_MODE}")
        A(f"    ds_read_b32 v58, v58")
    A(f"    v_lshlrev_b32 v56, 3, v{vLANE}")
    for w in range(4):
        A(f"    ds_read_b64 {vr(46+2*w,2)}, v56 offset:{LDS_QS + w*256}")
    A("    s_waitcnt lgkmcnt(0)")
    if first:
        A(f"    v_readfirstlane_b32 s{sMODE}, v58")
    for w in range(1, 4):
        A(f"    v_add_f32 v46, v46, v{46+2*w}")
        A(f"    v_add_f32 v47, v47, v{47+2*w}")
    A(f"    s_lshr_b32 s{sT0}, s{sIDX}, 3")
    A(f"    s_lshl_b32 s{sT0}, s{sT0}, 11           ; kb*2048")
    A(f"    s_and_b32 s{sT1}, s{sIDX}, 7")
    A(f"    s_lshl_b32 s{sT1}, s{sT1}, 8            ; cb*256")
    A(f"    s_add_u32 s{sT0}, s{sT0}, s{sT1}")
    A(f"    v_add_u32 v56, s{sT0}, v56")
    A(f"    v_cmp_gt_u32 vcc, 32, v{vTID}")
    A(f"    s_and_saveexec_b64 {sp(sEX)}, vcc")
    Lskip = newlabel("qsk")
    A(f"    s_cbranch_execz {Lskip}")
    store_local([f"global_store_dwordx2 v56, v[46:47], {sp(sLOC)}"])
    A(f"{Lskip}:")
    A(f"    s_mov_b64 exec, {sp(sEX)}")

def q_gather():
    base = 2
    loads = []; regs = []
    A(f"    v_add_u32 v60, 4096, v{vT8}")
    for kb in range(4):
        r = base + 2 * kb
        loads.append(f"global_load_dwordx2 {vr(r,2)}, v{vT8 if kb < 2 else 60}, {sp(sLOC)} offset:{(kb%2)*2048} sc1")
        regs += [r, r + 1]
    poll(loads, regs, 40, name="Q")
    for i in range(1, 4):
        A(f"    v_add_f32 v{base}, v{base}, v{base+2*i}")
        A(f"    v_add_f32 v{base+1}, v{base+1}, v{base+2*i+1}")
    A(f"    v_cvt_pk_bf16_f32 v40, v{base}, v{base+1}")
    A(f"    v_lshlrev_b32 v41, 2, v{vTID}")
    A("    s_barrier")
    A(f"    ds_write_b32 v41, v40 offset:{LDS_QS}")
    A("    s_waitcnt lgkmcnt(0)")
    A("    s_barrier")

def attention(L):
    vQ = 2
    A("    ; ---- attention")
    A(f"    v_and_b32 v40, 3, v{vLANE}")
    A(f"    v_lshlrev_b32 v40, 8, v40")
    A(f"    v_lshrrev_b32 v41, 4, v{vLANE}")
    A(f"    v_lshl_add_u32 v40, v41, 4, v40")
    for j in range(4):
        A(f"    ds_read_b128 {vr(vQ+4*j,4)}, v40 offset:{LDS_QS + j*64}")
    S = 24
    for r in range(8):
        A(f"    v_mov_b32 v{S+r}, 0")
    O = 200
    for r in range(32):
        A(f"    v_mov_b32 v{O+r}, 0")
    A(f"    s_mov_b32 s{sC}, {f32bits(128 ** -0.5):#x}")
    A(f"    s_mov_b32 s{sC+1}, {f32bits(1.4426950408889634):#x}")
    A("    s_waitcnt lgkmcnt(0)")
    nops(1)
    for j in range(4):
        for T in range(2):
            A(f"    v_mfma_f32_16x16x32_bf16 {vr(S+4*T,4)}, {vr(vK+16*T+4*j,4)}, {vr(vQ+4*j,4)}, {vr(S+4*T,4)}")
    A(f"    v_and_b32 v40, 15, v{vLANE}            ; col")
    A(f"    v_lshlrev_b32 v42, 9, v40              ; head*512")
    A(f"    v_lshl_add_u32 v42, v41, 4, v42        ; + slab*16")
    A(f"    s_lshl_b32 s{sT0}, s{sWAVE}, 11")
    A(f"    v_add_u32 v42, s{sT0}, v42")
    A(f"    s_lshl_b32 s{sT0}, s{sWAVE}, 3")
    A(f"    v_lshlrev_b32 v43, 5, v{vLANE}         ; head*32")
    A(f"    v_add_u32 v43, s{sT0}, v43")
    nops(3)
    dump(3 + 8 * L, list(range(S, S + 8)))
    for r in range(0, 8, 2):
        bf16r_pair(S + r, S + r + 1, 44)
        A(f"    v_mul_f32 v{S+r}, s{sC}, v{S+r}")
        A(f"    v_mul_f32 v{S+r+1}, s{sC}, v{S+r+1}")
        bf16r_pair(S + r, S + r + 1, 44)
    vm, vl = 34, 35
    A(f"    v_max3_f32 v{vm}, v{S}, v{S+1}, v{S+2}")
    A(f"    v_max3_f32 v{vm}, v{vm}, v{S+3}, v{S+4}")
    A(f"    v_max3_f32 v{vm}, v{vm}, v{S+5}, v{S+6}")
    A(f"    v_max_f32 v{vm}, v{vm}, v{S+7}")
    xreduce([vm], "v_max_f32", [44], bits=(16, 32))
    A(f"    v_mul_f32 v45, s{sC+1}, v{vm}")
    for r in range(8):
        A(f"    v_fma_f32 v{S+r}, v{S+r}, s{sC+1}, -v45")
    for r in range(8):
        A(f"    v_exp_f32 v{S+r}, v{S+r}")
    A("    s_nop 0")
    P = 36
    for i in range(4):
        A(f"    v_cvt_pk_bf16_f32 v{P+i}, v{S+2*i}, v{S+2*i+1}")
    A(f"    v_add_f32 v{vl}, v{S}, v{S+1}")
    A(f"    v_add_f32 v{vl}, v{vl}, v{S+2}")
    for T in range(8):
        A(f"    v_mfma_f32_16x16x32_bf16 {vr(O+4*T,4)}, {vr(vVT+4*T,4)}, {vr(P,4)}, {vr(O+4*T,4)}")
    for r in range(3, 8):
        A(f"    v_add_f32 v{vl}, v{vl}, v{S+r}")
    xreduce([vl], "v_add_f32", [44], bits=(16, 32))
    nops(4)
    A(f"    v_cmp_gt_u32 vcc, 4, v40")
    A(f"    s_and_saveexec_b64 {sp(sEX)}, vcc")
    for T in range(8):
        A(f"    ds_write_b128 v42, {vr(O+4*T,4)} offset:{LDS_CMB + T*64}")
    A(f"    v_cmp_gt_u32 vcc, 4, v{vLANE}")
    A(f"    s_and_b64 exec, exec, vcc")
    A(f"    ds_write_b64 v43, {vr(vm,2)} offset:{LDS_MLW}")
    A(f"    s_mov_b64 exec, {sp(sEX)}")
    A("    s_waitcnt lgkmcnt(0)")
    A("    s_barrier")
    cmb_read4(2, LDS_CMB)
    A(f"    s_lshl_b32 s{sT0}, s{sWAVE}, 5")
    A(f"    v_mov_b32 v40, s{sT0}")
    A(f"    ds_read_b128 {vr(12,4)}, v40 offset:{LDS_MLW}")
    A(f"    ds_read_b128 {vr(16,4)}, v40 offset:{LDS_MLW+16}")
    A("    s_waitcnt lgkmcnt(0)")
    M, Lr = 20, 21
    A(f"    v_max3_f32 v{M}, v12, v14, v16")
    A(f"    v_max_f32 v{M}, v{M}, v18")
    for w in range(4):
        A(f"    v_sub_f32 v{12+2*w}, v{12+2*w}, v{M}")
    for w in range(4):
        A(f"    v_mul_f32 v{12+2*w}, s{sC+1}, v{12+2*w}")
    for w in range(4):
        A(f"    v_exp_f32 v{12+2*w}, v{12+2*w}")
    A("    s_nop 0")
    A(f"    v_mul_f32 v{Lr}, v12, v13")
    A(f"    v_mul_f32 v2, v12, v2")
    A(f"    v_mul_f32 v3, v12, v3")
    for w in range(1, 4):
        A(f"    v_fmac_f32 v{Lr}, v{12+2*w}, v{13+2*w}")
        A(f"    v_fmac_f32 v2, v{12+2*w}, v{2+2*w}")
        A(f"    v_fmac_f32 v3, v{12+2*w}, v{3+2*w}")
    A(f"    s_lshl_b32 s{sT0}, s{sWAVE}, 8")
    A(f"    s_lshl_b32 s{sT1}, s{sIDX}, 3")
    A(f"    s_add_u32 s{sT0}, s{sT0}, s{sT1}")
    A(f"    s_add_u32 s{sT0}, s{sT0}, {ML_OFF}")
    A(f"    v_mov_b32 v41, s{sT0}")
    A(f"    v_add_u32 v40, {O_OFF}, v{vAPUB}")
    store_local([f"global_store_dwordx2 v40, v[2:3], {sp(sLOC)}"])
    A(f"    v_cmp_eq_u32 vcc, 0, v{vLANE}")
    A(f"    s_and_saveexec_b64 {sp(sEX)}, vcc")
    store_local([f"global_store_dwordx2 v41, {vr(M,2)}, {sp(sLOC)}"])
    A(f"    s_mov_b64 exec, {sp(sEX)}")

def o_combine_wo(L):
    A("    ; ---- o combine")
    o0, o1, ml0, ml1 = 2, 6, 10, 12
    A(f"    v_add_u32 v40, {O_OFF}, v{vAO}")
    loads = [f"global_load_dwordx4 {vr(o0,4)}, v40, {sp(sLOC)} sc1",
             f"global_load_dwordx4 {vr(o1,4)}, v40, {sp(sLOC)} offset:1024 sc1",
             f"global_load_dwordx2 {vr(ml0,2)}, v{vAML}, {sp(sLOC)} sc1",
             f"global_load_dwordx2 {vr(ml1,2)}, v{vAML}, {sp(sLOC)} offset:128 sc1"]
    poll(loads, list(range(2, 14)), 41, name="O")
    M = 14
    A(f"    v_max_f32 v{M}, v{ml0}, v{ml1}")
    xreduce([M], "v_max_f32", [40], bits=(4, 8, 16, 32))
    A(f"    v_sub_f32 v{ml0}, v{ml0}, v{M}")
    A(f"    v_sub_f32 v{ml1}, v{ml1}, v{M}")
    A(f"    v_mul_f32 v{ml0}, s{sC+1}, v{ml0}")
    A(f"    v_mul_f32 v{ml1}, s{sC+1}, v{ml1}")
    A(f"    v_exp_f32 v{ml0}, v{ml0}")
    A(f"    v_exp_f32 v{ml1}, v{ml1}")
    A("    s_nop 0")
    Lr = 15
    A(f"    v_mul_f32 v{Lr}, v{ml0}, v{ml0+1}")
    A(f"    v_fmac_f32 v{Lr}, v{ml1}, v{ml1+1}")
    for e in range(4):
        A(f"    v_mul_f32 v{o0+e}, v{ml0}, v{o0+e}")
        A(f"    v_fmac_f32 v{o0+e}, v{ml1}, v{o1+e}")
    xreduce([Lr, o0, o0 + 1, o0 + 2, o0 + 3], "v_add_f32", [40, 41, 42, 43, 44], bits=(4, 8, 16, 32))
    A(f"    v_rcp_f32 v{Lr}, v{Lr}")
    A("    s_nop 0")
    for e in range(4):
        A(f"    v_mul_f32 v{o0+e}, v{o0+e}, v{Lr}")
    bf16r_pair(o0, o0 + 1, 40)
    bf16r_pair(o0 + 2, o0 + 3, 40)
    A("    s_nop 0")
    for e in range(4):
        A(f"    v_readlane_b32 s{sO+e}, v{o0+e}, s{sWAVE}")
    if DEBUG_DUMP:
        nops(2)
        for e in range(4):
            A(f"    v_mov_b32 v{o1+e}, s{sO+e}")
        dump(4 + 8 * L, [o1, o1 + 1, o1 + 2, o1 + 3])
    A("    ; ---- wo")
    acc = list(range(16, 24))
    lo, hi = 24, 25
    for p in range(4):
        for c in range(4):
            unpack(lo, hi, vWO + 4 * p + c)
            op = "v_mul_f32" if p == 0 else "v_fmac_f32"
            A(f"    {op} v{acc[2*c]}, s{sO+p}, v{lo}")
            A(f"    {op} v{acc[2*c+1]}, s{sO+p}, v{hi}")
    A(f"    v_lshlrev_b32 v26, 5, v{vLANE}")
    A(f"    s_lshl_b32 s{sT0}, s{sWAVE}, 11")
    A(f"    v_add_u32 v26, s{sT0}, v26")
    A(f"    ds_write_b128 v26, {vr(acc[0],4)} offset:{LDS_CMB2}")
    A(f"    ds_write_b128 v26, {vr(acc[4],4)} offset:{LDS_CMB2+16}")
    A("    s_waitcnt lgkmcnt(0)")
    A("    s_barrier")
    cmb_read4(2, LDS_CMB2)
    A("    s_waitcnt lgkmcnt(0)")
    for w in range(1, 4):
        A(f"    v_add_f32 v2, v2, v{2+2*w}")
        A(f"    v_add_f32 v3, v3, v{3+2*w}")
    A(f"    v_add_u32 v40, {R_OFF}, v{vAPUB}")
    store_local([f"global_store_dwordx2 v40, v[2:3], {sp(sLOC)}"])

def x1_chain(L):
    Lskip = newlabel("w0")
    A(f"    s_cmp_eq_u32 s{sWAVE}, 0")
    A(f"    s_cbranch_scc0 {Lskip}")
    r0, r1 = 2, 6
    A(f"    v_add_u32 v40, {R_OFF}, v{vAO}")
    loads = [f"global_load_dwordx4 {vr(r0,4)}, v40, {sp(sLOC)} sc1",
             f"global_load_dwordx4 {vr(r1,4)}, v40, {sp(sLOC)} offset:1024 sc1"]
    poll(loads, list(range(2, 10)), 41, name="R")
    for e in range(4):
        A(f"    v_add_f32 v{r0+e}, v{r0+e}, v{r1+e}")
    xreduce([r0, r0 + 1, r0 + 2, r0 + 3], "v_add_f32", [40, 41, 42, 43], bits=(4, 8, 16, 32))
    A(f"    s_lshl_b32 s{sT0}, s{sG}, 11")
    A(f"    s_lshl_b32 s{sT1}, s{sIDX}, 6")
    A(f"    s_add_u32 s{sT0}, s{sT0}, s{sT1}")
    A(f"    s_add_u32 s{sT0}, s{sT0}, {P_OFF:#x}")
    A(f"    v_add_u32 v40, s{sT0}, v{vL16}")
    A(f"    v_cmp_gt_u32 vcc, 4, v{vLANE}")
    A(f"    s_and_saveexec_b64 {sp(sEX)}, vcc")
    A(f"    global_store_dwordx4 v40, {vr(r0,4)}, {sp(sGL)} sc1")
    A(f"    s_mov_b64 exec, {sp(sEX)}")
    loads = [f"global_load_dwordx2 v[2:3], v{vAP}, {sp(sGL)} sc1"]
    extra = None
    if L == 0:
        A(f"    v_and_b32 v24, 7, v{vLANE}")
        A(f"    v_lshlrev_b32 v24, 2, v24")
        loads.append(f"global_load_dword v25, v24, {sp(sDBG)} offset:192 sc1")
        def extra():
            A(f"    v_cmp_eq_u32 {sp(sCM)}, 0, v25")
            A(f"    s_or_b64 vcc, vcc, {sp(sCM)}")
    poll(loads, [2, 3], 40, extra, name="P")
    xreduce([2, 3], "v_add_f32", [40, 41], bits=(8, 16, 32))
    bf16r_pair(2, 3, 40)
    A(f"    v_add_f32 v{vXM}, v{vXM}, v2")
    A(f"    v_add_f32 v{vXM+1}, v{vXM+1}, v3")
    bf16r_pair(vXM, vXM + 1, 40)
    xl_publish(XL_OFF)
    A(f"{Lskip}:")

def xl_publish(off):
    A(f"    s_lshl_b32 s{sT0}, s{sIDX}, 6")
    A(f"    s_add_u32 s{sT0}, s{sT0}, {off}")
    A(f"    v_lshlrev_b32 v40, 3, v{vLANE}")
    A(f"    v_add_u32 v40, s{sT0}, v40")
    A(f"    v_cmp_gt_u32 vcc, 8, v{vLANE}")
    A(f"    s_and_saveexec_b64 {sp(sEX)}, vcc")
    store_local([f"global_store_dwordx2 v40, {vr(vXM,2)}, {sp(sLOC)}"])
    A(f"    s_mov_b64 exec, {sp(sEX)}")

def b_phase(L):
    A("    ; ---- mixer MLP")
    xa = list(range(2, 10))
    ha, hb = 10, 11
    xa_, xb_ = 12, 13
    A(f"    v_lshlrev_b32 v40, 5, v{vLANE}")
    A(f"    v_add_u32 v40, {XL_OFF}, v40")
    A(f"    s_lshl_b32 s{sT0}, s2, 3")
    A(f"    s_add_u32 s{sT0}, s{sT0}, {XL_OFF}")
    A(f"    v_mov_b32 v41, s{sT0}")
    loads = [f"global_load_dwordx4 v[2:5], v40, {sp(sLOC)} sc1",
             f"global_load_dwordx4 v[6:9], v40, {sp(sLOC)} offset:16 sc1",
             f"global_load_dwordx2 v[10:11], v41, {sp(sLOC)} sc1"]
    poll(loads, list(range(2, 12)), 42, name="XL")
    dump(5 + 8 * L, xa)
    A(f"    v_mov_b32 v{xa_}, v{ha}")
    A(f"    v_mov_b32 v{xb_}, v{hb}")
    vm, vrs = 14, 15
    ln_stats(xa, vm, vrs, [42, 43, 44, 45])
    ln_apply(xa + [ha, hb], vm, vrs, 42)
    ln_stats(xa, vm, vrs, [42, 43, 44, 45])
    ln_apply([ha, hb], vm, vrs, 42)
    dump(6 + 8 * L, [ha, hb])
    c1 = -2.0 * 0.7978845608028654 * 1.4426950408889634
    A(f"    s_mov_b32 s{sC+2}, {f32bits(c1):#x}")
    A(f"    s_mov_b32 s{sC+3}, {f32bits(c1*0.044715):#x}")
    acca, accb = 16, 17
    A(f"    v_mov_b32 v{acca}, 0")
    A(f"    v_mov_b32 v{accb}, 0")
    A(f"    v_mov_b32 v30, s{sC+2}")
    U = 200
    Z = 216
    for i in range(7):
        A(f"    v_mul_f32 v{U+2*i}, v{ha}, v{vW1+i}")
        A(f"    v_mul_f32 v{U+2*i+1}, v{hb}, v{vW1+i}")
    for i in range(7): bf16r_pair(U + 2 * i, U + 2 * i + 1, 24)
    for i in range(7):
        A(f"    v_add_f32 v{U+2*i}, v{U+2*i}, v{vB1+i}")
        A(f"    v_add_f32 v{U+2*i+1}, v{U+2*i+1}, v{vB1+i}")
    for i in range(7): bf16r_pair(U + 2 * i, U + 2 * i + 1, 24)
    for k in range(14): A(f"    v_mul_f32 v{Z+k}, v{U+k}, v{U+k}")
    for k in range(14): A(f"    v_fma_f32 v{Z+k}, v{Z+k}, s{sC+3}, v30")
    for k in range(14): A(f"    v_mul_f32 v{Z+k}, v{Z+k}, v{U+k}")
    for k in range(14): A(f"    v_exp_f32 v{Z+k}, v{Z+k}")
    for k in range(14): A(f"    v_add_f32 v{Z+k}, 1.0, v{Z+k}")
    for k in range(14): A(f"    v_rcp_f32 v{Z+k}, v{Z+k}")
    for k in range(14): A(f"    v_mul_f32 v{U+k}, v{U+k}, v{Z+k}")
    for i in range(7): bf16r_pair(U + 2 * i, U + 2 * i + 1, 24)
    for i in range(7):
        A(f"    v_fmac_f32 v{acca}, v{U+2*i}, v{vW2+i}")
        A(f"    v_fmac_f32 v{accb}, v{U+2*i+1}, v{vW2+i}")
    xreduce([acca, accb], "v_add_f32", [40, 41])
    return acca, accb, xa_, xb_

def x2_chain(acca):
    A(f"    s_lshl_b32 s{sT0}, s2, 6")
    A(f"    s_lshl_b32 s{sT1}, s{sWAVE}, 3")
    A(f"    s_add_u32 s{sT0}, s{sT0}, s{sT1}")
    A(f"    s_add_u32 s{sT0}, s{sT0}, {Y_OFF:#x}")
    A(f"    v_mov_b32 v40, s{sT0}")
    A(f"    v_cmp_eq_u32 vcc, 0, v{vLANE}")
    A(f"    s_and_saveexec_b64 {sp(sEX)}, vcc")
    A(f"    global_store_dwordx2 v40, {vr(acca,2)}, {sp(sGL)} sc1")
    A(f"    s_mov_b64 exec, {sp(sEX)}")
    Lskip = newlabel("w0")
    A(f"    s_cmp_eq_u32 s{sWAVE}, 0")
    A(f"    s_cbranch_scc0 {Lskip}")
    poll([f"global_load_dwordx2 v[2:3], v{vAY}, {sp(sGL)} sc1"], [2, 3], 40, name="Y")
    xreduce([2, 3], "v_add_f32", [40, 41], bits=(8, 16))
    bf16r_pair(2, 3, 40)
    A(f"    v_add_f32 v2, v2, v{vB2}")
    A(f"    v_add_f32 v3, v3, v{vB2}")
    bf16r_pair(2, 3, 40)
    A(f"    v_add_f32 v{vXM}, v{vXM}, v2")
    A(f"    v_add_f32 v{vXM+1}, v{vXM+1}, v3")
    bf16r_pair(vXM, vXM + 1, 40)
    xl_publish(XL2_OFF)
    A(f"{Lskip}:")

ts("start")
set_layer(0)
A(f"    s_waitcnt vmcnt({N_AFTER_WQ})")
ts("wq arrived")
xa = list(range(24, 32)); xr = list(range(32, 36))
for i in range(4): unpack(xa[2 * i], xa[2 * i + 1], vXA + i)
for i in range(2): unpack(xr[2 * i], xr[2 * i + 1], vXR + i)
unpack(vXM, vXM + 1, vXP)
q_phase(0, xa, xr, True)
A("    ; ---- V transpose")
A(f"    s_waitcnt vmcnt({N_AFTER_V + 1})")
ts("V arrived")
A(f"    s_lshl_b32 s{sT0}, s{sWAVE}, 13")
A(f"    v_add_u32 v40, s{sT0}, v{vL16}")
for i in range(8):
    A(f"    ds_write_b128 v40, {vr(vVS+4*i,4)} offset:{LDS_V + i*1024}")
A(f"    v_lshrrev_b32 v41, 4, v{vLANE}")
A(f"    v_and_b32 v42, 15, v{vLANE}")
A(f"    v_lshrrev_b32 v43, 2, v42")
A(f"    v_lshl_add_u32 v43, v41, 2, v43")
A(f"    v_lshlrev_b32 v43, 8, v43")
A(f"    v_and_b32 v42, 3, v42")
A(f"    v_lshl_add_u32 v43, v42, 3, v43")
A(f"    v_add_u32 v43, s{sT0}, v43")
A("    s_waitcnt lgkmcnt(0)")
for T in range(8):
    A(f"    ds_read_b64_tr_b16 {vr(vVT+4*T,2)}, v43 offset:{LDS_V + T*32}")
    A(f"    ds_read_b64_tr_b16 {vr(vVT+4*T+2,2)}, v43 offset:{LDS_V + T*32 + 4096}")
A("    s_waitcnt vmcnt(0)")
for i in range(7):
    A(f"    v_lshlrev_b32 v{vW1+i}, 16, v{vW1+i}")
    A(f"    v_lshlrev_b32 v{vB1+i}, 16, v{vB1+i}")
    A(f"    v_lshlrev_b32 v{vW2+i}, 16, v{vW2+i}")
A(f"    v_lshlrev_b32 v{vB2}, 16, v{vB2}")
A("    s_waitcnt lgkmcnt(0)")
ts("all loads+transpose")
q_gather()
ts("q gathered")
attention(0)
ts("attn")
o_combine_wo(0)
ts("o+wo")
x1_chain(0)
ts("x1 chain")
acca, accb, xa_, xb_ = b_phase(0)
ts("B")
x2_chain(acca)
ts("x2 chain")
A(f"    v_lshlrev_b32 v40, 5, v{vLANE}")
A(f"    v_add_u32 v40, {XL2_OFF}, v40")
A(f"    v_add_u32 v41, {XL2_OFF}, v{vAXR}")
poll([f"global_load_dwordx4 v[24:27], v40, {sp(sLOC)} sc1",
      f"global_load_dwordx4 v[28:31], v40, {sp(sLOC)} offset:16 sc1",
      f"global_load_dwordx4 v[32:35], v41, {sp(sLOC)} sc1"], list(range(24, 36)), 42, name="XL2")
dump(7, xa)
set_layer(1)
q_phase(1, xa, xr, False)
ts("q2 pub")
q_gather()
ts("q2 gathered")
attention(1)
ts("attn2")
o_combine_wo(1)
ts("o+wo 2")
x1_chain(1)
ts("x1 chain 2")
acca, accb, xa_, xb_ = b_phase(1)
ts("B2")
ts_flush()
diag_flush()
A("    ; ---- final")
A(f"    s_lshl_b32 s{sT0}, s{sWAVE}, 3")
A(f"    v_mov_b32 v40, s{sT0}")
A(f"    ds_write_b64 v40, {vr(acca,2)} offset:{LDS_YS}")
A("    s_waitcnt lgkmcnt(0)")
A("    s_barrier")
A(f"    s_cmp_eq_u32 s{sWAVE}, 0")
A("    s_cbranch_scc0 L_end")
A(f"    v_mov_b32 v40, 0")
A(f"    ds_read_b128 {vr(2,4)}, v40 offset:{LDS_YS}")
A(f"    ds_read_b128 {vr(6,4)}, v40 offset:{LDS_YS+16}")
A("    s_waitcnt lgkmcnt(0)")
for w in range(1, 4):
    A(f"    v_add_f32 v2, v2, v{2+2*w}")
    A(f"    v_add_f32 v3, v3, v{3+2*w}")
bf16r_pair(2, 3, 40)
A(f"    v_add_f32 v2, v2, v{vB2}")
A(f"    v_add_f32 v3, v3, v{vB2}")
bf16r_pair(2, 3, 40)
A(f"    v_add_f32 v2, v{xa_}, v2")
A(f"    v_add_f32 v3, v{xb_}, v3")
A(f"    v_cvt_pk_bf16_f32 v4, v2, v3")
A(f"    s_lshl_b32 s{sT0}, s2, 2")
A(f"    v_mov_b32 v40, s{sT0}")
A(f"    v_cmp_eq_u32 vcc, 0, v{vLANE}")
A(f"    s_and_saveexec_b64 {sp(sEX)}, vcc")
A(f"    global_store_dword v40, v4, {sp(sOUT)}")
A("    s_waitcnt vmcnt(0)")
A("    s_branch L_end")

A("L_helper:")
for r in range(4, 8): A(f"    v_mov_b32 v{r}, -1")
A(f"    v_lshlrev_b32 v2, 4, v{vLANE}")
def clear_local(flag):
    for L in range(2):
        set_layer(L)
        A(f"    s_mul_i32 s{sT0}, s{sIDX}, {CLR_PER_CU}")
        A(f"    v_add_u32 v3, s{sT0}, v2")
        for i in range(CLR_PER_CU // 1024):
            if i and i % 4 == 0:
                A(f"    v_add_u32 v3, 4096, v3")
            A(f"    global_store_dwordx4 v3, v[4:7], {sp(sLOC)} offset:{(i%4)*1024}{flag}")
clear_local("")
A(f"    s_lshl_b32 s{sT0}, s{sG}, 11")
A(f"    s_lshl_b32 s{sT1}, s{sIDX}, 6")
A(f"    s_add_u32 s{sT0}, s{sT0}, s{sT1}")
A(f"    s_add_u32 s{sT0}, s{sT0}, {LAYER_BASE + P_OFF:#x}")
A(f"    v_add_u32 v8, s{sT0}, v2")
A(f"    v_add_u32 v9, {LAYER_STRIDE:#x}, v8")
A(f"    s_lshl_b32 s{sT0}, s2, 6")
A(f"    s_add_u32 s{sT0}, s{sT0}, {LAYER_BASE + Y_OFF:#x}")
A(f"    v_add_u32 v10, s{sT0}, v2")
A(f"    v_cmp_gt_u32 vcc, 4, v{vLANE}")
A(f"    s_and_saveexec_b64 {sp(sEX)}, vcc")
A(f"    global_store_dwordx4 v8, v[4:7], {sp(sWS)} sc1")
A(f"    global_store_dwordx4 v9, v[4:7], {sp(sWS)} sc1")
A(f"    global_store_dwordx4 v10, v[4:7], {sp(sWS)} sc1")
A(f"    s_mov_b64 exec, {sp(sEX)}")
A(f"    s_lshl_b32 s{sT0}, s{sG}, 3")
A(f"    v_mov_b32 v11, s{sT0}")
A(f"    s_cmp_eq_u32 s{sIDX}, 0")
A("    s_cbranch_scc0 L_h_nolead")
A(f"    s_memrealtime s[{sC}:{sC+1}]")
A("    s_waitcnt lgkmcnt(0)")
A(f"    s_or_b32 s{sC}, s{sC}, 1")
A(f"    v_mov_b32 v12, s{sC}")
A(f"    v_mov_b32 v13, s{sC+1}")
A(f"    v_cmp_eq_u32 vcc, 0, v{vLANE}")
A(f"    s_and_saveexec_b64 {sp(sEX)}, vcc")
A(f"    global_store_dwordx2 v11, v[12:13], {sp(sDBG)} offset:128 sc1")
A(f"    s_mov_b64 exec, {sp(sEX)}")
A("L_h_nolead:")
A(f"    s_mov_b32 s{sTO}, 0x8000")
A("L_h_nonce:")
A(f"    global_load_dwordx2 v[12:13], v11, {sp(sDBG)} offset:128 sc1")
A("    s_waitcnt vmcnt(0)")
A(f"    v_cmp_eq_u32 vcc, 0, v12")
A("    s_cbranch_vccz L_h_gotn")
A(f"    s_sub_u32 s{sTO}, s{sTO}, 1")
A("    s_cbranch_scc0 L_h_nonce")
A("L_h_gotn:")
A(f"    s_getreg_b32 s{sT2}, hwreg(HW_REG_XCC_ID)")
A(f"    s_and_b32 s{sT2}, s{sT2}, 0xffff")
A(f"    v_mov_b32 v14, s{sT2}")
A(f"    v_mov_b32 v15, 0")
A(f"    s_lshl_b32 s{sT0}, s{sCU}, 6")
A(f"    v_mov_b32 v16, s{sT0}")
A(f"    s_lshl_b32 s{sT1}, s{sG}, 11")
A(f"    v_and_b32 v17, 31, v{vLANE}")
A(f"    v_lshlrev_b32 v17, 6, v17")
A(f"    v_add_u32 v17, s{sT1}, v17")
def flag_round(off, lab):
    A(f"    v_add_u32 v18, {off}, v16")
    A(f"    v_add_u32 v19, {off}, v17")
    A(f"    v_cmp_eq_u32 vcc, 0, v{vLANE}")
    A(f"    s_and_saveexec_b64 {sp(sEX)}, vcc")
    A(f"    global_store_dwordx4 v18, v[12:15], {sp(sWS)} sc1")
    A(f"    s_mov_b64 exec, {sp(sEX)}")
    A(f"    s_mov_b32 s{sTO}, 0x8000")
    A(f"{lab}:")
    A(f"    global_load_dwordx4 v[20:23], v19, {sp(sWS)} sc1")
    A("    s_waitcnt vmcnt(0)")
    A(f"    v_cmp_ne_u32 vcc, v20, v12")
    A(f"    v_cmp_ne_u32 {sp(sCM)}, v21, v13")
    A(f"    s_or_b64 vcc, vcc, {sp(sCM)}")
    A(f"    s_cbranch_vccz {lab}_d")
    A(f"    s_sub_u32 s{sTO}, s{sTO}, 1")
    A(f"    s_cbranch_scc0 {lab}")
    A(f"{lab}_d:")
flag_round(FL1, "L_h_f1")
A(f"    v_cmp_ne_u32 vcc, v22, v14")
A(f"    s_mov_b32 s{sMODE}, 0")
if FORCE_SLOW:
    A("    s_branch L_h_slow")
A("    s_cbranch_vccz L_h_fast")
A("L_h_slow:")
A(f"    s_mov_b32 s{sMODE}, 1")
clear_local(" sc1")
A("    s_waitcnt vmcnt(0)")
flag_round(FL2, "L_h_f2")
A("L_h_fast:")
A(f"    v_mov_b32 v24, {LDS_MODE}")
A(f"    v_mov_b32 v25, s{sMODE}")
A(f"    ds_write_b32 v24, v25")
A("    s_waitcnt lgkmcnt(0)")
A("    s_barrier")
A(f"    s_cmp_eq_u32 s{sIDX}, 0")
A("    s_cbranch_scc0 L_end")
A(f"    s_lshl_b32 s{sT0}, s{sG}, 2")
A(f"    v_mov_b32 v24, s{sT0}")
A(f"    v_mov_b32 v25, 1")
A(f"    v_cmp_eq_u32 vcc, 0, v{vLANE}")
A(f"    s_and_saveexec_b64 {sp(sEX)}, vcc")
A(f"    global_store_dword v24, v25, {sp(sDBG)} offset:192 sc1")
A("    s_waitcnt vmcnt(0)")
A("L_end:")
A("    s_endpgm")
A('.section .rodata,"a"')
A(".p2align 6")
A(f".amdhsa_kernel {KNAME}")
A("  .amdhsa_next_free_vgpr 256")
A("  .amdhsa_next_free_sgpr 80")
A("  .amdhsa_accum_offset 256")
A("  .amdhsa_group_segment_fixed_size 0")
A("  .amdhsa_kernarg_size 104")
A("  .amdhsa_user_sgpr_count 2")
A("  .amdhsa_user_sgpr_kernarg_segment_ptr 1")
A("  .amdhsa_system_sgpr_workgroup_id_x 1")
A(".end_amdhsa_kernel")

dst = [a for a in sys.argv[1:] if not a.startswith("--")]
path = dst[0] if dst else "interleave_layers__sliding_block_cached__mixer_token_mlp__decode.s"
open(path, "w").write("\n".join(out) + "\n")
print("wrote", path, len(out), "lines")
```

```python
import sys, struct

KNAME = "interleave_layers__sliding_block_cached__mixer_token_mlp__decode_kernel"
DEBUG_DUMP = "--dump" in sys.argv
FORCE_SLOW = "--slow" in sys.argv
TS = "--ts" in sys.argv

out = []
def A(s=""):
    out.append(s)
def f32bits(x):
    return struct.unpack("<I", struct.pack("<f", x))[0]
_lbl = [0]; _pc = [0]; _ts = [0]
def newlabel(p="L"):
    _lbl[0] += 1
    return f"{p}_{_lbl[0]}"

FL1 = 0x0000
FL2 = 0x4000
EPOCH_OFF = 0x8000
QT_OFF = 0x10000
LAYER_BASE = 0x100000
LAYER_STRIDE = 0x400000
GRP_STRIDE = 0x40000
CS = 2048 + 128
Q_OFF = 0x0000
ML_OFF = 0x2000
XL_OFF = 0x2400
XL2_OFF = 0x2C00
O_OFF = 0x3400
R_OFF = O_OFF + 32 * CS
GRP_USED = R_OFF + 32 * CS
CLR_PER_CU = (GRP_USED + 32 * 1024 - 1) // (32 * 1024) * 1024
assert CLR_PER_CU * 32 <= GRP_STRIDE
P_OFF = 0x200000
Y_OFF = 0x210000
DUMP_BASE = 0x4000000

LDS_V = 0x0000
LDS_CMB = 0x0000
LDS_MLW = 0x2000
LDS_CMB2 = 0x4000
LDS_QS = 0x8000
LDS_MODE = 0x8400
LDS_YS = 0x8410
LDS_HS = 0x8500
LDS_WQ = 0x9000
LDS_WO = 0xD000
LDS_HW = 0x8800
LDS_BYTES = 0x11000

sX, sK, sV, sWQ, sWO, sBX, sW1, sB1, sW2, sB2, sOUT, sDBG, sWS = [4 + 2 * i for i in range(13)]
sG, sIDX, sWAVE, sCU, sMODE, sTO = 30, 31, 32, 33, 34, 35
sLOC = 36; sMY = 38; sGL = 40
sT0, sT1, sT2, sT3 = 42, 43, 44, 45
sO = 46
sEX = 50
sC = 52
sCM = 64
sTAG = 66
def sp(r): return f"s[{r}:{r+1}]"

vTID, vLANE = 0, 1
vK = 64; vVT = 96; vWQ = 128; vWO = 144
vW1, vB1, vW2 = 160, 167, 174
vB2 = 181
vXM = 182
vL16 = 184
vT8 = 185
vAO = 186
vAML = 187
vAP = 188
vAY = 189
vAXR = 190
vAPUB = 191
vAO2 = 192
def vr(r, n): return f"v[{r}:{r+n-1}]"

def nops(n):
    while n > 0:
        k = min(n, 16)
        A(f"    s_nop {k-1}")
        n -= k

DPP = {1: "quad_perm:[1,0,3,2]", 2: "quad_perm:[2,3,0,1]", 4: "row_ror:4", 8: "row_ror:8"}
def xreduce(regs, op, tmp, bits=(1, 2, 4, 8, 16, 32)):
    n = len(regs)
    for b in bits:
        if b <= 8:
            if n < 3: nops(3 - n)
            for r in regs:
                A(f"    {op}_dpp v{r}, v{r}, v{r} {DPP[b]} row_mask:0xf bank_mask:0xf")
        else:
            sw = "v_permlane16_swap_b32" if b == 16 else "v_permlane32_swap_b32"
            for r, t in zip(regs, tmp):
                A(f"    v_mov_b32 v{t}, v{r}")
            nops(2 if n < 2 else 1)
            for r, t in zip(regs, tmp):
                A(f"    {sw} v{t}, v{r}")
            nops(1)
            for r, t in zip(regs, tmp):
                A(f"    {op} v{r}, v{r}, v{t}")

def bf16r_pair(a, b, t):
    A(f"    v_cvt_pk_bf16_f32 v{t}, v{a}, v{b}")
    A(f"    v_lshlrev_b32 v{a}, 16, v{t}")
    A(f"    v_and_b32 v{b}, 0xffff0000, v{t}")
def bf16r(a, t):
    A(f"    v_cvt_pk_bf16_f32 v{t}, v{a}, v{a}")
    A(f"    v_lshlrev_b32 v{a}, 16, v{t}")
def unpack(dst_lo, dst_hi, src):
    A(f"    v_lshlrev_b32 v{dst_lo}, 16, v{src}")
    A(f"    v_and_b32 v{dst_hi}, 0xffff0000, v{src}")

def max_chain(dst, regs):
    regs = list(regs)
    if len(regs) == 1:
        A(f"    v_mov_b32 v{dst}, v{regs[0]}"); return
    if len(regs) == 2:
        A(f"    v_max_u32 v{dst}, v{regs[0]}, v{regs[1]}"); return
    A(f"    v_max3_u32 v{dst}, v{regs[0]}, v{regs[1]}, v{regs[2]}")
    rest = regs[3:]
    while len(rest) >= 2:
        A(f"    v_max3_u32 v{dst}, v{dst}, v{rest[0]}, v{rest[1]}")
        rest = rest[2:]
    if rest:
        A(f"    v_max_u32 v{dst}, v{dst}, v{rest[0]}")

def ts(name=""):
    if not TS: return
    if "--tsl" in sys.argv and name not in ("entry", "B2"): return
    k = _ts[0]; _ts[0] += 1
    A(f"    s_memrealtime s[70:71]")
    A(f"    s_waitcnt lgkmcnt(0)")
    A(f"    v_writelane_b32 v254, s70, {k}")
_hts = [0]
def hts(name=""):
    if not TS: return
    if "--tsl" in sys.argv: return
    k = _hts[0]; _hts[0] += 1
    A(f"    s_memrealtime s[70:71]")
    A(f"    s_waitcnt lgkmcnt(0)")
    A(f"    v_writelane_b32 v254, s70, {k}")
def ts_flush():
    if not TS: return
    A(f"    s_lshl_b32 s{sT0}, s2, 11")
    A(f"    s_lshl_b32 s{sT1}, s{sWAVE}, 8")
    A(f"    s_add_u32 s{sT0}, s{sT0}, s{sT1}")
    A(f"    s_add_u32 s{sT0}, s{sT0}, {DUMP_BASE + 30 * 0x400000}")
    A(f"    v_lshlrev_b32 v255, 2, v{vLANE}")
    A(f"    v_add_u32 v255, s{sT0}, v255")
    A(f"    global_store_dword v255, v254, {sp(sWS)}")
    A(f"    global_store_dword v255, v253, {sp(sWS)} offset:1024")
    A("    s_waitcnt vmcnt(0)")
def diag_flush():
    if "--diag" not in sys.argv: return
    L = newlabel("dg")
    A(f"    s_cmp_eq_u32 s2, 37")
    A(f"    s_cbranch_scc0 {L}")
    A(f"    s_cmp_eq_u32 s{sWAVE}, 0")
    A(f"    s_cbranch_scc0 {L}")
    A(f"    v_readlane_b32 s72, v254, 0")
    A("    s_nop 3")
    A(f"    v_subrev_u32 v255, s72, v254")
    A(f"    v_mul_u32_u24 v252, 86, v{vLANE}")
    A(f"    v_lshrrev_b32 v252, 8, v252            ; lane/3")
    A(f"    v_mul_u32_u24 v251, 3, v252")
    A(f"    v_cmp_eq_u32 vcc, v251, v{vLANE}")
    A(f"    v_cmp_gt_u32 {sp(sCM)}, 16, v252")
    A(f"    s_and_b64 vcc, vcc, {sp(sCM)}")
    A(f"    v_lshlrev_b32 v252, 2, v252")
    A(f"    s_and_saveexec_b64 {sp(sEX)}, vcc")
    A(f"    global_store_dword v252, v255, {sp(sDBG)}")
    A(f"    s_mov_b64 exec, {sp(sEX)}")
    A("    s_waitcnt vmcnt(0)")
    A(f"{L}:")

def dump(slot, regs):
    if not DEBUG_DUMP: return
    A(f"    s_lshl_b32 s{sT0}, s2, 14")
    A(f"    s_add_u32 s{sT0}, s{sT0}, {DUMP_BASE + slot * 0x400000}")
    A(f"    v_lshlrev_b32 v255, 6, v{vTID}")
    A(f"    v_add_u32 v255, s{sT0}, v255")
    for i, r in enumerate(regs):
        A(f"    global_store_dword v255, v{r}, {sp(sWS)} offset:{4*i}")
    A("    s_waitcnt vmcnt(0)")

def poll(loads, check_regs, vtmp, extra_check=None, name="", local=False):
    L = newlabel("poll"); D = newlabel("polld"); C = newlabel("pollc")
    A(f"    s_mov_b32 s{sTO}, 0x8000")
    if "--ack" in sys.argv:
        ts("  pre-ack " + name)
        A("    s_waitcnt vmcnt(0)")
    ts("  poll begin " + name)
    if local and "--plain1" in sys.argv:
        for l in loads: A("    " + l.replace(" sc1", ""))
        A(f"    s_branch {C}")
    A(f"{L}:")
    for l in loads: A("    " + l)
    A(f"{C}:")
    A("    s_waitcnt vmcnt(0)")
    max_chain(vtmp, check_regs)
    A(f"    v_cmp_eq_u32 vcc, -1, v{vtmp}")
    if extra_check: extra_check()
    A(f"    s_cbranch_vccz {D}")
    A(f"    s_sub_u32 s{sTO}, s{sTO}, 1")
    A(f"    s_cbranch_scc0 {L}")
    A(f"{D}:")
    ts("  poll end " + name)
    if TS and "--tsl" not in sys.argv:
        k = _pc[0]; _pc[0] += 1
        A(f"    s_sub_u32 s72, 0x8000, s{sTO}")
        A(f"    v_writelane_b32 v253, s72, {k}")

def store_local(stores):
    S = newlabel("sl"); D = newlabel("sld")
    A(f"    s_cmp_eq_u32 s{sMODE}, 0")
    A(f"    s_cbranch_scc0 {S}")
    for s in stores: A("    " + s)
    A(f"    s_branch {D}")
    A(f"{S}:")
    for s in stores: A("    " + s + " sc1")
    A(f"{D}:")

def set_layer(L):
    base = LAYER_BASE + L * LAYER_STRIDE
    A(f"    ; ---- layer {L} bases")
    A(f"    s_add_u32 s{sGL}, s{sWS}, {base}")
    A(f"    s_addc_u32 s{sGL+1}, s{sWS+1}, 0")
    A(f"    s_lshl_b32 s{sT0}, s{sG}, 18            ; g*GRP_STRIDE")
    A(f"    s_add_u32 s{sLOC}, s{sGL}, s{sT0}")
    A(f"    s_addc_u32 s{sLOC+1}, s{sGL+1}, 0")

def ln_stats(xregs, vmean, vrs, t):
    s1, s2, t0, t1 = t[0], t[1], t[2], t[3]
    A(f"    v_add_f32 v{s1}, v{xregs[0]}, v{xregs[1]}")
    A(f"    v_mul_f32 v{s2}, v{xregs[0]}, v{xregs[0]}")
    A(f"    v_fmac_f32 v{s2}, v{xregs[1]}, v{xregs[1]}")
    for r in xregs[2:]:
        A(f"    v_add_f32 v{s1}, v{s1}, v{r}")
        A(f"    v_fmac_f32 v{s2}, v{r}, v{r}")
    xreduce([s1, s2], "v_add_f32", [t0, t1])
    A(f"    v_mul_f32 v{s1}, {f32bits(1/512):#x}, v{s1}")
    A(f"    v_mul_f32 v{s2}, {f32bits(1/512):#x}, v{s2}")
    A(f"    v_fma_f32 v{s2}, -v{s1}, v{s1}, v{s2}")
    A(f"    v_max_f32 v{s2}, 0, v{s2}")
    bf16r_pair(s1, s2, t0)
    A(f"    v_add_f32 v{s2}, {f32bits(1e-5):#x}, v{s2}")
    bf16r(s2, t0)
    A(f"    v_sqrt_f32 v{s2}, v{s2}")
    A("    s_nop 0")
    bf16r(s2, t0)
    A(f"    v_rcp_f32 v{vrs}, v{s2}")
    A(f"    v_mov_b32 v{vmean}, v{s1}")
    A("    s_nop 0")

def bc(r):
    return (f"v[{r & ~1}:{(r & ~1) + 1}]", r & 1)
def pk2(op, d, a, b, neg_b=False):
    t, sel = bc(b)
    neg = " neg_lo:[0,1] neg_hi:[0,1]" if neg_b else ""
    A(f"    {op} {vr(d,2)}, {vr(a,2)}, {t} op_sel:[0,{sel}] op_sel_hi:[1,{sel}]{neg}")

def ln_apply(regs, vmean, vrs, t):
    for a, b in zip(regs[0::2], regs[1::2]):
        assert b == a + 1 and a % 2 == 0
        pk2("v_pk_add_f32", a, a, vmean, neg_b=True)
        bf16r_pair(a, b, t)
        pk2("v_pk_mul_f32", a, a, vrs)
        bf16r_pair(a, b, t)

hdr = open("interleave_layers__sliding_block_cached__mixer_token_mlp__decode.s.ref").read().split("\n")
for line in hdr:
    if line.startswith("; @launch"):
        A(f"; @launch grid=(256,1,1) block=(320,1,1) lds={LDS_BYTES}")
        break
    A(line)
A('.amdgcn_target "amdgcn-amd-amdhsa--gfx950"')
A(".text")
A(f".globl {KNAME}")
A(".p2align 8")
A(f".type {KNAME},@function")
A(f"{KNAME}:")
A("    s_cmp_ge_u32 s2, 256")
A("    s_cbranch_scc1 L_end")
A("    s_load_dwordx16 s[4:19], s[0:1], 0")
A("    s_load_dwordx8 s[20:27], s[0:1], 64")
A("    s_load_dwordx2 s[28:29], s[0:1], 96")
A(f"    s_and_b32 s{sG}, s2, 7")
A(f"    s_lshr_b32 s{sIDX}, s2, 3")
A(f"    s_lshl_b32 s{sCU}, s{sG}, 5")
A(f"    s_add_u32 s{sCU}, s{sCU}, s{sIDX}")
A(f"    v_and_b32 v{vLANE}, 63, v0")
A(f"    v_lshrrev_b32 v2, 6, v0")
A("    s_nop 0")
A(f"    v_readfirstlane_b32 s{sWAVE}, v2")
A("    s_waitcnt lgkmcnt(0)")
A(f"    s_load_dwordx2 {sp(sTAG)}, {sp(sWS)}, {EPOCH_OFF}")
A(f"    s_cmp_eq_u32 s{sWAVE}, 4")
A("    s_cbranch_scc1 L_helper")
if TS:
    A("    v_mov_b32 v254, 0")
    A("    v_mov_b32 v253, 0")
ts("entry")

vXA = 2; vXR = 6; vXP = 8
A("    ; ---- prologue loads")
A(f"    v_lshlrev_b32 v{vL16}, 4, v{vLANE}")
A(f"    s_lshr_b32 s{sT0}, s{sIDX}, 3            ; kb")
A(f"    s_lshl_b32 s{sT1}, s{sT0}, 9")
A(f"    v_lshlrev_b32 v12, 3, v{vLANE}")
A(f"    v_add_u32 v{vAXR}, s{sT1}, v12")
A(f"    v_and_b32 v13, 7, v{vLANE}")
A(f"    v_lshlrev_b32 v13, 2, v13")
A(f"    s_lshl_b32 s{sT1}, s{sIDX}, 5")
A(f"    v_add_u32 v13, s{sT1}, v13")
A("    s_barrier")
A(f"    global_load_dword v{vXP}, v13, {sp(sX)}")
A(f"    s_lshl_b32 s{sT1}, s{sG}, 24")
A(f"    s_add_u32 s{sT1}, s{sT1}, {(65536-4096)*256}")
A(f"    s_lshl_b32 s{sT2}, s{sIDX}, 15")
A(f"    s_add_u32 s{sT1}, s{sT1}, s{sT2}")
A(f"    s_lshl_b32 s{sT2}, s{sWAVE}, 13")
A(f"    s_add_u32 s{sT1}, s{sT1}, s{sT2}")
A(f"    v_and_b32 v16, 15, v{vLANE}")
A(f"    v_lshlrev_b32 v16, 8, v16")
A(f"    v_lshrrev_b32 v17, 4, v{vLANE}")
A(f"    v_lshlrev_b32 v17, 4, v17")
A(f"    v_add3_u32 v16, v16, v17, s{sT1}")
A(f"    v_add_u32 v17, 4096, v16")
for T in range(2):
    for j in range(4):
        A(f"    global_load_dwordx4 {vr(vK+16*T+4*j,4)}, v{16+T}, {sp(sK)} offset:{j*64} nt")
vVS = 200
A(f"    v_add_u32 v18, s{sT1}, v{vL16}")
A(f"    v_add_u32 v19, 4096, v18")
for i in range(8):
    A(f"    global_load_dwordx4 {vr(vVS+4*i,4)}, v{18+i//4}, {sp(sV)} offset:{(i%4)*1024} nt")
N_AFTER_V = 0

A("    ; ---- persistent offsets")
A(f"    v_lshlrev_b32 v{vT8}, 3, v{vTID}")
A(f"    s_mul_i32 s{sT0}, s{sIDX}, {CS}")
A(f"    v_add_u32 v{vAO}, s{sT0}, v{vL16}")
A(f"    v_and_b32 v23, 15, v{vLANE}")
A(f"    v_lshlrev_b32 v24, 6, v23")
A(f"    v_lshrrev_b32 v25, 4, v{vLANE}")
A(f"    v_lshlrev_b32 v25, 4, v25")
A(f"    v_add3_u32 v{vAO2}, v24, v25, s{sT0}")
A(f"    s_lshr_b32 s{sT0}, s{sIDX}, 3            ; head")
A(f"    s_lshl_b32 s{sT0}, s{sT0}, 8")
A(f"    s_add_u32 s{sT0}, s{sT0}, {ML_OFF}")
A(f"    v_lshlrev_b32 v23, 3, v23")
A(f"    v_add_u32 v{vAML}, s{sT0}, v23")
A(f"    v_lshrrev_b32 v23, 3, v{vLANE}")
A(f"    v_lshlrev_b32 v24, 11, v23")
A(f"    v_and_b32 v25, 7, v{vLANE}")
A(f"    v_lshlrev_b32 v26, 3, v25")
A(f"    s_lshl_b32 s{sT0}, s{sIDX}, 6")
A(f"    s_add_u32 s{sT0}, s{sT0}, {P_OFF:#x}")
A(f"    v_add3_u32 v{vAP}, v24, v26, s{sT0}")
A(f"    v_and_b32 v23, 3, v23")
A(f"    v_lshlrev_b32 v23, 3, v23")
A(f"    v_lshlrev_b32 v26, 6, v25")
A(f"    s_lshl_b32 s{sT0}, s{sIDX}, 9")
A(f"    s_add_u32 s{sT0}, s{sT0}, {Y_OFF:#x}")
A(f"    v_add3_u32 v{vAY}, v23, v26, s{sT0}")
A(f"    v_lshrrev_b32 v23, 3, v{vTID}")
A(f"    s_mov_b32 s{sT0}, {CS}")
A(f"    v_mul_lo_u32 v23, v23, s{sT0}")
A(f"    v_and_b32 v24, 7, v{vTID}")
A(f"    v_lshlrev_b32 v24, 3, v24")
A(f"    s_lshl_b32 s{sT0}, s{sIDX}, 6")
A(f"    v_add3_u32 v{vAPUB}, v23, v24, s{sT0}")

def late_loads():
    A(f"    s_lshl_b32 s{sT1}, s{sG}, 19")
    A(f"    s_lshl_b32 s{sT2}, s{sIDX}, 14")
    A(f"    s_add_u32 s{sT1}, s{sT1}, s{sT2}")
    A(f"    s_lshl_b32 s{sT2}, s{sWAVE}, 8")
    A(f"    s_add_u32 s{sT1}, s{sT1}, s{sT2}")
    A(f"    v_lshrrev_b32 v58, 4, v{vLANE}")
    A(f"    v_lshlrev_b32 v58, 10, v58")
    A(f"    v_and_b32 v59, 15, v{vLANE}")
    A(f"    v_lshlrev_b32 v59, 4, v59")
    A(f"    v_add3_u32 v58, v58, v59, s{sT1}")
    for p in range(4):
        if p: A(f"    v_add_u32 v58, 4096, v58")
        A(f"    global_load_dwordx4 {vr(232+4*p,4)}, v58, {sp(sWO)} nt")
    A(f"    v_lshlrev_b32 v59, 1, v{vTID}")
    for i in range(7):
        A(f"    global_load_ushort v{vW1+i}, v59, {sp(sW1)} offset:{512*i}")
        A(f"    global_load_ushort v{vB1+i}, v59, {sp(sB1)} offset:{512*i}")
        A(f"    global_load_ushort v{vW2+i}, v59, {sp(sW2)} offset:{512*i}")
    A(f"    v_mov_b32 v60, 0")
    A(f"    global_load_ushort v{vB2}, v60, {sp(sB2)}")


def cmb_read4(dst, off):
    for w in range(4):
        A(f"    ds_read_b64 {vr(dst+2*w,2)}, v{vT8} offset:{off + w*2048}")

def q_frags():
    A(f"    v_lshrrev_b32 v47, 4, v{vLANE}")
    A(f"    v_and_b32 v48, 15, v{vLANE}")
    A(f"    v_lshrrev_b32 v49, 2, v48")
    A(f"    v_lshl_add_u32 v47, v47, 3, v49")
    A(f"    v_lshlrev_b32 v47, 7, v47")
    A(f"    v_and_b32 v48, 3, v48")
    A(f"    v_lshl_add_u32 v47, v48, 3, v47")
    A(f"    s_lshl_b32 s{sT0}, s{sWAVE}, 5")
    A(f"    v_add_u32 v47, s{sT0}, v47")
    for ks in range(4):
        A(f"    ds_read_b64_tr_b16 {vr(vWQ+4*ks,2)}, v47 offset:{LDS_WQ + ks*4096}")
        A(f"    ds_read_b64_tr_b16 {vr(vWQ+4*ks+2,2)}, v47 offset:{LDS_WQ + ks*4096 + 512}")

def q_phase(L, xa, xr):
    vm, vrs = 40, 41
    ln_stats(xa, vm, vrs, [42, 43, 44, 45])
    ln_apply(xr, vm, vrs, 42)
    A(f"    v_cvt_pk_bf16_f32 v46, v{xr[0]}, v{xr[1]}")
    A(f"    s_lshl_b32 s{sT0}, s{sWAVE}, 8")
    A(f"    v_lshlrev_b32 v47, 2, v{vLANE}")
    A(f"    v_add_u32 v47, s{sT0}, v47")
    A(f"    ds_write_b32 v47, v46 offset:{LDS_HW}")
    A(f"    v_lshrrev_b32 v48, 4, v{vLANE}")
    A(f"    v_lshlrev_b32 v48, 4, v48")
    A(f"    v_add_u32 v48, s{sT0}, v48")
    A("    s_waitcnt lgkmcnt(0)")
    for ks in range(4):
        A(f"    ds_read_b128 {vr(2+4*ks,4)}, v48 offset:{LDS_HW + ks*64}")
    A(f"    s_lshr_b32 s{sT0}, s{sIDX}, 3")
    A(f"    s_lshl_b32 s{sT0}, s{sT0}, 11")
    A(f"    s_and_b32 s{sT1}, s{sIDX}, 7")
    A(f"    s_lshl_b32 s{sT1}, s{sT1}, 8")
    A(f"    s_add_u32 s{sT0}, s{sT0}, s{sT1}")
    A(f"    s_lshl_b32 s{sT1}, s{sWAVE}, 6")
    A(f"    s_add_u32 s{sT0}, s{sT0}, s{sT1}")
    A(f"    v_lshlrev_b32 v49, 2, v{vLANE}")
    A(f"    v_add_u32 v49, s{sT0}, v49")
    A("    s_waitcnt lgkmcnt(0)")
    for ks in range(4):
        A(f"    v_mfma_f32_16x16x32_bf16 v[52:55], {vr(2+4*ks,4)}, {vr(vWQ+4*ks,4)}, {'v[52:55]' if ks else 0}")
    A(f"    v_cmp_gt_u32 vcc, 16, v{vLANE}")
    A(f"    s_and_saveexec_b64 {sp(sEX)}, vcc")
    nops(8)
    store_local([f"global_store_dword v49, v52, {sp(sLOC)}"])
    A(f"    s_mov_b64 exec, {sp(sEX)}")

def q_gather(tagged=False):
    base = 2
    loads = []; regs = []
    if not tagged:
        A(f"    v_add_u32 v60, 4096, v{vT8}")
        for kb in range(4):
            r = base + 2 * kb
            loads.append(f"global_load_dwordx2 {vr(r,2)}, v{vT8 if kb < 2 else 60}, {sp(sLOC)} offset:{(kb%2)*2048} sc1")
            regs += [r, r + 1]
        poll(loads, regs, 40, name="Q", local=True)
        for i in range(1, 4):
            A(f"    v_add_f32 v{base}, v{base}, v{base+2*i}")
            A(f"    v_add_f32 v{base+1}, v{base+1}, v{base+2*i+1}")
    else:
        A(f"    s_lshl_b32 s{sT0}, s{sG}, 14")
        A(f"    s_add_u32 s{sT0}, s{sT0}, {QT_OFF}")
        A(f"    v_lshlrev_b32 v60, 4, v{vTID}")
        A(f"    v_add_u32 v60, s{sT0}, v60")
        for kb in range(1, 4):
            A(f"    v_add_u32 v{60+kb}, {kb*4096}, v60")
        L = newlabel("pollt"); D = newlabel("polltd")
        A(f"    s_mov_b32 s{sTO}, 0x8000")
        ts("  poll begin QT")
        A(f"{L}:")
        for kb in range(4):
            A(f"    global_load_dwordx4 {vr(base+4*kb,4)}, v{60+kb}, {sp(sWS)} sc1")
        A("    s_waitcnt vmcnt(0)")
        for kb in range(4):
            A(f"    v_xor_b32 v{40+kb}, s{sTAG}, v{base+4*kb+2}")
            A(f"    v_xor_b32 v{44+kb}, s{sTAG+1}, v{base+4*kb+3}")
        A(f"    v_or3_b32 v40, v40, v41, v42")
        A(f"    v_or3_b32 v44, v44, v45, v46")
        A(f"    v_or3_b32 v40, v40, v43, v47")
        A(f"    v_or_b32 v40, v40, v44")
        A(f"    v_cmp_ne_u32 vcc, 0, v40")
        A(f"    s_cbranch_vccz {D}")
        A(f"    s_sub_u32 s{sTO}, s{sTO}, 1")
        A(f"    s_cbranch_scc0 {L}")
        A(f"{D}:")
        ts("  poll end QT")
        if "--nodefer" not in sys.argv: late_loads()
        for i in range(1, 4):
            A(f"    v_add_f32 v{base}, v{base}, v{base+4*i}")
            A(f"    v_add_f32 v{base+1}, v{base+1}, v{base+4*i+1}")
    A(f"    v_cvt_pk_bf16_f32 v40, v{base}, v{base+1}")
    A(f"    v_lshlrev_b32 v41, 2, v{vTID}")
    A(f"    ds_write_b32 v41, v40 offset:{LDS_QS}")
    A("    s_waitcnt lgkmcnt(0)")
    A("    s_barrier")

def attention(L):
    vQ = 2
    A("    ; ---- attention")
    A(f"    v_and_b32 v40, 3, v{vLANE}")
    A(f"    v_lshlrev_b32 v40, 8, v40")
    A(f"    v_lshrrev_b32 v41, 4, v{vLANE}")
    A(f"    v_lshl_add_u32 v40, v41, 4, v40")
    for j in range(4):
        A(f"    ds_read_b128 {vr(vQ+4*j,4)}, v40 offset:{LDS_QS + j*64}")
    S = 24
    O = 200
    A(f"    s_mov_b32 s{sC}, {f32bits(128 ** -0.5):#x}")
    A(f"    s_mov_b32 s{sC+1}, {f32bits(1.4426950408889634):#x}")
    A("    s_waitcnt lgkmcnt(0)")
    nops(1)
    for j in range(4):
        for T in range(2):
            A(f"    v_mfma_f32_16x16x32_bf16 {vr(S+4*T,4)}, {vr(vK+16*T+4*j,4)}, {vr(vQ+4*j,4)}, {vr(S+4*T,4) if j else 0}")
    A(f"    v_and_b32 v40, 15, v{vLANE}            ; col")
    A(f"    v_lshlrev_b32 v42, 9, v40              ; head*512")
    A(f"    v_lshl_add_u32 v42, v41, 4, v42        ; + slab*16")
    A(f"    s_lshl_b32 s{sT0}, s{sWAVE}, 11")
    A(f"    v_add_u32 v42, s{sT0}, v42")
    A(f"    s_lshl_b32 s{sT0}, s{sWAVE}, 3")
    A(f"    v_lshlrev_b32 v43, 5, v{vLANE}         ; head*32")
    A(f"    v_add_u32 v43, s{sT0}, v43")
    nops(3)
    dump(3 + 8 * L, list(range(S, S + 8)))
    for r in range(0, 8, 2):
        bf16r_pair(S + r, S + r + 1, 44)
        A(f"    v_mul_f32 v{S+r}, s{sC}, v{S+r}")
        A(f"    v_mul_f32 v{S+r+1}, s{sC}, v{S+r+1}")
        bf16r_pair(S + r, S + r + 1, 44)
    vm, vl = 34, 35
    A(f"    v_max3_f32 v{vm}, v{S}, v{S+1}, v{S+2}")
    A(f"    v_max3_f32 v{vm}, v{vm}, v{S+3}, v{S+4}")
    A(f"    v_max3_f32 v{vm}, v{vm}, v{S+5}, v{S+6}")
    A(f"    v_max_f32 v{vm}, v{vm}, v{S+7}")
    xreduce([vm], "v_max_f32", [44], bits=(16, 32))
    A(f"    v_mul_f32 v45, s{sC+1}, v{vm}")
    for r in range(8):
        A(f"    v_fma_f32 v{S+r}, v{S+r}, s{sC+1}, -v45")
    for r in range(8):
        A(f"    v_exp_f32 v{S+r}, v{S+r}")
    A("    s_nop 0")
    P = 36
    for i in range(4):
        A(f"    v_cvt_pk_bf16_f32 v{P+i}, v{S+2*i}, v{S+2*i+1}")
    A(f"    v_add_f32 v{vl}, v{S}, v{S+1}")
    A(f"    v_add_f32 v{vl}, v{vl}, v{S+2}")
    for T in range(8):
        A(f"    v_mfma_f32_16x16x32_bf16 {vr(O+4*T,4)}, {vr(vVT+4*T,4)}, {vr(P,4)}, 0")
    for r in range(3, 8):
        A(f"    v_add_f32 v{vl}, v{vl}, v{S+r}")
    xreduce([vl], "v_add_f32", [44], bits=(16, 32))
    nops(4)
    A(f"    v_cmp_gt_u32 vcc, 4, v40")
    A(f"    s_and_saveexec_b64 {sp(sEX)}, vcc")
    for T in range(8):
        A(f"    ds_write_b128 v42, {vr(O+4*T,4)} offset:{LDS_CMB + T*64}")
    A(f"    v_cmp_gt_u32 vcc, 4, v{vLANE}")
    A(f"    s_and_b64 exec, exec, vcc")
    A(f"    ds_write_b64 v43, {vr(vm,2)} offset:{LDS_MLW}")
    A(f"    s_mov_b64 exec, {sp(sEX)}")
    A("    s_waitcnt lgkmcnt(0)")
    A("    s_barrier")
    if L == 0:
        ts("B1")
        A(f"    v_mov_b32 v58, {LDS_MODE}")
        A(f"    ds_read_b32 v58, v58")
    cmb_read4(2, LDS_CMB)
    A(f"    s_lshl_b32 s{sT0}, s{sWAVE}, 5")
    A(f"    v_mov_b32 v40, s{sT0}")
    A(f"    ds_read_b128 {vr(12,4)}, v40 offset:{LDS_MLW}")
    A(f"    ds_read_b128 {vr(16,4)}, v40 offset:{LDS_MLW+16}")
    A("    s_waitcnt lgkmcnt(0)")
    if L == 0:
        A(f"    v_readfirstlane_b32 s{sMODE}, v58")
    M, Lr = 20, 21
    A(f"    v_max3_f32 v{M}, v12, v14, v16")
    A(f"    v_max_f32 v{M}, v{M}, v18")
    for w in range(4):
        A(f"    v_sub_f32 v{12+2*w}, v{12+2*w}, v{M}")
    for w in range(4):
        A(f"    v_mul_f32 v{12+2*w}, s{sC+1}, v{12+2*w}")
    for w in range(4):
        A(f"    v_exp_f32 v{12+2*w}, v{12+2*w}")
    A("    s_nop 0")
    A(f"    v_mul_f32 v{Lr}, v12, v13")
    A(f"    v_mul_f32 v2, v12, v2")
    A(f"    v_mul_f32 v3, v12, v3")
    for w in range(1, 4):
        A(f"    v_fmac_f32 v{Lr}, v{12+2*w}, v{13+2*w}")
        A(f"    v_fmac_f32 v2, v{12+2*w}, v{2+2*w}")
        A(f"    v_fmac_f32 v3, v{12+2*w}, v{3+2*w}")
    A(f"    s_lshl_b32 s{sT0}, s{sWAVE}, 8")
    A(f"    s_lshl_b32 s{sT1}, s{sIDX}, 3")
    A(f"    s_add_u32 s{sT0}, s{sT0}, s{sT1}")
    A(f"    s_add_u32 s{sT0}, s{sT0}, {ML_OFF}")
    A(f"    v_mov_b32 v41, s{sT0}")
    A(f"    v_add_u32 v40, {O_OFF}, v{vAPUB}")
    store_local([f"global_store_dwordx2 v40, v[2:3], {sp(sLOC)}"])
    A(f"    v_cmp_eq_u32 vcc, 0, v{vLANE}")
    A(f"    s_and_saveexec_b64 {sp(sEX)}, vcc")
    store_local([f"global_store_dwordx2 v41, {vr(M,2)}, {sp(sLOC)}"])
    A(f"    s_mov_b64 exec, {sp(sEX)}")

def o_combine_wo(L):
    A("    ; ---- o combine")
    o0, o1, ml0, ml1 = 2, 6, 10, 12
    A(f"    v_add_u32 v40, {O_OFF}, v{vAO2}")
    loads = [f"global_load_dwordx4 {vr(o0,4)}, v40, {sp(sLOC)} sc1",
             f"global_load_dwordx4 {vr(o1,4)}, v40, {sp(sLOC)} offset:1024 sc1",
             f"global_load_dwordx2 {vr(ml0,2)}, v{vAML}, {sp(sLOC)} sc1",
             f"global_load_dwordx2 {vr(ml1,2)}, v{vAML}, {sp(sLOC)} offset:128 sc1"]
    poll(loads, list(range(2, 14)), 41, name="O", local=True)
    if L == 0:
        A(f"    s_lshl_b32 s{sT0}, s{sWAVE}, 12")
        A(f"    v_add_u32 v46, s{sT0}, v{vL16}")
        for p in range(4):
            A(f"    ds_write_b128 v46, {vr(232+4*p,4)} offset:{LDS_WO + p*1024}")
        A(f"    v_lshrrev_b32 v47, 4, v{vLANE}")
        A(f"    v_and_b32 v48, 15, v{vLANE}")
        A(f"    v_lshrrev_b32 v49, 2, v48")
        A(f"    v_lshl_add_u32 v47, v47, 2, v49")
        A(f"    v_lshlrev_b32 v47, 8, v47")
        A(f"    v_and_b32 v48, 3, v48")
        A(f"    v_lshl_add_u32 v47, v48, 3, v47")
        A(f"    v_add_u32 v47, s{sT0}, v47")
    M = 14
    A(f"    v_max_f32 v{M}, v{ml0}, v{ml1}")
    xreduce([M], "v_max_f32", [40], bits=(1, 2, 4, 8))
    if L == 0:
        A("    s_waitcnt lgkmcnt(0)")
        for T in range(8):
            A(f"    ds_read_b64_tr_b16 {vr(vWO+2*T,2)}, v47 offset:{LDS_WO + T*32}")
    A(f"    v_sub_f32 v{ml0}, v{ml0}, v{M}")
    A(f"    v_sub_f32 v{ml1}, v{ml1}, v{M}")
    A(f"    v_mul_f32 v{ml0}, s{sC+1}, v{ml0}")
    A(f"    v_mul_f32 v{ml1}, s{sC+1}, v{ml1}")
    A(f"    v_exp_f32 v{ml0}, v{ml0}")
    A(f"    v_exp_f32 v{ml1}, v{ml1}")
    A("    s_nop 0")
    Lr = 15
    A(f"    v_mul_f32 v{Lr}, v{ml0}, v{ml0+1}")
    A(f"    v_fmac_f32 v{Lr}, v{ml1}, v{ml1+1}")
    for e in range(4):
        A(f"    v_mul_f32 v{o0+e}, v{ml0}, v{o0+e}")
        A(f"    v_fmac_f32 v{o0+e}, v{ml1}, v{o1+e}")
    xreduce([Lr, o0, o0 + 1, o0 + 2, o0 + 3], "v_add_f32", [40, 41, 42, 43, 44], bits=(1, 2, 4, 8))
    A(f"    v_rcp_f32 v{Lr}, v{Lr}")
    A("    s_nop 0")
    for e in range(4):
        A(f"    v_mul_f32 v{o0+e}, v{o0+e}, v{Lr}")
    A(f"    v_cvt_pk_bf16_f32 v16, v{o0}, v{o0+1}")
    A(f"    v_cvt_pk_bf16_f32 v17, v{o0+2}, v{o0+3}")
    if DEBUG_DUMP:
        unpack(6, 7, 16); unpack(8, 9, 17)
        dump(4 + 8 * L, [6, 7, 8, 9])
    A("    ; ---- wo via MFMA")
    A(f"    s_mul_i32 s{sT0}, s{sWAVE}, {8*CS}")
    A(f"    s_lshl_b32 s{sT1}, s{sIDX}, 6")
    A(f"    s_add_u32 s{sT0}, s{sT0}, s{sT1}")
    A(f"    s_add_u32 s{sT0}, s{sT0}, {R_OFF}")
    A(f"    v_lshlrev_b32 v50, 2, v{vLANE}")
    A(f"    v_add_u32 v50, s{sT0}, v50")
    if L == 0:
        A("    s_waitcnt lgkmcnt(0)")
    D = 200
    for T in range(8):
        A(f"    v_mfma_f32_16x16x16_bf16 {vr(D+4*T,4)}, v[16:17], {vr(vWO+2*T,2)}, 0")
    for T in range(1, 8):
        A(f"    v_add_u32 v{50+T}, {T*CS}, v50")
    A(f"    v_cmp_gt_u32 vcc, 16, v{vLANE}")
    A(f"    s_and_saveexec_b64 {sp(sEX)}, vcc")
    nops(2)
    store_local([f"global_store_dword v{50+T}, v{D+4*T}, {sp(sLOC)}" for T in range(8)])
    A(f"    s_mov_b64 exec, {sp(sEX)}")

def x1_chain(L):
    Lskip = newlabel("w0")
    A(f"    s_cmp_eq_u32 s{sWAVE}, 0")
    A(f"    s_cbranch_scc0 {Lskip}")
    r0, r1 = 2, 6
    A(f"    v_add_u32 v40, {R_OFF}, v{vAO}")
    loads = [f"global_load_dwordx4 {vr(r0,4)}, v40, {sp(sLOC)} sc1",
             f"global_load_dwordx4 {vr(r1,4)}, v40, {sp(sLOC)} offset:1024 sc1"]
    poll(loads, list(range(2, 10)), 41, name="R", local=True)
    for e in range(4):
        A(f"    v_add_f32 v{r0+e}, v{r0+e}, v{r1+e}")
    xreduce([r0, r0 + 1, r0 + 2, r0 + 3], "v_add_f32", [40, 41, 42, 43], bits=(4, 8, 16, 32))
    A(f"    s_lshl_b32 s{sT0}, s{sG}, 11")
    A(f"    s_lshl_b32 s{sT1}, s{sIDX}, 6")
    A(f"    s_add_u32 s{sT0}, s{sT0}, s{sT1}")
    A(f"    s_add_u32 s{sT0}, s{sT0}, {P_OFF:#x}")
    A(f"    v_add_u32 v40, s{sT0}, v{vL16}")
    A(f"    v_cmp_gt_u32 vcc, 4, v{vLANE}")
    A(f"    s_and_saveexec_b64 {sp(sEX)}, vcc")
    A(f"    global_store_dwordx4 v40, {vr(r0,4)}, {sp(sGL)} sc1")
    A(f"    s_mov_b64 exec, {sp(sEX)}")
    loads = [f"global_load_dwordx2 v[2:3], v{vAP}, {sp(sGL)} sc1"]
    extra = None
    if L == 0:
        A(f"    v_and_b32 v24, 7, v{vLANE}")
        A(f"    v_lshlrev_b32 v24, 2, v24")
        loads.append(f"global_load_dword v25, v24, {sp(sDBG)} offset:192 sc1")
        def extra():
            A(f"    v_cmp_eq_u32 {sp(sCM)}, 0, v25")
            A(f"    s_or_b64 vcc, vcc, {sp(sCM)}")
    poll(loads, [2, 3], 40, extra, name="P")
    xreduce([2, 3], "v_add_f32", [40, 41], bits=(8, 16, 32))
    bf16r_pair(2, 3, 40)
    A(f"    v_add_f32 v{vXM}, v{vXM}, v2")
    A(f"    v_add_f32 v{vXM+1}, v{vXM+1}, v3")
    bf16r_pair(vXM, vXM + 1, 40)
    xl_publish(XL_OFF)
    A(f"{Lskip}:")

def xl_publish(off):
    A(f"    s_lshl_b32 s{sT0}, s{sIDX}, 6")
    A(f"    s_add_u32 s{sT0}, s{sT0}, {off}")
    A(f"    v_lshlrev_b32 v40, 3, v{vLANE}")
    A(f"    v_add_u32 v40, s{sT0}, v40")
    A(f"    v_cmp_gt_u32 vcc, 8, v{vLANE}")
    A(f"    s_and_saveexec_b64 {sp(sEX)}, vcc")
    store_local([f"global_store_dwordx2 v40, {vr(vXM,2)}, {sp(sLOC)}"])
    A(f"    s_mov_b64 exec, {sp(sEX)}")

def b_phase(L):
    A("    ; ---- mixer MLP")
    xa = list(range(2, 10))
    ha, hb = 10, 11
    xa_, xb_ = 12, 13
    A(f"    v_lshlrev_b32 v40, 5, v{vLANE}")
    A(f"    v_add_u32 v40, {XL_OFF}, v40")
    A(f"    s_lshl_b32 s{sT0}, s2, 3")
    A(f"    s_add_u32 s{sT0}, s{sT0}, {XL_OFF}")
    A(f"    v_mov_b32 v41, s{sT0}")
    loads = [f"global_load_dwordx4 v[2:5], v40, {sp(sLOC)} sc1",
             f"global_load_dwordx4 v[6:9], v40, {sp(sLOC)} offset:16 sc1",
             f"global_load_dwordx2 v[10:11], v41, {sp(sLOC)} sc1"]
    poll(loads, list(range(2, 12)), 42, name="XL", local=True)
    dump(5 + 8 * L, xa)
    if L == 0:
        for i in range(7):
            A(f"    v_lshlrev_b32 v{vW1+i}, 16, v{vW1+i}")
            A(f"    v_lshlrev_b32 v{vB1+i}, 16, v{vB1+i}")
            A(f"    v_lshlrev_b32 v{vW2+i}, 16, v{vW2+i}")
        A(f"    v_lshlrev_b32 v{vB2}, 16, v{vB2}")
    A(f"    v_mov_b32 v{xa_}, v{ha}")
    A(f"    v_mov_b32 v{xb_}, v{hb}")
    vm, vrs = 14, 15
    ln_stats(xa, vm, vrs, [42, 43, 44, 45])
    ln_apply(xa + [ha, hb], vm, vrs, 42)
    ln_stats(xa, vm, vrs, [42, 43, 44, 45])
    ln_apply([ha, hb], vm, vrs, 42)
    dump(6 + 8 * L, [ha, hb])
    c1 = -2.0 * 0.7978845608028654 * 1.4426950408889634
    A(f"    s_mov_b32 s{sC+2}, {f32bits(c1):#x}")
    A(f"    s_mov_b32 s{sC+3}, {f32bits(c1*0.044715):#x}")
    acca, accb = 16, 17
    A(f"    v_mov_b32 v{acca}, 0")
    A(f"    v_mov_b32 v{accb}, 0")
    A(f"    v_mov_b32 v30, s{sC+2}")
    A(f"    v_mov_b32 v31, s{sC+3}")
    A(f"    v_mov_b32 v32, 1.0")
    U = 200
    Z = 216
    for i in range(7): pk2("v_pk_mul_f32", U + 2 * i, ha, vW1 + i)
    for i in range(7): bf16r_pair(U + 2 * i, U + 2 * i + 1, 24)
    for i in range(7): pk2("v_pk_add_f32", U + 2 * i, U + 2 * i, vB1 + i)
    for i in range(7): bf16r_pair(U + 2 * i, U + 2 * i + 1, 24)
    for i in range(7): A(f"    v_pk_mul_f32 {vr(Z+2*i,2)}, {vr(U+2*i,2)}, {vr(U+2*i,2)}")
    for i in range(7): A(f"    v_pk_fma_f32 {vr(Z+2*i,2)}, {vr(Z+2*i,2)}, v[30:31], v[30:31] op_sel:[0,1,0] op_sel_hi:[1,1,0]")
    for i in range(7): A(f"    v_pk_mul_f32 {vr(Z+2*i,2)}, {vr(Z+2*i,2)}, {vr(U+2*i,2)}")
    for k in range(14): A(f"    v_exp_f32 v{Z+k}, v{Z+k}")
    for i in range(7): pk2("v_pk_add_f32", Z + 2 * i, Z + 2 * i, 32)
    for k in range(14): A(f"    v_rcp_f32 v{Z+k}, v{Z+k}")
    for i in range(7): A(f"    v_pk_mul_f32 {vr(U+2*i,2)}, {vr(U+2*i,2)}, {vr(Z+2*i,2)}")
    for i in range(7): bf16r_pair(U + 2 * i, U + 2 * i + 1, 24)
    for i in range(7):
        t, sel = bc(vW2 + i)
        A(f"    v_pk_fma_f32 {vr(acca,2)}, {vr(U+2*i,2)}, {t}, {vr(acca,2)} op_sel:[0,{sel},0] op_sel_hi:[1,{sel},1]")
    xreduce([acca, accb], "v_add_f32", [40, 41])
    return acca, accb, xa_, xb_

def x2_chain(acca):
    A(f"    s_lshl_b32 s{sT0}, s2, 6")
    A(f"    s_lshl_b32 s{sT1}, s{sWAVE}, 3")
    A(f"    s_add_u32 s{sT0}, s{sT0}, s{sT1}")
    A(f"    s_add_u32 s{sT0}, s{sT0}, {Y_OFF:#x}")
    A(f"    v_mov_b32 v40, s{sT0}")
    A(f"    v_cmp_eq_u32 vcc, 0, v{vLANE}")
    A(f"    s_and_saveexec_b64 {sp(sEX)}, vcc")
    A(f"    global_store_dwordx2 v40, {vr(acca,2)}, {sp(sGL)} sc1")
    A(f"    s_mov_b64 exec, {sp(sEX)}")
    Lskip = newlabel("w0")
    A(f"    s_cmp_eq_u32 s{sWAVE}, 0")
    A(f"    s_cbranch_scc0 {Lskip}")
    poll([f"global_load_dwordx2 v[2:3], v{vAY}, {sp(sGL)} sc1"], [2, 3], 40, name="Y")
    xreduce([2, 3], "v_add_f32", [40, 41], bits=(8, 16))
    bf16r_pair(2, 3, 40)
    A(f"    v_add_f32 v2, v2, v{vB2}")
    A(f"    v_add_f32 v3, v3, v{vB2}")
    bf16r_pair(2, 3, 40)
    A(f"    v_add_f32 v{vXM}, v{vXM}, v2")
    A(f"    v_add_f32 v{vXM+1}, v{vXM+1}, v3")
    bf16r_pair(vXM, vXM + 1, 40)
    xl_publish(XL2_OFF)
    A(f"{Lskip}:")

ts("start")
set_layer(0)
xa = list(range(24, 32)); xr = list(range(32, 36))
A("    ; ---- V transpose")
A(f"    s_waitcnt vmcnt({N_AFTER_V})")
ts("V arrived")
A(f"    s_lshl_b32 s{sT0}, s{sWAVE}, 13")
A(f"    v_add_u32 v40, s{sT0}, v{vL16}")
for i in range(8):
    A(f"    ds_write_b128 v40, {vr(vVS+4*i,4)} offset:{LDS_V + i*1024}")
A(f"    v_lshrrev_b32 v41, 4, v{vLANE}")
A(f"    v_and_b32 v42, 15, v{vLANE}")
A(f"    v_lshrrev_b32 v43, 2, v42")
A(f"    v_lshl_add_u32 v43, v41, 2, v43")
A(f"    v_lshlrev_b32 v43, 8, v43")
A(f"    v_and_b32 v42, 3, v42")
A(f"    v_lshl_add_u32 v43, v42, 3, v43")
A(f"    v_add_u32 v43, s{sT0}, v43")
A("    s_waitcnt lgkmcnt(0)")
for T in range(8):
    A(f"    ds_read_b64_tr_b16 {vr(vVT+4*T,2)}, v43 offset:{LDS_V + T*32}")
    A(f"    ds_read_b64_tr_b16 {vr(vVT+4*T+2,2)}, v43 offset:{LDS_V + T*32 + 4096}")
unpack(vXM, vXM + 1, vXP)
A("    s_waitcnt lgkmcnt(0)")
A(f"    s_add_u32 s{sTAG}, s{sTAG}, 1")
A(f"    s_addc_u32 s{sTAG+1}, s{sTAG+1}, 0")
ts("all loads+transpose")
late_loads()
A("    s_barrier")
ts("q gathered")
attention(0)
ts("attn")
o_combine_wo(0)
ts("o+wo")
x1_chain(0)
ts("x1 chain")
acca, accb, xa_, xb_ = b_phase(0)
ts("B")
x2_chain(acca)
ts("x2 chain")
q_frags()
A(f"    v_lshlrev_b32 v40, 5, v{vLANE}")
A(f"    v_add_u32 v40, {XL2_OFF}, v40")
A(f"    v_add_u32 v41, {XL2_OFF}, v{vAXR}")
poll([f"global_load_dwordx4 v[24:27], v40, {sp(sLOC)} sc1",
      f"global_load_dwordx4 v[28:31], v40, {sp(sLOC)} offset:16 sc1",
      f"global_load_dwordx2 v[32:33], v41, {sp(sLOC)} sc1"], list(range(24, 34)), 42, name="XL2", local=True)
dump(7, xa)
set_layer(1)
q_phase(1, xa, [32, 33])
ts("q2 pub")
q_gather()
ts("q2 gathered")
attention(1)
ts("attn2")
o_combine_wo(1)
ts("o+wo 2")
x1_chain(1)
ts("x1 chain 2")
acca, accb, xa_, xb_ = b_phase(1)
ts("B2")
ts_flush()
diag_flush()
A("    ; ---- final")
A(f"    s_lshl_b32 s{sT0}, s{sWAVE}, 3")
A(f"    v_mov_b32 v40, s{sT0}")
A(f"    ds_write_b64 v40, {vr(acca,2)} offset:{LDS_YS}")
A("    s_waitcnt lgkmcnt(0)")
A("    s_barrier")
A(f"    s_cmp_eq_u32 s{sWAVE}, 0")
A("    s_cbranch_scc0 L_end")
A(f"    v_mov_b32 v40, 0")
A(f"    ds_read_b128 {vr(2,4)}, v40 offset:{LDS_YS}")
A(f"    ds_read_b128 {vr(6,4)}, v40 offset:{LDS_YS+16}")
A("    s_waitcnt lgkmcnt(0)")
for w in range(1, 4):
    A(f"    v_add_f32 v2, v2, v{2+2*w}")
    A(f"    v_add_f32 v3, v3, v{3+2*w}")
bf16r_pair(2, 3, 40)
A(f"    v_add_f32 v2, v2, v{vB2}")
A(f"    v_add_f32 v3, v3, v{vB2}")
bf16r_pair(2, 3, 40)
A(f"    v_add_f32 v2, v{xa_}, v2")
A(f"    v_add_f32 v3, v{xb_}, v3")
A(f"    v_cvt_pk_bf16_f32 v4, v2, v3")
A(f"    s_lshl_b32 s{sT0}, s2, 2")
A(f"    v_mov_b32 v40, s{sT0}")
A(f"    v_cmp_eq_u32 vcc, 0, v{vLANE}")
A(f"    s_and_saveexec_b64 {sp(sEX)}, vcc")
A(f"    global_store_dword v40, v4, {sp(sOUT)}")
A(f"    s_cmp_eq_u32 s2, 0")
A(f"    s_cbranch_scc0 L_noep")
A(f"    v_mov_b32 v40, {EPOCH_OFF}")
A(f"    v_mov_b32 v42, s{sTAG}")
A(f"    v_mov_b32 v43, s{sTAG+1}")
A(f"    global_store_dwordx2 v40, v[42:43], {sp(sWS)} sc1")
A("L_noep:")
A("    s_waitcnt vmcnt(0)")
A("    s_branch L_end")

A("L_helper:")
if TS:
    A("    v_mov_b32 v254, 0")
    A("    v_mov_b32 v253, 0")
hts("h entry")
hWQ = 64
A("    s_setprio 3")
A(f"    v_lshlrev_b32 v2, 4, v{vLANE}")
A(f"    global_load_dwordx4 v[24:27], v2, {sp(sX)}")
A(f"    s_lshr_b32 s{sT0}, s{sIDX}, 3            ; kb")
A(f"    s_lshl_b32 s{sT1}, s{sT0}, 8             ; kb*128*2")
A(f"    v_lshlrev_b32 v8, 2, v{vLANE}")
A(f"    v_add_u32 v9, s{sT1}, v8")
A(f"    global_load_dword v28, v9, {sp(sX)}")
A(f"    s_lshl_b32 s{sT1}, s{sT0}, 20")
A(f"    s_lshl_b32 s{sT2}, s{sG}, 10")
A(f"    s_add_u32 s{sT1}, s{sT1}, s{sT2}")
A(f"    s_and_b32 s{sT2}, s{sIDX}, 7")
A(f"    s_lshl_b32 s{sT2}, s{sT2}, 7")
A(f"    s_add_u32 s{sT1}, s{sT1}, s{sT2}")
A(f"    v_lshrrev_b32 v3, 3, v{vLANE}")
A(f"    v_lshlrev_b32 v9, 13, v3")
A(f"    v_and_b32 v10, 7, v{vLANE}")
A(f"    v_lshlrev_b32 v11, 4, v10")
A(f"    v_add3_u32 v9, v9, v11, s{sT1}")
for i in range(16):
    if i: A(f"    v_add_u32 v9, 0x10000, v9")
    A(f"    global_load_dwordx4 {vr(hWQ+4*i,4)}, v9, {sp(sWQ)} nt      ; rows 8i + (l>>3)")
A("    s_barrier")
hts("h issued")
A(f"    s_waitcnt vmcnt(16)")
hts("h x arrived")
hxa = list(range(40, 48))
for i in range(4): unpack(hxa[2 * i], hxa[2 * i + 1], 24 + i)
unpack(30, 31, 28)
ln_stats(hxa, 48, 49, [50, 51, 52, 53])
ln_apply([30, 31], 48, 49, 50)
A(f"    v_cvt_pk_bf16_f32 v32, v30, v31")
A(f"    ds_write_b32 v8, v32 offset:{LDS_HS}")
A("    s_waitcnt lgkmcnt(0)")
A(f"    s_add_u32 s{sTAG}, s{sTAG}, 1")
A(f"    s_addc_u32 s{sTAG+1}, s{sTAG+1}, 0")
A(f"    v_lshrrev_b32 v12, 4, v{vLANE}           ; slab")
A(f"    v_lshlrev_b32 v13, 4, v12")
hA = 130
for ks in range(4):
    A(f"    ds_read_b128 {vr(hA+4*ks,4)}, v13 offset:{LDS_HS + ks*64}")
for i in range(16):
    A(f"    s_waitcnt vmcnt({15 - i})")
    A(f"    ds_write_b128 v2, {vr(hWQ+4*i,4)} offset:{LDS_WQ + i*1024}")
A(f"    v_and_b32 v14, 15, v{vLANE}")
A(f"    v_lshrrev_b32 v15, 2, v14")
A(f"    v_lshl_add_u32 v15, v12, 3, v15")
A(f"    v_lshlrev_b32 v15, 7, v15")
A(f"    v_and_b32 v14, 3, v14")
A(f"    v_lshl_add_u32 v15, v14, 3, v15")
A("    s_waitcnt lgkmcnt(0)")
hB = 64
hD = 146
def h_reads(j):
    for ks in range(4):
        r = hB + 16 * j + 4 * ks
        A(f"    ds_read_b64_tr_b16 {vr(r,2)}, v15 offset:{LDS_WQ + ks*4096 + j*32}")
        A(f"    ds_read_b64_tr_b16 {vr(r+2,2)}, v15 offset:{LDS_WQ + ks*4096 + j*32 + 512}")
def h_mfma(j):
    for ks in range(4):
        c = "0" if ks == 0 else vr(hD + 4 * j, 4)
        A(f"    v_mfma_f32_16x16x32_bf16 {vr(hD+4*j,4)}, {vr(hA+4*ks,4)}, {vr(hB+16*j+4*ks,4)}, {c}")
h_reads(0); h_reads(1)
A("    s_waitcnt lgkmcnt(8)"); h_mfma(0); h_reads(2)
A("    s_waitcnt lgkmcnt(8)"); h_mfma(1); h_reads(3)
A("    s_waitcnt lgkmcnt(8)"); h_mfma(2)
A("    s_waitcnt lgkmcnt(0)"); h_mfma(3)
hts("h fma done")
A(f"    s_lshl_b32 s{sT0}, s{sG}, 14")
A(f"    s_lshr_b32 s{sT1}, s{sIDX}, 3")
A(f"    s_lshl_b32 s{sT1}, s{sT1}, 12")
A(f"    s_add_u32 s{sT0}, s{sT0}, s{sT1}")
A(f"    s_and_b32 s{sT1}, s{sIDX}, 7")
A(f"    s_lshl_b32 s{sT1}, s{sT1}, 9")
A(f"    s_add_u32 s{sT0}, s{sT0}, s{sT1}")
A(f"    s_add_u32 s{sT0}, s{sT0}, {QT_OFF}")
A(f"    v_lshlrev_b32 v17, 3, v{vLANE}")
A(f"    v_add_u32 v17, s{sT0}, v17")
A(f"    v_and_b32 v18, 0x31, v{vLANE}")
nops(6)
for j in range(4):
    A(f"    v_mov_b32_dpp v{hD+4*j+1}, v{hD+4*j} quad_perm:[1,1,3,3] row_mask:0xf bank_mask:0xf")
    A(f"    v_mov_b32 v{hD+4*j+2}, s{sTAG}")
    A(f"    v_mov_b32 v{hD+4*j+3}, s{sTAG+1}")
A(f"    v_cmp_eq_u32 vcc, 0, v18")
A(f"    s_and_saveexec_b64 {sp(sEX)}, vcc")
for j in range(4):
    A(f"    global_store_dwordx4 v17, {vr(hD+4*j,4)}, {sp(sWS)} offset:{j*128} sc1")
A(f"    s_mov_b64 exec, {sp(sEX)}")
hts("h q published")
A("    s_setprio 0")
for r in range(4, 8): A(f"    v_mov_b32 v{r}, -1")
def clear_local(flag):
    for L in range(2):
        set_layer(L)
        A(f"    s_mul_i32 s{sT0}, s{sIDX}, {CLR_PER_CU}")
        A(f"    v_add_u32 v36, s{sT0}, v2")
        for i in range(CLR_PER_CU // 1024):
            if i and i % 4 == 0:
                A(f"    v_add_u32 v36, 4096, v36")
            A(f"    global_store_dwordx4 v36, v[4:7], {sp(sLOC)} offset:{(i%4)*1024}{flag}")
clear_local(" sc1")
A(f"    s_lshl_b32 s{sT0}, s{sG}, 11")
A(f"    s_lshl_b32 s{sT1}, s{sIDX}, 6")
A(f"    s_add_u32 s{sT0}, s{sT0}, s{sT1}")
A(f"    s_add_u32 s{sT0}, s{sT0}, {LAYER_BASE + P_OFF:#x}")
A(f"    v_add_u32 v13, s{sT0}, v2")
A(f"    v_add_u32 v14, {LAYER_STRIDE:#x}, v13")
A(f"    s_lshl_b32 s{sT0}, s2, 6")
A(f"    s_add_u32 s{sT0}, s{sT0}, {LAYER_BASE + Y_OFF:#x}")
A(f"    v_add_u32 v15, s{sT0}, v2")
A(f"    v_cmp_gt_u32 vcc, 4, v{vLANE}")
A(f"    s_and_saveexec_b64 {sp(sEX)}, vcc")
A(f"    global_store_dwordx4 v13, v[4:7], {sp(sWS)} sc1")
A(f"    global_store_dwordx4 v14, v[4:7], {sp(sWS)} sc1")
A(f"    global_store_dwordx4 v15, v[4:7], {sp(sWS)} sc1")
A(f"    s_mov_b64 exec, {sp(sEX)}")
A(f"    v_mov_b32 v12, s{sTAG}")
A(f"    v_mov_b32 v13, s{sTAG+1}")
A(f"    s_lshl_b32 s{sT0}, s{sG}, 14")
A(f"    s_add_u32 s{sT0}, s{sT0}, {QT_OFF}")
A(f"    v_add_u32 v40, s{sT0}, v2")
for kb in range(1, 4):
    A(f"    v_add_u32 v{40+kb}, {kb*4096}, v40")
A(f"    s_getreg_b32 s{sT2}, hwreg(HW_REG_XCC_ID)")
A(f"    s_and_b32 s{sT2}, s{sT2}, 0xffff")
A(f"    v_mov_b32 v14, s{sT2}")
A(f"    v_mov_b32 v15, 0")
A(f"    s_lshl_b32 s{sT0}, s{sCU}, 6")
A(f"    v_mov_b32 v16, s{sT0}")
A(f"    s_lshl_b32 s{sT1}, s{sG}, 11")
A(f"    v_and_b32 v17, 31, v{vLANE}")
A(f"    v_lshlrev_b32 v17, 6, v17")
A(f"    v_add_u32 v17, s{sT1}, v17")
A(f"    s_mov_b32 s{sTO}, 0x8000")
A(f"    s_mov_b32 s{sT3}, 0")
A("L_h_qt:")
for kb in range(4):
    for m in range(4):
        A(f"    global_load_dwordx4 {vr(64+16*kb+4*m,4)}, v{40+kb}, {sp(sWS)} offset:{m*1024} sc1")
A("    s_waitcnt vmcnt(0)")
A(f"    s_cmp_eq_u32 s{sT3}, 0")
A("    s_cbranch_scc0 L_h_qt_nf")
A(f"    s_mov_b32 s{sT3}, 1")
A(f"    v_cmp_eq_u32 vcc, 0, v{vLANE}")
A(f"    s_and_saveexec_b64 {sp(sEX)}, vcc")
A(f"    global_store_dwordx4 v16, v[12:15], {sp(sWS)} sc1")
A(f"    s_mov_b64 exec, {sp(sEX)}")
A("L_h_qt_nf:")
A(f"    v_mov_b32 v44, 0")
for i in range(16):
    A(f"    v_xor_b32 v45, v12, v{64+4*i+2}")
    A(f"    v_xor_b32 v46, v13, v{64+4*i+3}")
    A(f"    v_or3_b32 v44, v44, v45, v46")
A(f"    v_cmp_ne_u32 vcc, 0, v44")
A("    s_cbranch_vccz L_h_qtd")
A(f"    s_sub_u32 s{sTO}, s{sTO}, 1")
A("    s_cbranch_scc0 L_h_qt")
A("L_h_qtd:")
for m in range(4):
    for kb in range(1, 4):
        A(f"    v_add_f32 v{64+4*m}, v{64+4*m}, v{64+16*kb+4*m}")
        A(f"    v_add_f32 v{65+4*m}, v{65+4*m}, v{65+16*kb+4*m}")
    A(f"    v_cvt_pk_bf16_f32 v{44+m}, v{64+4*m}, v{65+4*m}")
    A(f"    ds_write_b32 v8, v{44+m} offset:{LDS_QS + m*256}")
hts("h q gathered")
A("    s_waitcnt vmcnt(0) lgkmcnt(0)")
hts("h clears acked")
def flag_round(off, lab, barrier=False):
    A(f"    v_add_u32 v19, {off}, v17")
    if barrier:
        A("    s_barrier")
    A(f"    s_mov_b32 s{sTO}, 0x8000")
    A(f"{lab}:")
    A(f"    global_load_dwordx4 v[20:23], v19, {sp(sWS)} sc1")
    A("    s_waitcnt vmcnt(0)")
    A(f"    v_cmp_ne_u32 vcc, v20, v12")
    A(f"    v_cmp_ne_u32 {sp(sCM)}, v21, v13")
    A(f"    s_or_b64 vcc, vcc, {sp(sCM)}")
    A(f"    s_cbranch_vccz {lab}_d")
    A(f"    s_sub_u32 s{sTO}, s{sTO}, 1")
    A(f"    s_cbranch_scc0 {lab}")
    A(f"{lab}_d:")
flag_round(FL1, "L_h_f1", True)
A(f"    v_cmp_ne_u32 vcc, v22, v14")
A(f"    s_mov_b32 s{sMODE}, 1")
if FORCE_SLOW:
    A("    s_branch L_h_mode")
A("    s_cbranch_vccnz L_h_mode")
A(f"    s_mov_b32 s{sMODE}, 0")
A(f"    v_lshlrev_b32 v37, 6, v{vLANE}")
for L in range(2):
    set_layer(L)
    A(f"    s_mul_i32 s{sT0}, s{sIDX}, {CLR_PER_CU}")
    A(f"    v_add_u32 v36, s{sT0}, v37")
    A(f"    global_load_dword v{38+2*L}, v36, {sp(sLOC)}")
    A(f"    v_add_u32 v36, 4096, v36")
    A(f"    global_load_dword v{39+2*L}, v36, {sp(sLOC)}")
A("L_h_mode:")
hts("h mode")
A(f"    v_mov_b32 v24, {LDS_MODE}")
A(f"    v_mov_b32 v25, s{sMODE}")
A(f"    ds_write_b32 v24, v25")
A("    s_waitcnt lgkmcnt(0)")
A("    s_barrier                    ; B1")
A(f"    s_cmp_eq_u32 s{sIDX}, 0")
A("    s_cbranch_scc0 L_h_end")
A(f"    s_lshl_b32 s{sT0}, s{sG}, 2")
A(f"    v_mov_b32 v24, s{sT0}")
A(f"    v_mov_b32 v25, 1")
A(f"    v_cmp_eq_u32 vcc, 0, v{vLANE}")
A(f"    s_and_saveexec_b64 {sp(sEX)}, vcc")
A(f"    global_store_dword v24, v25, {sp(sDBG)} offset:192 sc1")
A("L_h_end:")
A("    s_mov_b64 exec, -1")
A("    s_waitcnt vmcnt(0)")
if TS:
    A(f"    s_lshl_b32 s{sT0}, s2, 11")
    A(f"    s_add_u32 s{sT0}, s{sT0}, {DUMP_BASE + 31 * 0x400000}")
    A(f"    v_lshlrev_b32 v255, 2, v{vLANE}")
    A(f"    v_add_u32 v255, s{sT0}, v255")
    A(f"    global_store_dword v255, v254, {sp(sWS)}")
    A("    s_waitcnt vmcnt(0)")
A("L_end:")
A("    s_endpgm")
A('.section .rodata,"a"')
A(".p2align 6")
A(f".amdhsa_kernel {KNAME}")
A("  .amdhsa_next_free_vgpr 256")
A("  .amdhsa_next_free_sgpr 80")
A("  .amdhsa_accum_offset 256")
A("  .amdhsa_group_segment_fixed_size 0")
A("  .amdhsa_kernarg_size 104")
A("  .amdhsa_user_sgpr_count 2")
A("  .amdhsa_user_sgpr_kernarg_segment_ptr 1")
A("  .amdhsa_system_sgpr_workgroup_id_x 1")
A(".end_amdhsa_kernel")

dst = [a for a in sys.argv[1:] if not a.startswith("--")]
path = dst[0] if dst else "interleave_layers__sliding_block_cached__mixer_token_mlp__decode.s"
open(path, "w").write("\n".join(out) + "\n")
print("wrote", path, len(out), "lines")
```

```python
import sys, struct

KNAME = "interleave_layers__sliding_block_cached__mixer_token_mlp__decode_kernel"
DEBUG_DUMP = "--dump" in sys.argv
FORCE_SLOW = "--slow" in sys.argv
TS = "--ts" in sys.argv

out = []
def A(s=""):
    out.append(s)
def f32bits(x):
    return struct.unpack("<I", struct.pack("<f", x))[0]
_lbl = [0]; _pc = [0]; _ts = [0]
def newlabel(p="L"):
    _lbl[0] += 1
    return f"{p}_{_lbl[0]}"

FL1 = 0x0000
FL2 = 0x4000
EPOCH_OFF = 0x8000
QT_OFF = 0x10000
LAYER_BASE = 0x100000
LAYER_STRIDE = 0x400000
GRP_STRIDE = 0x40000
CS = 2048 + 128
Q_OFF = 0x0000
ML_OFF = 0x2000
XL_OFF = 0x2400
XL2_OFF = 0x2C00
O_OFF = 0x3400
R_OFF = O_OFF + 32 * CS
GRP_USED = R_OFF + 32 * CS
CLR_PER_CU = (GRP_USED + 32 * 1024 - 1) // (32 * 1024) * 1024
assert CLR_PER_CU * 32 <= GRP_STRIDE
P_OFF = 0x200000
Y_OFF = 0x210000
DUMP_BASE = 0x4000000

LDS_V = 0x0000
LDS_CMB = 0x0000
LDS_MLW = 0x2000
LDS_CMB2 = 0x4000
LDS_QS = 0x8000
LDS_MODE = 0x8400
LDS_YS = 0x8410
LDS_HS = 0x8500
LDS_WQ = 0x9000
LDS_WO = 0xD000
LDS_HW = 0x8800
LDS_BYTES = 0x11000

sX, sK, sV, sWQ, sWO, sBX, sW1, sB1, sW2, sB2, sOUT, sDBG, sWS = [4 + 2 * i for i in range(13)]
sG, sIDX, sWAVE, sCU, sMODE, sTO = 30, 31, 32, 33, 34, 35
sLOC = 36; sMY = 38; sGL = 40
sT0, sT1, sT2, sT3 = 42, 43, 44, 45
sO = 46
sEX = 50
sC = 52
sCM = 64
sTAG = 66
def sp(r): return f"s[{r}:{r+1}]"

vTID, vLANE = 0, 1
vK = 64; vVT = 96; vWQ = 128; vWO = 144
vW1, vB1, vW2 = 160, 167, 174
vB2 = 181
vXM = 182
vL16 = 184
vT8 = 185
vAO = 186
vAML = 187
vAP = 188
vAY = 189
vAXR = 190
vAPUB = 191
vAO2 = 192
def vr(r, n): return f"v[{r}:{r+n-1}]"

def nops(n):
    while n > 0:
        k = min(n, 16)
        A(f"    s_nop {k-1}")
        n -= k

DPP = {1: "quad_perm:[1,0,3,2]", 2: "quad_perm:[2,3,0,1]", 4: "row_ror:4", 8: "row_ror:8"}
def xreduce(regs, op, tmp, bits=(1, 2, 4, 8, 16, 32)):
    n = len(regs)
    for b in bits:
        if b <= 8:
            if n < 3: nops(3 - n)
            for r in regs:
                A(f"    {op}_dpp v{r}, v{r}, v{r} {DPP[b]} row_mask:0xf bank_mask:0xf")
        else:
            sw = "v_permlane16_swap_b32" if b == 16 else "v_permlane32_swap_b32"
            for r, t in zip(regs, tmp):
                A(f"    v_mov_b32 v{t}, v{r}")
            nops(2 if n < 2 else 1)
            for r, t in zip(regs, tmp):
                A(f"    {sw} v{t}, v{r}")
            nops(1)
            for r, t in zip(regs, tmp):
                A(f"    {op} v{r}, v{r}, v{t}")

def bf16r_pair(a, b, t):
    A(f"    v_cvt_pk_bf16_f32 v{t}, v{a}, v{b}")
    A(f"    v_lshlrev_b32 v{a}, 16, v{t}")
    A(f"    v_and_b32 v{b}, 0xffff0000, v{t}")
def bf16r(a, t):
    A(f"    v_cvt_pk_bf16_f32 v{t}, v{a}, v{a}")
    A(f"    v_lshlrev_b32 v{a}, 16, v{t}")
def unpack(dst_lo, dst_hi, src):
    A(f"    v_lshlrev_b32 v{dst_lo}, 16, v{src}")
    A(f"    v_and_b32 v{dst_hi}, 0xffff0000, v{src}")

def max_chain(dst, regs):
    regs = list(regs)
    if len(regs) == 1:
        A(f"    v_mov_b32 v{dst}, v{regs[0]}"); return
    if len(regs) == 2:
        A(f"    v_max_u32 v{dst}, v{regs[0]}, v{regs[1]}"); return
    A(f"    v_max3_u32 v{dst}, v{regs[0]}, v{regs[1]}, v{regs[2]}")
    rest = regs[3:]
    while len(rest) >= 2:
        A(f"    v_max3_u32 v{dst}, v{dst}, v{rest[0]}, v{rest[1]}")
        rest = rest[2:]
    if rest:
        A(f"    v_max_u32 v{dst}, v{dst}, v{rest[0]}")

def ts(name=""):
    if not TS: return
    if "--tsl" in sys.argv and name not in ("entry", "B2"): return
    k = _ts[0]; _ts[0] += 1
    A(f"    s_memrealtime s[70:71]")
    A(f"    s_waitcnt lgkmcnt(0)")
    A(f"    v_writelane_b32 v254, s70, {k}")
_hts = [0]
def hts(name=""):
    if not TS: return
    if "--tsl" in sys.argv: return
    k = _hts[0]; _hts[0] += 1
    A(f"    s_memrealtime s[70:71]")
    A(f"    s_waitcnt lgkmcnt(0)")
    A(f"    v_writelane_b32 v254, s70, {k}")
def ts_flush():
    if not TS: return
    A(f"    s_lshl_b32 s{sT0}, s2, 11")
    A(f"    s_lshl_b32 s{sT1}, s{sWAVE}, 8")
    A(f"    s_add_u32 s{sT0}, s{sT0}, s{sT1}")
    A(f"    s_add_u32 s{sT0}, s{sT0}, {DUMP_BASE + 30 * 0x400000}")
    A(f"    v_lshlrev_b32 v255, 2, v{vLANE}")
    A(f"    v_add_u32 v255, s{sT0}, v255")
    A(f"    global_store_dword v255, v254, {sp(sWS)}")
    A(f"    global_store_dword v255, v253, {sp(sWS)} offset:1024")
    A("    s_waitcnt vmcnt(0)")
def diag_flush():
    if "--diag" not in sys.argv: return
    L = newlabel("dg")
    A(f"    s_cmp_eq_u32 s2, 37")
    A(f"    s_cbranch_scc0 {L}")
    A(f"    s_cmp_eq_u32 s{sWAVE}, 0")
    A(f"    s_cbranch_scc0 {L}")
    A(f"    v_readlane_b32 s72, v254, 0")
    A("    s_nop 3")
    A(f"    v_subrev_u32 v255, s72, v254")
    A(f"    v_mul_u32_u24 v252, 86, v{vLANE}")
    A(f"    v_lshrrev_b32 v252, 8, v252            ; lane/3")
    A(f"    v_mul_u32_u24 v251, 3, v252")
    A(f"    v_cmp_eq_u32 vcc, v251, v{vLANE}")
    A(f"    v_cmp_gt_u32 {sp(sCM)}, 16, v252")
    A(f"    s_and_b64 vcc, vcc, {sp(sCM)}")
    A(f"    v_lshlrev_b32 v252, 2, v252")
    A(f"    s_and_saveexec_b64 {sp(sEX)}, vcc")
    A(f"    global_store_dword v252, v255, {sp(sDBG)}")
    A(f"    s_mov_b64 exec, {sp(sEX)}")
    A("    s_waitcnt vmcnt(0)")
    A(f"{L}:")

def dump(slot, regs):
    if not DEBUG_DUMP: return
    A(f"    s_lshl_b32 s{sT0}, s2, 14")
    A(f"    s_add_u32 s{sT0}, s{sT0}, {DUMP_BASE + slot * 0x400000}")
    A(f"    v_lshlrev_b32 v255, 6, v{vTID}")
    A(f"    v_add_u32 v255, s{sT0}, v255")
    for i, r in enumerate(regs):
        A(f"    global_store_dword v255, v{r}, {sp(sWS)} offset:{4*i}")
    A("    s_waitcnt vmcnt(0)")

def poll(loads, check_regs, vtmp, extra_check=None, name="", local=False):
    L = newlabel("poll"); D = newlabel("polld"); C = newlabel("pollc")
    A(f"    s_mov_b32 s{sTO}, 0x8000")
    if "--ack" in sys.argv:
        ts("  pre-ack " + name)
        A("    s_waitcnt vmcnt(0)")
    ts("  poll begin " + name)
    if local and "--plain1" in sys.argv:
        for l in loads: A("    " + l.replace(" sc1", ""))
        A(f"    s_branch {C}")
    A(f"{L}:")
    for l in loads: A("    " + l)
    A(f"{C}:")
    A("    s_waitcnt vmcnt(0)")
    max_chain(vtmp, check_regs)
    A(f"    v_cmp_eq_u32 vcc, -1, v{vtmp}")
    if extra_check: extra_check()
    A(f"    s_cbranch_vccz {D}")
    A(f"    s_sub_u32 s{sTO}, s{sTO}, 1")
    A(f"    s_cbranch_scc0 {L}")
    A(f"{D}:")
    ts("  poll end " + name)
    if TS and "--tsl" not in sys.argv:
        k = _pc[0]; _pc[0] += 1
        A(f"    s_sub_u32 s72, 0x8000, s{sTO}")
        A(f"    v_writelane_b32 v253, s72, {k}")

def store_local(stores):
    S = newlabel("sl"); D = newlabel("sld")
    A(f"    s_cmp_eq_u32 s{sMODE}, 0")
    A(f"    s_cbranch_scc0 {S}")
    for s in stores: A("    " + s)
    A(f"    s_branch {D}")
    A(f"{S}:")
    for s in stores: A("    " + s + " sc1")
    A(f"{D}:")

def set_layer(L):
    base = LAYER_BASE + L * LAYER_STRIDE
    A(f"    ; ---- layer {L} bases")
    A(f"    s_add_u32 s{sGL}, s{sWS}, {base}")
    A(f"    s_addc_u32 s{sGL+1}, s{sWS+1}, 0")
    A(f"    s_lshl_b32 s{sT0}, s{sG}, 18            ; g*GRP_STRIDE")
    A(f"    s_add_u32 s{sLOC}, s{sGL}, s{sT0}")
    A(f"    s_addc_u32 s{sLOC+1}, s{sGL+1}, 0")

def ln_stats(xregs, vmean, vrs, t):
    s1, s2, t0, t1 = t[0], t[1], t[2], t[3]
    A(f"    v_add_f32 v{s1}, v{xregs[0]}, v{xregs[1]}")
    A(f"    v_mul_f32 v{s2}, v{xregs[0]}, v{xregs[0]}")
    A(f"    v_fmac_f32 v{s2}, v{xregs[1]}, v{xregs[1]}")
    for r in xregs[2:]:
        A(f"    v_add_f32 v{s1}, v{s1}, v{r}")
        A(f"    v_fmac_f32 v{s2}, v{r}, v{r}")
    xreduce([s1, s2], "v_add_f32", [t0, t1])
    A(f"    v_mul_f32 v{s1}, {f32bits(1/512):#x}, v{s1}")
    A(f"    v_mul_f32 v{s2}, {f32bits(1/512):#x}, v{s2}")
    A(f"    v_fma_f32 v{s2}, -v{s1}, v{s1}, v{s2}")
    A(f"    v_max_f32 v{s2}, 0, v{s2}")
    bf16r_pair(s1, s2, t0)
    A(f"    v_add_f32 v{s2}, {f32bits(1e-5):#x}, v{s2}")
    bf16r(s2, t0)
    A(f"    v_sqrt_f32 v{s2}, v{s2}")
    A("    s_nop 0")
    bf16r(s2, t0)
    A(f"    v_rcp_f32 v{vrs}, v{s2}")
    A(f"    v_mov_b32 v{vmean}, v{s1}")
    A("    s_nop 0")

def bc(r):
    return (f"v[{r & ~1}:{(r & ~1) + 1}]", r & 1)
def pk2(op, d, a, b, neg_b=False):
    t, sel = bc(b)
    neg = " neg_lo:[0,1] neg_hi:[0,1]" if neg_b else ""
    A(f"    {op} {vr(d,2)}, {vr(a,2)}, {t} op_sel:[0,{sel}] op_sel_hi:[1,{sel}]{neg}")

def ln_apply(regs, vmean, vrs, t):
    for a, b in zip(regs[0::2], regs[1::2]):
        assert b == a + 1 and a % 2 == 0
        pk2("v_pk_add_f32", a, a, vmean, neg_b=True)
        bf16r_pair(a, b, t)
        pk2("v_pk_mul_f32", a, a, vrs)
        bf16r_pair(a, b, t)

hdr = open("interleave_layers__sliding_block_cached__mixer_token_mlp__decode.s.ref").read().split("\n")
for line in hdr:
    if line.startswith("; @launch"):
        A(f"; @launch grid=(256,1,1) block=(320,1,1) lds={LDS_BYTES}")
        break
    A(line)
A('.amdgcn_target "amdgcn-amd-amdhsa--gfx950"')
A(".text")
A(f".globl {KNAME}")
A(".p2align 8")
A(f".type {KNAME},@function")
A(f"{KNAME}:")
A("    s_cmp_ge_u32 s2, 256")
A("    s_cbranch_scc1 L_end")
A("    s_load_dwordx16 s[4:19], s[0:1], 0")
A("    s_load_dwordx8 s[20:27], s[0:1], 64")
A("    s_load_dwordx2 s[28:29], s[0:1], 96")
A(f"    s_and_b32 s{sG}, s2, 7")
A(f"    s_lshr_b32 s{sIDX}, s2, 3")
A(f"    s_lshl_b32 s{sCU}, s{sG}, 5")
A(f"    s_add_u32 s{sCU}, s{sCU}, s{sIDX}")
A(f"    v_and_b32 v{vLANE}, 63, v0")
A(f"    v_lshrrev_b32 v2, 6, v0")
A("    s_nop 0")
A(f"    v_readfirstlane_b32 s{sWAVE}, v2")
A("    s_waitcnt lgkmcnt(0)")
A(f"    s_load_dwordx2 {sp(sTAG)}, {sp(sWS)}, {EPOCH_OFF}")
A(f"    s_cmp_eq_u32 s{sWAVE}, 4")
A("    s_cbranch_scc1 L_helper")
if TS:
    A("    v_mov_b32 v254, 0")
    A("    v_mov_b32 v253, 0")
ts("entry")

vXA = 2; vXR = 6; vXP = 8
A("    ; ---- prologue loads")
A(f"    v_lshlrev_b32 v{vL16}, 4, v{vLANE}")
A(f"    s_lshr_b32 s{sT0}, s{sIDX}, 3            ; kb")
A(f"    s_lshl_b32 s{sT1}, s{sT0}, 9")
A(f"    v_lshlrev_b32 v12, 3, v{vLANE}")
A(f"    v_add_u32 v{vAXR}, s{sT1}, v12")
A(f"    v_and_b32 v13, 7, v{vLANE}")
A(f"    v_lshlrev_b32 v13, 2, v13")
A(f"    s_lshl_b32 s{sT1}, s{sIDX}, 5")
A(f"    v_add_u32 v13, s{sT1}, v13")
A("    s_barrier")
A(f"    global_load_dword v{vXP}, v13, {sp(sX)}")
A(f"    s_lshl_b32 s{sT1}, s{sG}, 24")
A(f"    s_add_u32 s{sT1}, s{sT1}, {(65536-4096)*256}")
A(f"    s_lshl_b32 s{sT2}, s{sIDX}, 15")
A(f"    s_add_u32 s{sT1}, s{sT1}, s{sT2}")
A(f"    s_lshl_b32 s{sT2}, s{sWAVE}, 13")
A(f"    s_add_u32 s{sT1}, s{sT1}, s{sT2}")
A(f"    v_and_b32 v16, 15, v{vLANE}")
A(f"    v_lshlrev_b32 v16, 8, v16")
A(f"    v_lshrrev_b32 v17, 4, v{vLANE}")
A(f"    v_lshlrev_b32 v17, 4, v17")
A(f"    v_add3_u32 v16, v16, v17, s{sT1}")
A(f"    v_add_u32 v17, 4096, v16")
for T in range(2):
    for j in range(4):
        A(f"    global_load_dwordx4 {vr(vK+16*T+4*j,4)}, v{16+T}, {sp(sK)} offset:{j*64} nt")
vVS = 200
A(f"    v_add_u32 v18, s{sT1}, v{vL16}")
A(f"    v_add_u32 v19, 4096, v18")
for i in range(8):
    A(f"    global_load_dwordx4 {vr(vVS+4*i,4)}, v{18+i//4}, {sp(sV)} offset:{(i%4)*1024} nt")
N_AFTER_V = 0

A("    ; ---- persistent offsets")
A(f"    v_lshlrev_b32 v{vT8}, 3, v{vTID}")
A(f"    s_mul_i32 s{sT0}, s{sIDX}, {CS}")
A(f"    v_add_u32 v{vAO}, s{sT0}, v{vL16}")
A(f"    v_and_b32 v23, 15, v{vLANE}")
A(f"    v_lshlrev_b32 v24, 6, v23")
A(f"    v_lshrrev_b32 v25, 4, v{vLANE}")
A(f"    v_lshlrev_b32 v25, 4, v25")
A(f"    v_add3_u32 v{vAO2}, v24, v25, s{sT0}")
A(f"    s_lshr_b32 s{sT0}, s{sIDX}, 3            ; head")
A(f"    s_lshl_b32 s{sT0}, s{sT0}, 8")
A(f"    s_add_u32 s{sT0}, s{sT0}, {ML_OFF}")
A(f"    v_lshlrev_b32 v23, 3, v23")
A(f"    v_add_u32 v{vAML}, s{sT0}, v23")
A(f"    v_lshrrev_b32 v23, 3, v{vLANE}")
A(f"    v_lshlrev_b32 v24, 11, v23")
A(f"    v_and_b32 v25, 7, v{vLANE}")
A(f"    v_lshlrev_b32 v26, 3, v25")
A(f"    s_lshl_b32 s{sT0}, s{sIDX}, 6")
A(f"    s_add_u32 s{sT0}, s{sT0}, {P_OFF:#x}")
A(f"    v_add3_u32 v{vAP}, v24, v26, s{sT0}")
A(f"    v_and_b32 v23, 3, v23")
A(f"    v_lshlrev_b32 v23, 3, v23")
A(f"    v_lshlrev_b32 v26, 6, v25")
A(f"    s_lshl_b32 s{sT0}, s{sIDX}, 9")
A(f"    s_add_u32 s{sT0}, s{sT0}, {Y_OFF:#x}")
A(f"    v_add_u32 v{vAY}, s{sT0}, v26")
A(f"    v_lshrrev_b32 v23, 3, v{vTID}")
A(f"    s_mov_b32 s{sT0}, {CS}")
A(f"    v_mul_lo_u32 v23, v23, s{sT0}")
A(f"    v_and_b32 v24, 7, v{vTID}")
A(f"    v_lshlrev_b32 v24, 3, v24")
A(f"    s_lshl_b32 s{sT0}, s{sIDX}, 6")
A(f"    v_add3_u32 v{vAPUB}, v23, v24, s{sT0}")

def late_loads():
    A(f"    s_lshl_b32 s{sT1}, s{sG}, 19")
    A(f"    s_lshl_b32 s{sT2}, s{sIDX}, 14")
    A(f"    s_add_u32 s{sT1}, s{sT1}, s{sT2}")
    A(f"    s_lshl_b32 s{sT2}, s{sWAVE}, 8")
    A(f"    s_add_u32 s{sT1}, s{sT1}, s{sT2}")
    A(f"    v_lshrrev_b32 v58, 4, v{vLANE}")
    A(f"    v_lshlrev_b32 v58, 10, v58")
    A(f"    v_and_b32 v59, 15, v{vLANE}")
    A(f"    v_lshlrev_b32 v59, 4, v59")
    A(f"    v_add3_u32 v58, v58, v59, s{sT1}")
    for p in range(4):
        if p: A(f"    v_add_u32 v58, 4096, v58")
        A(f"    global_load_dwordx4 {vr(232+4*p,4)}, v58, {sp(sWO)} nt")
    A(f"    v_lshlrev_b32 v59, 1, v{vTID}")
    for i in range(7):
        A(f"    global_load_ushort v{vW1+i}, v59, {sp(sW1)} offset:{512*i}")
        A(f"    global_load_ushort v{vB1+i}, v59, {sp(sB1)} offset:{512*i}")
        A(f"    global_load_ushort v{vW2+i}, v59, {sp(sW2)} offset:{512*i}")
    A(f"    v_mov_b32 v60, 0")
    A(f"    global_load_ushort v{vB2}, v60, {sp(sB2)}")


def cmb_read4(dst, off):
    for w in range(4):
        A(f"    ds_read_b64 {vr(dst+2*w,2)}, v{vT8} offset:{off + w*2048}")

def q_frags():
    A(f"    v_lshrrev_b32 v47, 4, v{vLANE}")
    A(f"    v_and_b32 v48, 15, v{vLANE}")
    A(f"    v_lshrrev_b32 v49, 2, v48")
    A(f"    v_lshl_add_u32 v47, v47, 3, v49")
    A(f"    v_lshlrev_b32 v47, 7, v47")
    A(f"    v_and_b32 v48, 3, v48")
    A(f"    v_lshl_add_u32 v47, v48, 3, v47")
    A(f"    s_lshl_b32 s{sT0}, s{sWAVE}, 5")
    A(f"    v_add_u32 v47, s{sT0}, v47")
    for ks in range(4):
        A(f"    ds_read_b64_tr_b16 {vr(vWQ+4*ks,2)}, v47 offset:{LDS_WQ + ks*4096}")
        A(f"    ds_read_b64_tr_b16 {vr(vWQ+4*ks+2,2)}, v47 offset:{LDS_WQ + ks*4096 + 512}")

def q_phase(L, xa, xr):
    vm, vrs = 40, 41
    ln_stats(xa, vm, vrs, [42, 43, 44, 45])
    ln_apply(xr, vm, vrs, 42)
    A(f"    v_cvt_pk_bf16_f32 v46, v{xr[0]}, v{xr[1]}")
    A(f"    s_lshl_b32 s{sT0}, s{sWAVE}, 8")
    A(f"    v_lshlrev_b32 v47, 2, v{vLANE}")
    A(f"    v_add_u32 v47, s{sT0}, v47")
    A(f"    ds_write_b32 v47, v46 offset:{LDS_HW}")
    A(f"    v_lshrrev_b32 v48, 4, v{vLANE}")
    A(f"    v_lshlrev_b32 v48, 4, v48")
    A(f"    v_add_u32 v48, s{sT0}, v48")
    A("    s_waitcnt lgkmcnt(0)")
    for ks in range(4):
        A(f"    ds_read_b128 {vr(2+4*ks,4)}, v48 offset:{LDS_HW + ks*64}")
    A(f"    s_lshr_b32 s{sT0}, s{sIDX}, 3")
    A(f"    s_lshl_b32 s{sT0}, s{sT0}, 11")
    A(f"    s_and_b32 s{sT1}, s{sIDX}, 7")
    A(f"    s_lshl_b32 s{sT1}, s{sT1}, 8")
    A(f"    s_add_u32 s{sT0}, s{sT0}, s{sT1}")
    A(f"    s_lshl_b32 s{sT1}, s{sWAVE}, 6")
    A(f"    s_add_u32 s{sT0}, s{sT0}, s{sT1}")
    A(f"    v_lshlrev_b32 v49, 2, v{vLANE}")
    A(f"    v_add_u32 v49, s{sT0}, v49")
    A("    s_waitcnt lgkmcnt(0)")
    for ks in range(4):
        A(f"    v_mfma_f32_16x16x32_bf16 v[52:55], {vr(2+4*ks,4)}, {vr(vWQ+4*ks,4)}, {'v[52:55]' if ks else 0}")
    A(f"    v_cmp_gt_u32 vcc, 16, v{vLANE}")
    A(f"    s_and_saveexec_b64 {sp(sEX)}, vcc")
    nops(8)
    store_local([f"global_store_dword v49, v52, {sp(sLOC)}"])
    A(f"    s_mov_b64 exec, {sp(sEX)}")

def q_gather(tagged=False):
    base = 2
    loads = []; regs = []
    if not tagged:
        A(f"    v_add_u32 v60, 4096, v{vT8}")
        for kb in range(4):
            r = base + 2 * kb
            loads.append(f"global_load_dwordx2 {vr(r,2)}, v{vT8 if kb < 2 else 60}, {sp(sLOC)} offset:{(kb%2)*2048} sc1")
            regs += [r, r + 1]
        poll(loads, regs, 40, name="Q", local=True)
        for i in range(1, 4):
            A(f"    v_add_f32 v{base}, v{base}, v{base+2*i}")
            A(f"    v_add_f32 v{base+1}, v{base+1}, v{base+2*i+1}")
    else:
        A(f"    s_lshl_b32 s{sT0}, s{sG}, 14")
        A(f"    s_add_u32 s{sT0}, s{sT0}, {QT_OFF}")
        A(f"    v_lshlrev_b32 v60, 4, v{vTID}")
        A(f"    v_add_u32 v60, s{sT0}, v60")
        for kb in range(1, 4):
            A(f"    v_add_u32 v{60+kb}, {kb*4096}, v60")
        L = newlabel("pollt"); D = newlabel("polltd")
        A(f"    s_mov_b32 s{sTO}, 0x8000")
        ts("  poll begin QT")
        A(f"{L}:")
        for kb in range(4):
            A(f"    global_load_dwordx4 {vr(base+4*kb,4)}, v{60+kb}, {sp(sWS)} sc1")
        A("    s_waitcnt vmcnt(0)")
        for kb in range(4):
            A(f"    v_xor_b32 v{40+kb}, s{sTAG}, v{base+4*kb+2}")
            A(f"    v_xor_b32 v{44+kb}, s{sTAG+1}, v{base+4*kb+3}")
        A(f"    v_or3_b32 v40, v40, v41, v42")
        A(f"    v_or3_b32 v44, v44, v45, v46")
        A(f"    v_or3_b32 v40, v40, v43, v47")
        A(f"    v_or_b32 v40, v40, v44")
        A(f"    v_cmp_ne_u32 vcc, 0, v40")
        A(f"    s_cbranch_vccz {D}")
        A(f"    s_sub_u32 s{sTO}, s{sTO}, 1")
        A(f"    s_cbranch_scc0 {L}")
        A(f"{D}:")
        ts("  poll end QT")
        if "--nodefer" not in sys.argv: late_loads()
        for i in range(1, 4):
            A(f"    v_add_f32 v{base}, v{base}, v{base+4*i}")
            A(f"    v_add_f32 v{base+1}, v{base+1}, v{base+4*i+1}")
    A(f"    v_cvt_pk_bf16_f32 v40, v{base}, v{base+1}")
    A(f"    v_lshlrev_b32 v41, 2, v{vTID}")
    A(f"    ds_write_b32 v41, v40 offset:{LDS_QS}")
    A("    s_waitcnt lgkmcnt(0)")
    A("    s_barrier")

def attention(L):
    vQ = 2
    A("    ; ---- attention")
    A(f"    v_and_b32 v40, 3, v{vLANE}")
    A(f"    v_lshlrev_b32 v40, 8, v40")
    A(f"    v_lshrrev_b32 v41, 4, v{vLANE}")
    A(f"    v_lshl_add_u32 v40, v41, 4, v40")
    for j in range(4):
        A(f"    ds_read_b128 {vr(vQ+4*j,4)}, v40 offset:{LDS_QS + j*64}")
    S = 24
    O = 200
    A(f"    s_mov_b32 s{sC}, {f32bits(128 ** -0.5):#x}")
    A(f"    s_mov_b32 s{sC+1}, {f32bits(1.4426950408889634):#x}")
    A("    s_waitcnt lgkmcnt(0)")
    nops(1)
    for j in range(4):
        for T in range(2):
            A(f"    v_mfma_f32_16x16x32_bf16 {vr(S+4*T,4)}, {vr(vK+16*T+4*j,4)}, {vr(vQ+4*j,4)}, {vr(S+4*T,4) if j else 0}")
    A(f"    v_and_b32 v40, 15, v{vLANE}            ; col")
    A(f"    v_lshlrev_b32 v42, 9, v40              ; head*512")
    A(f"    v_lshl_add_u32 v42, v41, 4, v42        ; + slab*16")
    A(f"    s_lshl_b32 s{sT0}, s{sWAVE}, 11")
    A(f"    v_add_u32 v42, s{sT0}, v42")
    A(f"    s_lshl_b32 s{sT0}, s{sWAVE}, 3")
    A(f"    v_lshlrev_b32 v43, 5, v{vLANE}         ; head*32")
    A(f"    v_add_u32 v43, s{sT0}, v43")
    nops(3)
    dump(3 + 8 * L, list(range(S, S + 8)))
    for r in range(0, 8, 2):
        bf16r_pair(S + r, S + r + 1, 44)
        A(f"    v_mul_f32 v{S+r}, s{sC}, v{S+r}")
        A(f"    v_mul_f32 v{S+r+1}, s{sC}, v{S+r+1}")
        bf16r_pair(S + r, S + r + 1, 44)
    vm, vl = 34, 35
    A(f"    v_max3_f32 v{vm}, v{S}, v{S+1}, v{S+2}")
    A(f"    v_max3_f32 v{vm}, v{vm}, v{S+3}, v{S+4}")
    A(f"    v_max3_f32 v{vm}, v{vm}, v{S+5}, v{S+6}")
    A(f"    v_max_f32 v{vm}, v{vm}, v{S+7}")
    xreduce([vm], "v_max_f32", [44], bits=(16, 32))
    A(f"    v_mul_f32 v45, s{sC+1}, v{vm}")
    for r in range(8):
        A(f"    v_fma_f32 v{S+r}, v{S+r}, s{sC+1}, -v45")
    for r in range(8):
        A(f"    v_exp_f32 v{S+r}, v{S+r}")
    A("    s_nop 0")
    P = 36
    for i in range(4):
        A(f"    v_cvt_pk_bf16_f32 v{P+i}, v{S+2*i}, v{S+2*i+1}")
    A(f"    v_add_f32 v{vl}, v{S}, v{S+1}")
    A(f"    v_add_f32 v{vl}, v{vl}, v{S+2}")
    for T in range(8):
        A(f"    v_mfma_f32_16x16x32_bf16 {vr(O+4*T,4)}, {vr(vVT+4*T,4)}, {vr(P,4)}, 0")
    for r in range(3, 8):
        A(f"    v_add_f32 v{vl}, v{vl}, v{S+r}")
    xreduce([vl], "v_add_f32", [44], bits=(16, 32))
    nops(4)
    A(f"    v_cmp_gt_u32 vcc, 4, v40")
    A(f"    s_and_saveexec_b64 {sp(sEX)}, vcc")
    for T in range(8):
        A(f"    ds_write_b128 v42, {vr(O+4*T,4)} offset:{LDS_CMB + T*64}")
    A(f"    v_cmp_gt_u32 vcc, 4, v{vLANE}")
    A(f"    s_and_b64 exec, exec, vcc")
    A(f"    ds_write_b64 v43, {vr(vm,2)} offset:{LDS_MLW}")
    A(f"    s_mov_b64 exec, {sp(sEX)}")
    A("    s_waitcnt lgkmcnt(0)")
    A("    s_barrier")
    if L == 0:
        ts("B1")
        A(f"    v_mov_b32 v58, {LDS_MODE}")
        A(f"    ds_read_b32 v58, v58")
    cmb_read4(2, LDS_CMB)
    A(f"    s_lshl_b32 s{sT0}, s{sWAVE}, 5")
    A(f"    v_mov_b32 v40, s{sT0}")
    A(f"    ds_read_b128 {vr(12,4)}, v40 offset:{LDS_MLW}")
    A(f"    ds_read_b128 {vr(16,4)}, v40 offset:{LDS_MLW+16}")
    A("    s_waitcnt lgkmcnt(0)")
    if L == 0:
        A(f"    v_readfirstlane_b32 s{sMODE}, v58")
    M, Lr = 20, 21
    A(f"    v_max3_f32 v{M}, v12, v14, v16")
    A(f"    v_max_f32 v{M}, v{M}, v18")
    for w in range(4):
        A(f"    v_sub_f32 v{12+2*w}, v{12+2*w}, v{M}")
    for w in range(4):
        A(f"    v_mul_f32 v{12+2*w}, s{sC+1}, v{12+2*w}")
    for w in range(4):
        A(f"    v_exp_f32 v{12+2*w}, v{12+2*w}")
    A("    s_nop 0")
    A(f"    v_mul_f32 v{Lr}, v12, v13")
    A(f"    v_mul_f32 v2, v12, v2")
    A(f"    v_mul_f32 v3, v12, v3")
    for w in range(1, 4):
        A(f"    v_fmac_f32 v{Lr}, v{12+2*w}, v{13+2*w}")
        A(f"    v_fmac_f32 v2, v{12+2*w}, v{2+2*w}")
        A(f"    v_fmac_f32 v3, v{12+2*w}, v{3+2*w}")
    A(f"    s_lshl_b32 s{sT0}, s{sWAVE}, 8")
    A(f"    s_lshl_b32 s{sT1}, s{sIDX}, 3")
    A(f"    s_add_u32 s{sT0}, s{sT0}, s{sT1}")
    A(f"    s_add_u32 s{sT0}, s{sT0}, {ML_OFF}")
    A(f"    v_mov_b32 v41, s{sT0}")
    A(f"    v_add_u32 v40, {O_OFF}, v{vAPUB}")
    store_local([f"global_store_dwordx2 v40, v[2:3], {sp(sLOC)}"])
    A(f"    v_cmp_eq_u32 vcc, 0, v{vLANE}")
    A(f"    s_and_saveexec_b64 {sp(sEX)}, vcc")
    store_local([f"global_store_dwordx2 v41, {vr(M,2)}, {sp(sLOC)}"])
    A(f"    s_mov_b64 exec, {sp(sEX)}")

def o_combine_wo(L):
    A("    ; ---- o combine")
    o0, o1, ml0, ml1 = 2, 6, 10, 12
    A(f"    v_add_u32 v40, {O_OFF}, v{vAO2}")
    loads = [f"global_load_dwordx4 {vr(o0,4)}, v40, {sp(sLOC)} sc1",
             f"global_load_dwordx4 {vr(o1,4)}, v40, {sp(sLOC)} offset:1024 sc1",
             f"global_load_dwordx2 {vr(ml0,2)}, v{vAML}, {sp(sLOC)} sc1",
             f"global_load_dwordx2 {vr(ml1,2)}, v{vAML}, {sp(sLOC)} offset:128 sc1"]
    poll(loads, list(range(2, 14)), 41, name="O", local=True)
    if L == 0:
        A(f"    s_lshl_b32 s{sT0}, s{sWAVE}, 12")
        A(f"    v_add_u32 v46, s{sT0}, v{vL16}")
        for p in range(4):
            A(f"    ds_write_b128 v46, {vr(232+4*p,4)} offset:{LDS_WO + p*1024}")
        A(f"    v_lshrrev_b32 v47, 4, v{vLANE}")
        A(f"    v_and_b32 v48, 15, v{vLANE}")
        A(f"    v_lshrrev_b32 v49, 2, v48")
        A(f"    v_lshl_add_u32 v47, v47, 2, v49")
        A(f"    v_lshlrev_b32 v47, 8, v47")
        A(f"    v_and_b32 v48, 3, v48")
        A(f"    v_lshl_add_u32 v47, v48, 3, v47")
        A(f"    v_add_u32 v47, s{sT0}, v47")
    M = 14
    A(f"    v_max_f32 v{M}, v{ml0}, v{ml1}")
    xreduce([M], "v_max_f32", [40], bits=(1, 2, 4, 8))
    if L == 0:
        A("    s_waitcnt lgkmcnt(0)")
        for T in range(8):
            A(f"    ds_read_b64_tr_b16 {vr(vWO+2*T,2)}, v47 offset:{LDS_WO + T*32}")
    A(f"    v_sub_f32 v{ml0}, v{ml0}, v{M}")
    A(f"    v_sub_f32 v{ml1}, v{ml1}, v{M}")
    A(f"    v_mul_f32 v{ml0}, s{sC+1}, v{ml0}")
    A(f"    v_mul_f32 v{ml1}, s{sC+1}, v{ml1}")
    A(f"    v_exp_f32 v{ml0}, v{ml0}")
    A(f"    v_exp_f32 v{ml1}, v{ml1}")
    A("    s_nop 0")
    Lr = 15
    A(f"    v_mul_f32 v{Lr}, v{ml0}, v{ml0+1}")
    A(f"    v_fmac_f32 v{Lr}, v{ml1}, v{ml1+1}")
    for e in range(4):
        A(f"    v_mul_f32 v{o0+e}, v{ml0}, v{o0+e}")
        A(f"    v_fmac_f32 v{o0+e}, v{ml1}, v{o1+e}")
    xreduce([Lr, o0, o0 + 1, o0 + 2, o0 + 3], "v_add_f32", [40, 41, 42, 43, 44], bits=(1, 2, 4, 8))
    A(f"    v_rcp_f32 v{Lr}, v{Lr}")
    A("    s_nop 0")
    for e in range(4):
        A(f"    v_mul_f32 v{o0+e}, v{o0+e}, v{Lr}")
    A(f"    v_cvt_pk_bf16_f32 v16, v{o0}, v{o0+1}")
    A(f"    v_cvt_pk_bf16_f32 v17, v{o0+2}, v{o0+3}")
    if DEBUG_DUMP:
        unpack(6, 7, 16); unpack(8, 9, 17)
        dump(4 + 8 * L, [6, 7, 8, 9])
    A("    ; ---- wo via MFMA")
    A(f"    s_mul_i32 s{sT0}, s{sWAVE}, {8*CS}")
    A(f"    s_lshl_b32 s{sT1}, s{sIDX}, 6")
    A(f"    s_add_u32 s{sT0}, s{sT0}, s{sT1}")
    A(f"    s_add_u32 s{sT0}, s{sT0}, {R_OFF}")
    A(f"    v_lshlrev_b32 v50, 2, v{vLANE}")
    A(f"    v_add_u32 v50, s{sT0}, v50")
    if L == 0:
        A("    s_waitcnt lgkmcnt(0)")
    D = 200
    for T in range(8):
        A(f"    v_mfma_f32_16x16x16_bf16 {vr(D+4*T,4)}, v[16:17], {vr(vWO+2*T,2)}, 0")
    for T in range(1, 8):
        A(f"    v_add_u32 v{50+T}, {T*CS}, v50")
    A(f"    v_cmp_gt_u32 vcc, 16, v{vLANE}")
    A(f"    s_and_saveexec_b64 {sp(sEX)}, vcc")
    nops(2)
    store_local([f"global_store_dword v{50+T}, v{D+4*T}, {sp(sLOC)}" for T in range(8)])
    A(f"    s_mov_b64 exec, {sp(sEX)}")

def x1_chain(L):
    Lskip = newlabel("w0")
    A(f"    s_cmp_eq_u32 s{sWAVE}, 0")
    A(f"    s_cbranch_scc0 {Lskip}")
    r0, r1 = 2, 6
    A(f"    v_add_u32 v40, {R_OFF}, v{vAO}")
    loads = [f"global_load_dwordx4 {vr(r0,4)}, v40, {sp(sLOC)} sc1",
             f"global_load_dwordx4 {vr(r1,4)}, v40, {sp(sLOC)} offset:1024 sc1"]
    poll(loads, list(range(2, 10)), 41, name="R", local=True)
    for e in range(4):
        A(f"    v_add_f32 v{r0+e}, v{r0+e}, v{r1+e}")
    xreduce([r0, r0 + 1, r0 + 2, r0 + 3], "v_add_f32", [40, 41, 42, 43], bits=(4, 8, 16, 32))
    A(f"    s_lshl_b32 s{sT0}, s{sG}, 11")
    A(f"    s_lshl_b32 s{sT1}, s{sIDX}, 6")
    A(f"    s_add_u32 s{sT0}, s{sT0}, s{sT1}")
    A(f"    s_add_u32 s{sT0}, s{sT0}, {P_OFF:#x}")
    A(f"    v_add_u32 v40, s{sT0}, v{vL16}")
    A(f"    v_cmp_gt_u32 vcc, 4, v{vLANE}")
    A(f"    s_and_saveexec_b64 {sp(sEX)}, vcc")
    A(f"    global_store_dwordx4 v40, {vr(r0,4)}, {sp(sGL)} sc1")
    A(f"    s_mov_b64 exec, {sp(sEX)}")
    loads = [f"global_load_dwordx2 v[2:3], v{vAP}, {sp(sGL)} sc1"]
    extra = None
    if L == 0:
        A(f"    v_and_b32 v24, 7, v{vLANE}")
        A(f"    v_lshlrev_b32 v24, 2, v24")
        loads.append(f"global_load_dword v25, v24, {sp(sDBG)} offset:192 sc1")
        def extra():
            A(f"    v_cmp_eq_u32 {sp(sCM)}, 0, v25")
            A(f"    s_or_b64 vcc, vcc, {sp(sCM)}")
    poll(loads, [2, 3], 40, extra, name="P")
    xreduce([2, 3], "v_add_f32", [40, 41], bits=(8, 16, 32))
    bf16r_pair(2, 3, 40)
    A(f"    v_add_f32 v{vXM}, v{vXM}, v2")
    A(f"    v_add_f32 v{vXM+1}, v{vXM+1}, v3")
    bf16r_pair(vXM, vXM + 1, 40)
    xl_publish(XL_OFF)
    A(f"{Lskip}:")
    A("    s_barrier")

def xl_publish(off):
    A(f"    s_lshl_b32 s{sT0}, s{sIDX}, 6")
    A(f"    s_add_u32 s{sT0}, s{sT0}, {off}")
    A(f"    v_lshlrev_b32 v40, 3, v{vLANE}")
    A(f"    v_add_u32 v40, s{sT0}, v40")
    A(f"    v_cmp_gt_u32 vcc, 8, v{vLANE}")
    A(f"    s_and_saveexec_b64 {sp(sEX)}, vcc")
    store_local([f"global_store_dwordx2 v40, {vr(vXM,2)}, {sp(sLOC)}"])
    A(f"    s_mov_b64 exec, {sp(sEX)}")

def b_phase(L):
    A("    ; ---- mixer MLP")
    xa = list(range(2, 10))
    ha, hb = 10, 11
    xa_, xb_ = 12, 13
    A(f"    v_lshlrev_b32 v40, 5, v{vLANE}")
    A(f"    v_add_u32 v40, {XL_OFF}, v40")
    A(f"    s_lshl_b32 s{sT0}, s2, 3")
    A(f"    s_add_u32 s{sT0}, s{sT0}, {XL_OFF}")
    A(f"    v_mov_b32 v41, s{sT0}")
    loads = [f"global_load_dwordx4 v[2:5], v40, {sp(sLOC)} sc1",
             f"global_load_dwordx4 v[6:9], v40, {sp(sLOC)} offset:16 sc1",
             f"global_load_dwordx2 v[10:11], v41, {sp(sLOC)} sc1"]
    poll(loads, list(range(2, 12)), 42, name="XL", local=True)
    dump(5 + 8 * L, xa)
    if L == 0:
        for i in range(7):
            A(f"    v_lshlrev_b32 v{vW1+i}, 16, v{vW1+i}")
            A(f"    v_lshlrev_b32 v{vB1+i}, 16, v{vB1+i}")
            A(f"    v_lshlrev_b32 v{vW2+i}, 16, v{vW2+i}")
        A(f"    v_lshlrev_b32 v{vB2}, 16, v{vB2}")
    A(f"    v_mov_b32 v{xa_}, v{ha}")
    A(f"    v_mov_b32 v{xb_}, v{hb}")
    vm, vrs = 14, 15
    ln_stats(xa, vm, vrs, [42, 43, 44, 45])
    ln_apply(xa + [ha, hb], vm, vrs, 42)
    ln_stats(xa, vm, vrs, [42, 43, 44, 45])
    ln_apply([ha, hb], vm, vrs, 42)
    dump(6 + 8 * L, [ha, hb])
    c1 = -2.0 * 0.7978845608028654 * 1.4426950408889634
    A(f"    s_mov_b32 s{sC+2}, {f32bits(c1):#x}")
    A(f"    s_mov_b32 s{sC+3}, {f32bits(c1*0.044715):#x}")
    acca, accb = 16, 17
    A(f"    v_mov_b32 v{acca}, 0")
    A(f"    v_mov_b32 v{accb}, 0")
    A(f"    v_mov_b32 v30, s{sC+2}")
    A(f"    v_mov_b32 v31, s{sC+3}")
    A(f"    v_mov_b32 v32, 1.0")
    U = 200
    Z = 216
    for i in range(7): pk2("v_pk_mul_f32", U + 2 * i, ha, vW1 + i)
    for i in range(7): bf16r_pair(U + 2 * i, U + 2 * i + 1, 24)
    for i in range(7): pk2("v_pk_add_f32", U + 2 * i, U + 2 * i, vB1 + i)
    for i in range(7): bf16r_pair(U + 2 * i, U + 2 * i + 1, 24)
    for i in range(7): A(f"    v_pk_mul_f32 {vr(Z+2*i,2)}, {vr(U+2*i,2)}, {vr(U+2*i,2)}")
    for i in range(7): A(f"    v_pk_fma_f32 {vr(Z+2*i,2)}, {vr(Z+2*i,2)}, v[30:31], v[30:31] op_sel:[0,1,0] op_sel_hi:[1,1,0]")
    for i in range(7): A(f"    v_pk_mul_f32 {vr(Z+2*i,2)}, {vr(Z+2*i,2)}, {vr(U+2*i,2)}")
    for k in range(14): A(f"    v_exp_f32 v{Z+k}, v{Z+k}")
    for i in range(7): pk2("v_pk_add_f32", Z + 2 * i, Z + 2 * i, 32)
    for k in range(14): A(f"    v_rcp_f32 v{Z+k}, v{Z+k}")
    for i in range(7): A(f"    v_pk_mul_f32 {vr(U+2*i,2)}, {vr(U+2*i,2)}, {vr(Z+2*i,2)}")
    for i in range(7): bf16r_pair(U + 2 * i, U + 2 * i + 1, 24)
    for i in range(7):
        t, sel = bc(vW2 + i)
        A(f"    v_pk_fma_f32 {vr(acca,2)}, {vr(U+2*i,2)}, {t}, {vr(acca,2)} op_sel:[0,{sel},0] op_sel_hi:[1,{sel},1]")
    xreduce([acca, accb], "v_add_f32", [40, 41])
    return acca, accb, xa_, xb_

def y_finish(acca, xa_, xb_):
    A(f"    s_lshl_b32 s{sT0}, s{sWAVE}, 3")
    A(f"    v_mov_b32 v40, s{sT0}")
    A(f"    ds_write_b64 v40, {vr(acca,2)} offset:{LDS_YS}")
    A("    s_waitcnt lgkmcnt(0)")
    A("    s_barrier")

def y_sum(xa_, xb_):
    A(f"    v_mov_b32 v40, 0")
    A(f"    ds_read_b128 {vr(2,4)}, v40 offset:{LDS_YS}")
    A(f"    ds_read_b128 {vr(6,4)}, v40 offset:{LDS_YS+16}")
    A("    s_waitcnt lgkmcnt(0)")
    for w in range(1, 4):
        A(f"    v_add_f32 v2, v2, v{2+2*w}")
        A(f"    v_add_f32 v3, v3, v{3+2*w}")
    bf16r_pair(2, 3, 40)
    A(f"    v_add_f32 v2, v2, v{vB2}")
    A(f"    v_add_f32 v3, v3, v{vB2}")
    bf16r_pair(2, 3, 40)
    A(f"    v_add_f32 v2, v{xa_}, v2")
    A(f"    v_add_f32 v3, v{xb_}, v3")

def x2_chain(acca, xa_, xb_):
    y_finish(acca, xa_, xb_)
    Lskip = newlabel("w0")
    A(f"    s_cmp_eq_u32 s{sWAVE}, 0")
    A(f"    s_cbranch_scc0 {Lskip}")
    y_sum(xa_, xb_)
    bf16r_pair(2, 3, 40)
    A(f"    s_lshl_b32 s{sT0}, s2, 6")
    A(f"    s_add_u32 s{sT0}, s{sT0}, {Y_OFF:#x}")
    A(f"    v_mov_b32 v40, s{sT0}")
    A(f"    v_cmp_eq_u32 vcc, 0, v{vLANE}")
    A(f"    s_and_saveexec_b64 {sp(sEX)}, vcc")
    A(f"    global_store_dwordx2 v40, v[2:3], {sp(sGL)} sc1")
    A(f"    s_mov_b64 exec, {sp(sEX)}")
    poll([f"global_load_dwordx2 {vr(vXM,2)}, v{vAY}, {sp(sGL)} sc1"], [vXM, vXM + 1], 40, name="Y")
    xl_publish(XL2_OFF)
    A(f"{Lskip}:")
    A("    s_barrier")

ts("start")
set_layer(0)
xa = list(range(24, 32)); xr = list(range(32, 36))
A("    ; ---- V transpose")
A(f"    s_waitcnt vmcnt({N_AFTER_V})")
ts("V arrived")
A(f"    s_lshl_b32 s{sT0}, s{sWAVE}, 13")
A(f"    v_add_u32 v40, s{sT0}, v{vL16}")
for i in range(8):
    A(f"    ds_write_b128 v40, {vr(vVS+4*i,4)} offset:{LDS_V + i*1024}")
A(f"    v_lshrrev_b32 v41, 4, v{vLANE}")
A(f"    v_and_b32 v42, 15, v{vLANE}")
A(f"    v_lshrrev_b32 v43, 2, v42")
A(f"    v_lshl_add_u32 v43, v41, 2, v43")
A(f"    v_lshlrev_b32 v43, 8, v43")
A(f"    v_and_b32 v42, 3, v42")
A(f"    v_lshl_add_u32 v43, v42, 3, v43")
A(f"    v_add_u32 v43, s{sT0}, v43")
A("    s_waitcnt lgkmcnt(0)")
for T in range(8):
    A(f"    ds_read_b64_tr_b16 {vr(vVT+4*T,2)}, v43 offset:{LDS_V + T*32}")
    A(f"    ds_read_b64_tr_b16 {vr(vVT+4*T+2,2)}, v43 offset:{LDS_V + T*32 + 4096}")
unpack(vXM, vXM + 1, vXP)
A("    s_waitcnt lgkmcnt(0)")
A(f"    s_add_u32 s{sTAG}, s{sTAG}, 1")
A(f"    s_addc_u32 s{sTAG+1}, s{sTAG+1}, 0")
ts("all loads+transpose")
late_loads()
A("    s_barrier")
ts("q gathered")
attention(0)
ts("attn")
o_combine_wo(0)
ts("o+wo")
x1_chain(0)
ts("x1 chain")
acca, accb, xa_, xb_ = b_phase(0)
ts("B")
x2_chain(acca, xa_, xb_)
ts("x2 chain")
q_frags()
A(f"    v_lshlrev_b32 v40, 5, v{vLANE}")
A(f"    v_add_u32 v40, {XL2_OFF}, v40")
A(f"    v_add_u32 v41, {XL2_OFF}, v{vAXR}")
poll([f"global_load_dwordx4 v[24:27], v40, {sp(sLOC)} sc1",
      f"global_load_dwordx4 v[28:31], v40, {sp(sLOC)} offset:16 sc1",
      f"global_load_dwordx2 v[32:33], v41, {sp(sLOC)} sc1"], list(range(24, 34)), 42, name="XL2", local=True)
dump(7, xa)
set_layer(1)
q_phase(1, xa, [32, 33])
ts("q2 pub")
q_gather()
ts("q2 gathered")
attention(1)
ts("attn2")
o_combine_wo(1)
ts("o+wo 2")
x1_chain(1)
ts("x1 chain 2")
acca, accb, xa_, xb_ = b_phase(1)
ts("B2")
ts_flush()
diag_flush()
A("    ; ---- final")
y_finish(acca, xa_, xb_)
A(f"    s_cmp_eq_u32 s{sWAVE}, 0")
A("    s_cbranch_scc0 L_end")
y_sum(xa_, xb_)
A(f"    v_cvt_pk_bf16_f32 v4, v2, v3")
A(f"    s_lshl_b32 s{sT0}, s2, 2")
A(f"    v_mov_b32 v40, s{sT0}")
A(f"    v_cmp_eq_u32 vcc, 0, v{vLANE}")
A(f"    s_and_saveexec_b64 {sp(sEX)}, vcc")
A(f"    global_store_dword v40, v4, {sp(sOUT)}")
A(f"    s_cmp_eq_u32 s2, 0")
A(f"    s_cbranch_scc0 L_noep")
A(f"    v_mov_b32 v40, {EPOCH_OFF}")
A(f"    v_mov_b32 v42, s{sTAG}")
A(f"    v_mov_b32 v43, s{sTAG+1}")
A(f"    global_store_dwordx2 v40, v[42:43], {sp(sWS)} sc1")
A("L_noep:")
A("    s_waitcnt vmcnt(0)")
A("    s_branch L_end")

A("L_helper:")
if TS:
    A("    v_mov_b32 v254, 0")
    A("    v_mov_b32 v253, 0")
hts("h entry")
hWQ = 64
A("    s_setprio 3")
A(f"    v_lshlrev_b32 v2, 4, v{vLANE}")
A(f"    global_load_dwordx4 v[24:27], v2, {sp(sX)}")
A(f"    s_lshr_b32 s{sT0}, s{sIDX}, 3            ; kb")
A(f"    s_lshl_b32 s{sT1}, s{sT0}, 8             ; kb*128*2")
A(f"    v_lshlrev_b32 v8, 2, v{vLANE}")
A(f"    v_add_u32 v9, s{sT1}, v8")
A(f"    global_load_dword v28, v9, {sp(sX)}")
A(f"    s_lshl_b32 s{sT1}, s{sT0}, 20")
A(f"    s_lshl_b32 s{sT2}, s{sG}, 10")
A(f"    s_add_u32 s{sT1}, s{sT1}, s{sT2}")
A(f"    s_and_b32 s{sT2}, s{sIDX}, 7")
A(f"    s_lshl_b32 s{sT2}, s{sT2}, 7")
A(f"    s_add_u32 s{sT1}, s{sT1}, s{sT2}")
A(f"    v_lshrrev_b32 v3, 3, v{vLANE}")
A(f"    v_lshlrev_b32 v9, 13, v3")
A(f"    v_and_b32 v10, 7, v{vLANE}")
A(f"    v_lshlrev_b32 v11, 4, v10")
A(f"    v_add3_u32 v9, v9, v11, s{sT1}")
for i in range(16):
    if i: A(f"    v_add_u32 v9, 0x10000, v9")
    A(f"    global_load_dwordx4 {vr(hWQ+4*i,4)}, v9, {sp(sWQ)} nt      ; rows 8i + (l>>3)")
A("    s_barrier")
hts("h issued")
A(f"    s_waitcnt vmcnt(16)")
hts("h x arrived")
hxa = list(range(40, 48))
for i in range(4): unpack(hxa[2 * i], hxa[2 * i + 1], 24 + i)
unpack(30, 31, 28)
ln_stats(hxa, 48, 49, [50, 51, 52, 53])
ln_apply([30, 31], 48, 49, 50)
A(f"    v_cvt_pk_bf16_f32 v32, v30, v31")
A(f"    ds_write_b32 v8, v32 offset:{LDS_HS}")
A("    s_waitcnt lgkmcnt(0)")
A(f"    s_add_u32 s{sTAG}, s{sTAG}, 1")
A(f"    s_addc_u32 s{sTAG+1}, s{sTAG+1}, 0")
A(f"    v_lshrrev_b32 v12, 4, v{vLANE}           ; slab")
A(f"    v_lshlrev_b32 v13, 4, v12")
hA = 130
for ks in range(4):
    A(f"    ds_read_b128 {vr(hA+4*ks,4)}, v13 offset:{LDS_HS + ks*64}")
for i in range(16):
    A(f"    s_waitcnt vmcnt({15 - i})")
    A(f"    ds_write_b128 v2, {vr(hWQ+4*i,4)} offset:{LDS_WQ + i*1024}")
A(f"    v_and_b32 v14, 15, v{vLANE}")
A(f"    v_lshrrev_b32 v15, 2, v14")
A(f"    v_lshl_add_u32 v15, v12, 3, v15")
A(f"    v_lshlrev_b32 v15, 7, v15")
A(f"    v_and_b32 v14, 3, v14")
A(f"    v_lshl_add_u32 v15, v14, 3, v15")
A("    s_waitcnt lgkmcnt(0)")
hB = 64
hD = 146
def h_reads(j):
    for ks in range(4):
        r = hB + 16 * j + 4 * ks
        A(f"    ds_read_b64_tr_b16 {vr(r,2)}, v15 offset:{LDS_WQ + ks*4096 + j*32}")
        A(f"    ds_read_b64_tr_b16 {vr(r+2,2)}, v15 offset:{LDS_WQ + ks*4096 + j*32 + 512}")
def h_mfma(j):
    for ks in range(4):
        c = "0" if ks == 0 else vr(hD + 4 * j, 4)
        A(f"    v_mfma_f32_16x16x32_bf16 {vr(hD+4*j,4)}, {vr(hA+4*ks,4)}, {vr(hB+16*j+4*ks,4)}, {c}")
h_reads(0); h_reads(1)
A("    s_waitcnt lgkmcnt(8)"); h_mfma(0); h_reads(2)
A("    s_waitcnt lgkmcnt(8)"); h_mfma(1); h_reads(3)
A("    s_waitcnt lgkmcnt(8)"); h_mfma(2)
A("    s_waitcnt lgkmcnt(0)"); h_mfma(3)
hts("h fma done")
A(f"    s_lshl_b32 s{sT0}, s{sG}, 14")
A(f"    s_lshr_b32 s{sT1}, s{sIDX}, 3")
A(f"    s_lshl_b32 s{sT1}, s{sT1}, 12")
A(f"    s_add_u32 s{sT0}, s{sT0}, s{sT1}")
A(f"    s_and_b32 s{sT1}, s{sIDX}, 7")
A(f"    s_lshl_b32 s{sT1}, s{sT1}, 9")
A(f"    s_add_u32 s{sT0}, s{sT0}, s{sT1}")
A(f"    s_add_u32 s{sT0}, s{sT0}, {QT_OFF}")
A(f"    v_lshlrev_b32 v17, 3, v{vLANE}")
A(f"    v_add_u32 v17, s{sT0}, v17")
A(f"    v_and_b32 v18, 0x31, v{vLANE}")
nops(6)
for j in range(4):
    A(f"    v_mov_b32_dpp v{hD+4*j+1}, v{hD+4*j} quad_perm:[1,1,3,3] row_mask:0xf bank_mask:0xf")
    A(f"    v_mov_b32 v{hD+4*j+2}, s{sTAG}")
    A(f"    v_mov_b32 v{hD+4*j+3}, s{sTAG+1}")
A(f"    v_cmp_eq_u32 vcc, 0, v18")
A(f"    s_and_saveexec_b64 {sp(sEX)}, vcc")
for j in range(4):
    A(f"    global_store_dwordx4 v17, {vr(hD+4*j,4)}, {sp(sWS)} offset:{j*128} sc1")
A(f"    s_mov_b64 exec, {sp(sEX)}")
hts("h q published")
A("    s_setprio 0")
for r in range(4, 8): A(f"    v_mov_b32 v{r}, -1")
def clear_local(flag):
    for L in range(2):
        set_layer(L)
        A(f"    s_mul_i32 s{sT0}, s{sIDX}, {CLR_PER_CU}")
        A(f"    v_add_u32 v36, s{sT0}, v2")
        for i in range(CLR_PER_CU // 1024):
            if i and i % 4 == 0:
                A(f"    v_add_u32 v36, 4096, v36")
            A(f"    global_store_dwordx4 v36, v[4:7], {sp(sLOC)} offset:{(i%4)*1024}{flag}")
clear_local(" sc1")
A(f"    s_lshl_b32 s{sT0}, s{sG}, 11")
A(f"    s_lshl_b32 s{sT1}, s{sIDX}, 6")
A(f"    s_add_u32 s{sT0}, s{sT0}, s{sT1}")
A(f"    s_add_u32 s{sT0}, s{sT0}, {LAYER_BASE + P_OFF:#x}")
A(f"    v_add_u32 v13, s{sT0}, v2")
A(f"    v_add_u32 v14, {LAYER_STRIDE:#x}, v13")
A(f"    s_lshl_b32 s{sT0}, s2, 6")
A(f"    s_add_u32 s{sT0}, s{sT0}, {LAYER_BASE + Y_OFF:#x}")
A(f"    v_add_u32 v15, s{sT0}, v2")
A(f"    v_cmp_gt_u32 vcc, 4, v{vLANE}")
A(f"    s_and_saveexec_b64 {sp(sEX)}, vcc")
A(f"    global_store_dwordx4 v13, v[4:7], {sp(sWS)} sc1")
A(f"    global_store_dwordx4 v14, v[4:7], {sp(sWS)} sc1")
A(f"    global_store_dwordx4 v15, v[4:7], {sp(sWS)} sc1")
A(f"    s_mov_b64 exec, {sp(sEX)}")
A(f"    v_mov_b32 v12, s{sTAG}")
A(f"    v_mov_b32 v13, s{sTAG+1}")
A(f"    s_lshl_b32 s{sT0}, s{sG}, 14")
A(f"    s_add_u32 s{sT0}, s{sT0}, {QT_OFF}")
A(f"    v_add_u32 v40, s{sT0}, v2")
for kb in range(1, 4):
    A(f"    v_add_u32 v{40+kb}, {kb*4096}, v40")
A(f"    s_getreg_b32 s{sT2}, hwreg(HW_REG_XCC_ID)")
A(f"    s_and_b32 s{sT2}, s{sT2}, 0xffff")
A(f"    v_mov_b32 v14, s{sT2}")
A(f"    v_mov_b32 v15, 0")
A(f"    s_lshl_b32 s{sT0}, s{sCU}, 6")
A(f"    v_mov_b32 v16, s{sT0}")
A(f"    s_lshl_b32 s{sT1}, s{sG}, 11")
A(f"    v_and_b32 v17, 31, v{vLANE}")
A(f"    v_lshlrev_b32 v17, 6, v17")
A(f"    v_add_u32 v17, s{sT1}, v17")
A(f"    s_mov_b32 s{sTO}, 0x8000")
A(f"    s_mov_b32 s{sT3}, 0")
A("L_h_qt:")
for kb in range(4):
    for m in range(4):
        A(f"    global_load_dwordx4 {vr(64+16*kb+4*m,4)}, v{40+kb}, {sp(sWS)} offset:{m*1024} sc1")
A("    s_waitcnt vmcnt(0)")
A(f"    s_cmp_eq_u32 s{sT3}, 0")
A("    s_cbranch_scc0 L_h_qt_nf")
A(f"    s_mov_b32 s{sT3}, 1")
A(f"    v_cmp_eq_u32 vcc, 0, v{vLANE}")
A(f"    s_and_saveexec_b64 {sp(sEX)}, vcc")
A(f"    global_store_dwordx4 v16, v[12:15], {sp(sWS)} sc1")
A(f"    s_mov_b64 exec, {sp(sEX)}")
A("L_h_qt_nf:")
A(f"    v_mov_b32 v44, 0")
for i in range(16):
    A(f"    v_xor_b32 v45, v12, v{64+4*i+2}")
    A(f"    v_xor_b32 v46, v13, v{64+4*i+3}")
    A(f"    v_or3_b32 v44, v44, v45, v46")
A(f"    v_cmp_ne_u32 vcc, 0, v44")
A("    s_cbranch_vccz L_h_qtd")
A(f"    s_sub_u32 s{sTO}, s{sTO}, 1")
A("    s_cbranch_scc0 L_h_qt")
A("L_h_qtd:")
for m in range(4):
    for kb in range(1, 4):
        A(f"    v_add_f32 v{64+4*m}, v{64+4*m}, v{64+16*kb+4*m}")
        A(f"    v_add_f32 v{65+4*m}, v{65+4*m}, v{65+16*kb+4*m}")
    A(f"    v_cvt_pk_bf16_f32 v{44+m}, v{64+4*m}, v{65+4*m}")
    A(f"    ds_write_b32 v8, v{44+m} offset:{LDS_QS + m*256}")
hts("h q gathered")
A("    s_waitcnt vmcnt(0) lgkmcnt(0)")
hts("h clears acked")
def flag_round(off, lab, barrier=False):
    A(f"    v_add_u32 v19, {off}, v17")
    if barrier:
        A("    s_barrier")
    A(f"    s_mov_b32 s{sTO}, 0x8000")
    A(f"{lab}:")
    A(f"    global_load_dwordx4 v[20:23], v19, {sp(sWS)} sc1")
    A("    s_waitcnt vmcnt(0)")
    A(f"    v_cmp_ne_u32 vcc, v20, v12")
    A(f"    v_cmp_ne_u32 {sp(sCM)}, v21, v13")
    A(f"    s_or_b64 vcc, vcc, {sp(sCM)}")
    A(f"    s_cbranch_vccz {lab}_d")
    A(f"    s_sub_u32 s{sTO}, s{sTO}, 1")
    A(f"    s_cbranch_scc0 {lab}")
    A(f"{lab}_d:")
flag_round(FL1, "L_h_f1", True)
A(f"    v_cmp_ne_u32 vcc, v22, v14")
A(f"    s_mov_b32 s{sMODE}, 1")
if FORCE_SLOW:
    A("    s_branch L_h_mode")
A("    s_cbranch_vccnz L_h_mode")
A(f"    s_mov_b32 s{sMODE}, 0")
A(f"    v_lshlrev_b32 v37, 6, v{vLANE}")
for L in range(2):
    set_layer(L)
    A(f"    s_mul_i32 s{sT0}, s{sIDX}, {CLR_PER_CU}")
    A(f"    v_add_u32 v36, s{sT0}, v37")
    A(f"    global_load_dword v{38+2*L}, v36, {sp(sLOC)}")
    A(f"    v_add_u32 v36, 4096, v36")
    A(f"    global_load_dword v{39+2*L}, v36, {sp(sLOC)}")
A("L_h_mode:")
hts("h mode")
A(f"    v_mov_b32 v24, {LDS_MODE}")
A(f"    v_mov_b32 v25, s{sMODE}")
A(f"    ds_write_b32 v24, v25")
A("    s_waitcnt lgkmcnt(0)")
A("    s_barrier                    ; B1")
A(f"    s_cmp_eq_u32 s{sIDX}, 0")
A("    s_cbranch_scc0 L_h_end")
A(f"    s_lshl_b32 s{sT0}, s{sG}, 2")
A(f"    v_mov_b32 v24, s{sT0}")
A(f"    v_mov_b32 v25, 1")
A(f"    v_cmp_eq_u32 vcc, 0, v{vLANE}")
A(f"    s_and_saveexec_b64 {sp(sEX)}, vcc")
A(f"    global_store_dword v24, v25, {sp(sDBG)} offset:192 sc1")
A("L_h_end:")
A("    s_mov_b64 exec, -1")
A("    s_waitcnt vmcnt(0)")
if TS:
    A(f"    s_lshl_b32 s{sT0}, s2, 11")
    A(f"    s_add_u32 s{sT0}, s{sT0}, {DUMP_BASE + 31 * 0x400000}")
    A(f"    v_lshlrev_b32 v255, 2, v{vLANE}")
    A(f"    v_add_u32 v255, s{sT0}, v255")
    A(f"    global_store_dword v255, v254, {sp(sWS)}")
    A("    s_waitcnt vmcnt(0)")
A("L_end:")
A("    s_endpgm")
A('.section .rodata,"a"')
A(".p2align 6")
A(f".amdhsa_kernel {KNAME}")
A("  .amdhsa_next_free_vgpr 256")
A("  .amdhsa_next_free_sgpr 80")
A("  .amdhsa_accum_offset 256")
A("  .amdhsa_group_segment_fixed_size 0")
A("  .amdhsa_kernarg_size 104")
A("  .amdhsa_user_sgpr_count 2")
A("  .amdhsa_user_sgpr_kernarg_segment_ptr 1")
A("  .amdhsa_system_sgpr_workgroup_id_x 1")
A(".end_amdhsa_kernel")

dst = [a for a in sys.argv[1:] if not a.startswith("--")]
path = dst[0] if dst else "interleave_layers__sliding_block_cached__mixer_token_mlp__decode.s"
open(path, "w").write("\n".join(out) + "\n")
print("wrote", path, len(out), "lines")
```

```python
import sys, struct

KNAME = "interleave_layers__sliding_block_cached__mixer_token_mlp__decode_kernel"
DEBUG_DUMP = "--dump" in sys.argv
FORCE_SLOW = "--slow" in sys.argv
TS = "--ts" in sys.argv

out = []
def A(s=""):
    out.append(s)
def f32bits(x):
    return struct.unpack("<I", struct.pack("<f", x))[0]
_lbl = [0]; _pc = [0]; _ts = [0]
def newlabel(p="L"):
    _lbl[0] += 1
    return f"{p}_{_lbl[0]}"

FL1 = 0x0000
FL2 = 0x4000
EPOCH_OFF = 0x8000
QT_OFF = 0x10000
LAYER_BASE = 0x100000
LAYER_STRIDE = 0x400000
GRP_STRIDE = 0x40000
CS = 2048 + 128
Q_OFF = 0x0000
ML_OFF = 0x2000
XL_OFF = 0x2400
XL2_OFF = 0x2C00
O_OFF = 0x3400
R_OFF = O_OFF + 32 * CS
GRP_USED = R_OFF + 32 * CS
CLR_PER_CU = (GRP_USED + 32 * 1024 - 1) // (32 * 1024) * 1024
assert CLR_PER_CU * 32 <= GRP_STRIDE
P_OFF = 0x200000
Y_OFF = 0x210000
DUMP_BASE = 0x4000000

LDS_V = 0x0000
LDS_CMB = 0x0000
LDS_MLW = 0x2000
LDS_XS = 0x4000
LDS_QS = 0x8000
LDS_MODE = 0x8400
LDS_YS = 0x8410
LDS_HS = 0x8500
LDS_WQ = 0x9000
LDS_WO = 0xD000
LDS_HW = 0x8800
LDS_BYTES = 0x11000

sX, sK, sV, sWQ, sWO, sBX, sW1, sB1, sW2, sB2, sOUT, sDBG, sWS = [4 + 2 * i for i in range(13)]
sG, sIDX, sWAVE, sCU, sMODE, sTO = 30, 31, 32, 33, 34, 35
sLOC = 36; sMY = 38; sGL = 40
sT0, sT1, sT2, sT3 = 42, 43, 44, 45
sO = 46
sEX = 50
sC = 52
sCM = 64
sTAG = 66
def sp(r): return f"s[{r}:{r+1}]"

vTID, vLANE = 0, 1
vK = 64; vVT = 96; vWQ = 128; vWO = 144
vW1, vB1, vW2 = 160, 167, 174
vB2 = 181
vXM = 182
vL16 = 184
vT8 = 185
vAO = 186
vAML = 187
vAP = 188
vAY = 189
vAXR = 190
vAPUB = 191
vAO2 = 192
def vr(r, n): return f"v[{r}:{r+n-1}]"

def nops(n):
    while n > 0:
        k = min(n, 16)
        A(f"    s_nop {k-1}")
        n -= k

DPP = {1: "quad_perm:[1,0,3,2]", 2: "quad_perm:[2,3,0,1]", 4: "row_ror:4", 8: "row_ror:8"}
def xreduce(regs, op, tmp, bits=(1, 2, 4, 8, 16, 32)):
    n = len(regs)
    for b in bits:
        if b <= 8:
            if n < 3: nops(3 - n)
            for r in regs:
                A(f"    {op}_dpp v{r}, v{r}, v{r} {DPP[b]} row_mask:0xf bank_mask:0xf")
        else:
            sw = "v_permlane16_swap_b32" if b == 16 else "v_permlane32_swap_b32"
            for r, t in zip(regs, tmp):
                A(f"    v_mov_b32 v{t}, v{r}")
            nops(2 if n < 2 else 1)
            for r, t in zip(regs, tmp):
                A(f"    {sw} v{t}, v{r}")
            nops(1)
            for r, t in zip(regs, tmp):
                A(f"    {op} v{r}, v{r}, v{t}")

def bf16r_pair(a, b, t):
    A(f"    v_cvt_pk_bf16_f32 v{t}, v{a}, v{b}")
    A(f"    v_lshlrev_b32 v{a}, 16, v{t}")
    A(f"    v_and_b32 v{b}, 0xffff0000, v{t}")
def bf16r(a, t):
    A(f"    v_cvt_pk_bf16_f32 v{t}, v{a}, v{a}")
    A(f"    v_lshlrev_b32 v{a}, 16, v{t}")
def unpack(dst_lo, dst_hi, src):
    A(f"    v_lshlrev_b32 v{dst_lo}, 16, v{src}")
    A(f"    v_and_b32 v{dst_hi}, 0xffff0000, v{src}")

def max_chain(dst, regs):
    regs = list(regs)
    if len(regs) == 1:
        A(f"    v_mov_b32 v{dst}, v{regs[0]}"); return
    if len(regs) == 2:
        A(f"    v_max_u32 v{dst}, v{regs[0]}, v{regs[1]}"); return
    A(f"    v_max3_u32 v{dst}, v{regs[0]}, v{regs[1]}, v{regs[2]}")
    rest = regs[3:]
    while len(rest) >= 2:
        A(f"    v_max3_u32 v{dst}, v{dst}, v{rest[0]}, v{rest[1]}")
        rest = rest[2:]
    if rest:
        A(f"    v_max_u32 v{dst}, v{dst}, v{rest[0]}")

def ts(name=""):
    if not TS: return
    if "--tsl" in sys.argv and name not in ("entry", "B2"): return
    k = _ts[0]; _ts[0] += 1
    A(f"    s_memrealtime s[70:71]")
    A(f"    s_waitcnt lgkmcnt(0)")
    A(f"    v_writelane_b32 v254, s70, {k}")
_hts = [0]
def hts(name=""):
    if not TS: return
    if "--tsl" in sys.argv: return
    k = _hts[0]; _hts[0] += 1
    A(f"    s_memrealtime s[70:71]")
    A(f"    s_waitcnt lgkmcnt(0)")
    A(f"    v_writelane_b32 v254, s70, {k}")
def ts_flush():
    if not TS: return
    A(f"    s_lshl_b32 s{sT0}, s2, 11")
    A(f"    s_lshl_b32 s{sT1}, s{sWAVE}, 8")
    A(f"    s_add_u32 s{sT0}, s{sT0}, s{sT1}")
    A(f"    s_add_u32 s{sT0}, s{sT0}, {DUMP_BASE + 30 * 0x400000}")
    A(f"    v_lshlrev_b32 v255, 2, v{vLANE}")
    A(f"    v_add_u32 v255, s{sT0}, v255")
    A(f"    global_store_dword v255, v254, {sp(sWS)}")
    A(f"    global_store_dword v255, v253, {sp(sWS)} offset:1024")
    A("    s_waitcnt vmcnt(0)")
def diag_flush():
    if "--diag" not in sys.argv: return
    L = newlabel("dg")
    A(f"    s_cmp_eq_u32 s2, 37")
    A(f"    s_cbranch_scc0 {L}")
    A(f"    s_cmp_eq_u32 s{sWAVE}, 0")
    A(f"    s_cbranch_scc0 {L}")
    A(f"    v_readlane_b32 s72, v254, 0")
    A("    s_nop 3")
    A(f"    v_subrev_u32 v255, s72, v254")
    A(f"    v_mul_u32_u24 v252, 86, v{vLANE}")
    A(f"    v_lshrrev_b32 v252, 8, v252            ; lane/3")
    A(f"    v_mul_u32_u24 v251, 3, v252")
    A(f"    v_cmp_eq_u32 vcc, v251, v{vLANE}")
    A(f"    v_cmp_gt_u32 {sp(sCM)}, 16, v252")
    A(f"    s_and_b64 vcc, vcc, {sp(sCM)}")
    A(f"    v_lshlrev_b32 v252, 2, v252")
    A(f"    s_and_saveexec_b64 {sp(sEX)}, vcc")
    A(f"    global_store_dword v252, v255, {sp(sDBG)}")
    A(f"    s_mov_b64 exec, {sp(sEX)}")
    A("    s_waitcnt vmcnt(0)")
    A(f"{L}:")

def dump(slot, regs):
    if not DEBUG_DUMP: return
    A(f"    s_lshl_b32 s{sT0}, s2, 14")
    A(f"    s_add_u32 s{sT0}, s{sT0}, {DUMP_BASE + slot * 0x400000}")
    A(f"    v_lshlrev_b32 v255, 6, v{vTID}")
    A(f"    v_add_u32 v255, s{sT0}, v255")
    for i, r in enumerate(regs):
        A(f"    global_store_dword v255, v{r}, {sp(sWS)} offset:{4*i}")
    A("    s_waitcnt vmcnt(0)")

def poll(loads, check_regs, vtmp, extra_check=None, name="", local=False):
    L = newlabel("poll"); D = newlabel("polld"); C = newlabel("pollc")
    A(f"    s_mov_b32 s{sTO}, 0x8000")
    if "--ack" in sys.argv:
        ts("  pre-ack " + name)
        A("    s_waitcnt vmcnt(0)")
    ts("  poll begin " + name)
    if local and "--plain1" in sys.argv:
        for l in loads: A("    " + l.replace(" sc1", ""))
        A(f"    s_branch {C}")
    A(f"{L}:")
    for l in loads: A("    " + l)
    A(f"{C}:")
    A("    s_waitcnt vmcnt(0)")
    max_chain(vtmp, check_regs)
    A(f"    v_cmp_eq_u32 vcc, -1, v{vtmp}")
    if extra_check: extra_check()
    A(f"    s_cbranch_vccz {D}")
    A(f"    s_sub_u32 s{sTO}, s{sTO}, 1")
    A(f"    s_cbranch_scc0 {L}")
    A(f"{D}:")
    ts("  poll end " + name)
    if TS and "--tsl" not in sys.argv:
        k = _pc[0]; _pc[0] += 1
        A(f"    s_sub_u32 s72, 0x8000, s{sTO}")
        A(f"    v_writelane_b32 v253, s72, {k}")

def store_local(stores):
    S = newlabel("sl"); D = newlabel("sld")
    A(f"    s_cmp_eq_u32 s{sMODE}, 0")
    A(f"    s_cbranch_scc0 {S}")
    for s in stores: A("    " + s)
    A(f"    s_branch {D}")
    A(f"{S}:")
    for s in stores: A("    " + s + " sc1")
    A(f"{D}:")

def set_layer(L):
    base = LAYER_BASE + L * LAYER_STRIDE
    A(f"    ; ---- layer {L} bases")
    A(f"    s_add_u32 s{sGL}, s{sWS}, {base}")
    A(f"    s_addc_u32 s{sGL+1}, s{sWS+1}, 0")
    A(f"    s_lshl_b32 s{sT0}, s{sG}, 18            ; g*GRP_STRIDE")
    A(f"    s_add_u32 s{sLOC}, s{sGL}, s{sT0}")
    A(f"    s_addc_u32 s{sLOC+1}, s{sGL+1}, 0")

def ln_stats(xregs, vmean, vrs, t):
    s1, s2, t0, t1 = t[0], t[1], t[2], t[3]
    A(f"    v_add_f32 v{s1}, v{xregs[0]}, v{xregs[1]}")
    A(f"    v_mul_f32 v{s2}, v{xregs[0]}, v{xregs[0]}")
    A(f"    v_fmac_f32 v{s2}, v{xregs[1]}, v{xregs[1]}")
    for r in xregs[2:]:
        A(f"    v_add_f32 v{s1}, v{s1}, v{r}")
        A(f"    v_fmac_f32 v{s2}, v{r}, v{r}")
    xreduce([s1, s2], "v_add_f32", [t0, t1])
    A(f"    v_mul_f32 v{s1}, {f32bits(1/512):#x}, v{s1}")
    A(f"    v_mul_f32 v{s2}, {f32bits(1/512):#x}, v{s2}")
    A(f"    v_fma_f32 v{s2}, -v{s1}, v{s1}, v{s2}")
    A(f"    v_max_f32 v{s2}, 0, v{s2}")
    bf16r_pair(s1, s2, t0)
    A(f"    v_add_f32 v{s2}, {f32bits(1e-5):#x}, v{s2}")
    bf16r(s2, t0)
    A(f"    v_sqrt_f32 v{s2}, v{s2}")
    A("    s_nop 0")
    bf16r(s2, t0)
    A(f"    v_rcp_f32 v{vrs}, v{s2}")
    A(f"    v_mov_b32 v{vmean}, v{s1}")
    A("    s_nop 0")

def bc(r):
    return (f"v[{r & ~1}:{(r & ~1) + 1}]", r & 1)
def pk2(op, d, a, b, neg_b=False):
    t, sel = bc(b)
    neg = " neg_lo:[0,1] neg_hi:[0,1]" if neg_b else ""
    A(f"    {op} {vr(d,2)}, {vr(a,2)}, {t} op_sel:[0,{sel}] op_sel_hi:[1,{sel}]{neg}")

def ln_apply(regs, vmean, vrs, t):
    for a, b in zip(regs[0::2], regs[1::2]):
        assert b == a + 1 and a % 2 == 0
        pk2("v_pk_add_f32", a, a, vmean, neg_b=True)
        bf16r_pair(a, b, t)
        pk2("v_pk_mul_f32", a, a, vrs)
        bf16r_pair(a, b, t)

hdr = open("interleave_layers__sliding_block_cached__mixer_token_mlp__decode.s.ref").read().split("\n")
for line in hdr:
    if line.startswith("; @launch"):
        A(f"; @launch grid=(256,1,1) block=(320,1,1) lds={LDS_BYTES}")
        break
    A(line)
A('.amdgcn_target "amdgcn-amd-amdhsa--gfx950"')
A(".text")
A(f".globl {KNAME}")
A(".p2align 8")
A(f".type {KNAME},@function")
A(f"{KNAME}:")
A("    s_cmp_ge_u32 s2, 256")
A("    s_cbranch_scc1 L_end")
A("    s_load_dwordx16 s[4:19], s[0:1], 0")
A("    s_load_dwordx8 s[20:27], s[0:1], 64")
A("    s_load_dwordx2 s[28:29], s[0:1], 96")
A(f"    s_and_b32 s{sG}, s2, 7")
A(f"    s_lshr_b32 s{sIDX}, s2, 3")
A(f"    s_lshl_b32 s{sCU}, s{sG}, 5")
A(f"    s_add_u32 s{sCU}, s{sCU}, s{sIDX}")
A(f"    v_and_b32 v{vLANE}, 63, v0")
A(f"    v_lshrrev_b32 v2, 6, v0")
A("    s_nop 0")
A(f"    v_readfirstlane_b32 s{sWAVE}, v2")
A("    s_waitcnt lgkmcnt(0)")
A(f"    s_load_dwordx2 {sp(sTAG)}, {sp(sWS)}, {EPOCH_OFF}")
A(f"    s_cmp_eq_u32 s{sWAVE}, 4")
A("    s_cbranch_scc1 L_helper")
if TS:
    A("    v_mov_b32 v254, 0")
    A("    v_mov_b32 v253, 0")
ts("entry")

vXA = 2; vXR = 6; vXP = 8
A("    ; ---- prologue loads")
A(f"    v_lshlrev_b32 v{vL16}, 4, v{vLANE}")
A(f"    s_lshr_b32 s{sT0}, s{sIDX}, 3            ; kb")
A(f"    s_lshl_b32 s{sT1}, s{sT0}, 9")
A(f"    v_lshlrev_b32 v12, 3, v{vLANE}")
A(f"    v_add_u32 v{vAXR}, s{sT1}, v12")
A(f"    v_and_b32 v13, 7, v{vLANE}")
A(f"    v_lshlrev_b32 v13, 2, v13")
A(f"    s_lshl_b32 s{sT1}, s{sIDX}, 5")
A(f"    v_add_u32 v13, s{sT1}, v13")
A("    s_barrier")
A(f"    global_load_dword v{vXP}, v13, {sp(sX)}")
A(f"    s_lshl_b32 s{sT1}, s{sG}, 24")
A(f"    s_add_u32 s{sT1}, s{sT1}, {(65536-4096)*256}")
A(f"    s_lshl_b32 s{sT2}, s{sIDX}, 15")
A(f"    s_add_u32 s{sT1}, s{sT1}, s{sT2}")
A(f"    s_lshl_b32 s{sT2}, s{sWAVE}, 13")
A(f"    s_add_u32 s{sT1}, s{sT1}, s{sT2}")
A(f"    v_and_b32 v16, 15, v{vLANE}")
A(f"    v_lshlrev_b32 v16, 8, v16")
A(f"    v_lshrrev_b32 v17, 4, v{vLANE}")
A(f"    v_lshlrev_b32 v17, 4, v17")
A(f"    v_add3_u32 v16, v16, v17, s{sT1}")
A(f"    v_add_u32 v17, 4096, v16")
for T in range(2):
    for j in range(4):
        A(f"    global_load_dwordx4 {vr(vK+16*T+4*j,4)}, v{16+T}, {sp(sK)} offset:{j*64} nt")
vVS = 200
A(f"    v_add_u32 v18, s{sT1}, v{vL16}")
A(f"    v_add_u32 v19, 4096, v18")
for i in range(8):
    A(f"    global_load_dwordx4 {vr(vVS+4*i,4)}, v{18+i//4}, {sp(sV)} offset:{(i%4)*1024} nt")
N_AFTER_V = 0

A("    ; ---- persistent offsets")
A(f"    v_lshlrev_b32 v{vT8}, 3, v{vTID}")
A(f"    s_mul_i32 s{sT0}, s{sIDX}, {CS}")
A(f"    v_add_u32 v{vAO}, s{sT0}, v{vL16}")
A(f"    v_and_b32 v23, 15, v{vLANE}")
A(f"    v_lshlrev_b32 v24, 6, v23")
A(f"    v_lshrrev_b32 v25, 4, v{vLANE}")
A(f"    v_lshlrev_b32 v25, 4, v25")
A(f"    v_add3_u32 v{vAO2}, v24, v25, s{sT0}")
A(f"    s_lshr_b32 s{sT0}, s{sIDX}, 3            ; head")
A(f"    s_lshl_b32 s{sT0}, s{sT0}, 8")
A(f"    s_add_u32 s{sT0}, s{sT0}, {ML_OFF}")
A(f"    v_lshlrev_b32 v23, 3, v23")
A(f"    v_add_u32 v{vAML}, s{sT0}, v23")
A(f"    v_lshrrev_b32 v23, 3, v{vLANE}")
A(f"    v_lshlrev_b32 v24, 11, v23")
A(f"    v_and_b32 v25, 7, v{vLANE}")
A(f"    v_lshlrev_b32 v26, 3, v25")
A(f"    s_lshl_b32 s{sT0}, s{sIDX}, 6")
A(f"    s_add_u32 s{sT0}, s{sT0}, {P_OFF:#x}")
A(f"    v_add3_u32 v{vAP}, v24, v26, s{sT0}")
A(f"    v_and_b32 v23, 3, v23")
A(f"    v_lshlrev_b32 v23, 3, v23")
A(f"    v_lshlrev_b32 v26, 6, v25")
A(f"    s_lshl_b32 s{sT0}, s{sIDX}, 9")
A(f"    s_add_u32 s{sT0}, s{sT0}, {Y_OFF:#x}")
A(f"    v_add_u32 v{vAY}, s{sT0}, v26")
A(f"    v_lshrrev_b32 v23, 3, v{vTID}")
A(f"    s_mov_b32 s{sT0}, {CS}")
A(f"    v_mul_lo_u32 v23, v23, s{sT0}")
A(f"    v_and_b32 v24, 7, v{vTID}")
A(f"    v_lshlrev_b32 v24, 3, v24")
A(f"    s_lshl_b32 s{sT0}, s{sIDX}, 6")
A(f"    v_add3_u32 v{vAPUB}, v23, v24, s{sT0}")

def late_loads():
    A(f"    s_lshl_b32 s{sT1}, s{sG}, 19")
    A(f"    s_lshl_b32 s{sT2}, s{sIDX}, 14")
    A(f"    s_add_u32 s{sT1}, s{sT1}, s{sT2}")
    A(f"    s_lshl_b32 s{sT2}, s{sWAVE}, 8")
    A(f"    s_add_u32 s{sT1}, s{sT1}, s{sT2}")
    A(f"    v_lshrrev_b32 v58, 4, v{vLANE}")
    A(f"    v_lshlrev_b32 v58, 10, v58")
    A(f"    v_and_b32 v59, 15, v{vLANE}")
    A(f"    v_lshlrev_b32 v59, 4, v59")
    A(f"    v_add3_u32 v58, v58, v59, s{sT1}")
    for p in range(4):
        if p: A(f"    v_add_u32 v58, 4096, v58")
        A(f"    global_load_dwordx4 {vr(232+4*p,4)}, v58, {sp(sWO)} nt")
    A(f"    v_lshlrev_b32 v59, 1, v{vTID}")
    for i in range(7):
        A(f"    global_load_ushort v{vW1+i}, v59, {sp(sW1)} offset:{512*i}")
        A(f"    global_load_ushort v{vB1+i}, v59, {sp(sB1)} offset:{512*i}")
        A(f"    global_load_ushort v{vW2+i}, v59, {sp(sW2)} offset:{512*i}")
    A(f"    v_mov_b32 v60, 0")
    A(f"    global_load_ushort v{vB2}, v60, {sp(sB2)}")


def cmb_read4(dst, off):
    for w in range(4):
        A(f"    ds_read_b64 {vr(dst+2*w,2)}, v{vT8} offset:{off + w*2048}")

def q_frags():
    A(f"    v_lshrrev_b32 v47, 4, v{vLANE}")
    A(f"    v_and_b32 v48, 15, v{vLANE}")
    A(f"    v_lshrrev_b32 v49, 2, v48")
    A(f"    v_lshl_add_u32 v47, v47, 3, v49")
    A(f"    v_lshlrev_b32 v47, 7, v47")
    A(f"    v_and_b32 v48, 3, v48")
    A(f"    v_lshl_add_u32 v47, v48, 3, v47")
    A(f"    s_lshl_b32 s{sT0}, s{sWAVE}, 5")
    A(f"    v_add_u32 v47, s{sT0}, v47")
    for ks in range(4):
        A(f"    ds_read_b64_tr_b16 {vr(vWQ+4*ks,2)}, v47 offset:{LDS_WQ + ks*4096}")
        A(f"    ds_read_b64_tr_b16 {vr(vWQ+4*ks+2,2)}, v47 offset:{LDS_WQ + ks*4096 + 512}")

def q_phase(L, xa, xr):
    vm, vrs = 40, 41
    ln_stats(xa, vm, vrs, [42, 43, 44, 45])
    ln_apply(xr, vm, vrs, 42)
    A(f"    v_cvt_pk_bf16_f32 v46, v{xr[0]}, v{xr[1]}")
    A(f"    s_lshl_b32 s{sT0}, s{sWAVE}, 8")
    A(f"    v_lshlrev_b32 v47, 2, v{vLANE}")
    A(f"    v_add_u32 v47, s{sT0}, v47")
    A(f"    ds_write_b32 v47, v46 offset:{LDS_HW}")
    A(f"    v_lshrrev_b32 v48, 4, v{vLANE}")
    A(f"    v_lshlrev_b32 v48, 4, v48")
    A(f"    v_add_u32 v48, s{sT0}, v48")
    A("    s_waitcnt lgkmcnt(0)")
    for ks in range(4):
        A(f"    ds_read_b128 {vr(2+4*ks,4)}, v48 offset:{LDS_HW + ks*64}")
    A(f"    s_lshr_b32 s{sT0}, s{sIDX}, 3")
    A(f"    s_lshl_b32 s{sT0}, s{sT0}, 11")
    A(f"    s_and_b32 s{sT1}, s{sIDX}, 7")
    A(f"    s_lshl_b32 s{sT1}, s{sT1}, 8")
    A(f"    s_add_u32 s{sT0}, s{sT0}, s{sT1}")
    A(f"    s_lshl_b32 s{sT1}, s{sWAVE}, 6")
    A(f"    s_add_u32 s{sT0}, s{sT0}, s{sT1}")
    A(f"    v_lshlrev_b32 v49, 2, v{vLANE}")
    A(f"    v_add_u32 v49, s{sT0}, v49")
    A("    s_waitcnt lgkmcnt(0)")
    for ks in range(4):
        A(f"    v_mfma_f32_16x16x32_bf16 v[52:55], {vr(2+4*ks,4)}, {vr(vWQ+4*ks,4)}, {'v[52:55]' if ks else 0}")
    A(f"    v_cmp_gt_u32 vcc, 16, v{vLANE}")
    A(f"    s_and_saveexec_b64 {sp(sEX)}, vcc")
    nops(8)
    store_local([f"global_store_dword v49, v52, {sp(sLOC)}"])
    A(f"    s_mov_b64 exec, {sp(sEX)}")

def q_gather(tagged=False):
    base = 2
    loads = []; regs = []
    if not tagged:
        A(f"    v_add_u32 v60, 4096, v{vT8}")
        for kb in range(4):
            r = base + 2 * kb
            loads.append(f"global_load_dwordx2 {vr(r,2)}, v{vT8 if kb < 2 else 60}, {sp(sLOC)} offset:{(kb%2)*2048} sc1")
            regs += [r, r + 1]
        poll(loads, regs, 40, name="Q", local=True)
        for i in range(1, 4):
            A(f"    v_add_f32 v{base}, v{base}, v{base+2*i}")
            A(f"    v_add_f32 v{base+1}, v{base+1}, v{base+2*i+1}")
    else:
        A(f"    s_lshl_b32 s{sT0}, s{sG}, 14")
        A(f"    s_add_u32 s{sT0}, s{sT0}, {QT_OFF}")
        A(f"    v_lshlrev_b32 v60, 4, v{vTID}")
        A(f"    v_add_u32 v60, s{sT0}, v60")
        for kb in range(1, 4):
            A(f"    v_add_u32 v{60+kb}, {kb*4096}, v60")
        L = newlabel("pollt"); D = newlabel("polltd")
        A(f"    s_mov_b32 s{sTO}, 0x8000")
        ts("  poll begin QT")
        A(f"{L}:")
        for kb in range(4):
            A(f"    global_load_dwordx4 {vr(base+4*kb,4)}, v{60+kb}, {sp(sWS)} sc1")
        A("    s_waitcnt vmcnt(0)")
        for kb in range(4):
            A(f"    v_xor_b32 v{40+kb}, s{sTAG}, v{base+4*kb+2}")
            A(f"    v_xor_b32 v{44+kb}, s{sTAG+1}, v{base+4*kb+3}")
        A(f"    v_or3_b32 v40, v40, v41, v42")
        A(f"    v_or3_b32 v44, v44, v45, v46")
        A(f"    v_or3_b32 v40, v40, v43, v47")
        A(f"    v_or_b32 v40, v40, v44")
        A(f"    v_cmp_ne_u32 vcc, 0, v40")
        A(f"    s_cbranch_vccz {D}")
        A(f"    s_sub_u32 s{sTO}, s{sTO}, 1")
        A(f"    s_cbranch_scc0 {L}")
        A(f"{D}:")
        ts("  poll end QT")
        if "--nodefer" not in sys.argv: late_loads()
        for i in range(1, 4):
            A(f"    v_add_f32 v{base}, v{base}, v{base+4*i}")
            A(f"    v_add_f32 v{base+1}, v{base+1}, v{base+4*i+1}")
    A(f"    v_cvt_pk_bf16_f32 v40, v{base}, v{base+1}")
    A(f"    v_lshlrev_b32 v41, 2, v{vTID}")
    A(f"    ds_write_b32 v41, v40 offset:{LDS_QS}")
    A("    s_waitcnt lgkmcnt(0)")
    A("    s_barrier")

def attention(L):
    vQ = 2
    A("    ; ---- attention")
    A(f"    v_and_b32 v40, 3, v{vLANE}")
    A(f"    v_lshlrev_b32 v40, 8, v40")
    A(f"    v_lshrrev_b32 v41, 4, v{vLANE}")
    A(f"    v_lshl_add_u32 v40, v41, 4, v40")
    for j in range(4):
        A(f"    ds_read_b128 {vr(vQ+4*j,4)}, v40 offset:{LDS_QS + j*64}")
    S = 24
    O = 200
    A(f"    s_mov_b32 s{sC}, {f32bits(128 ** -0.5):#x}")
    A(f"    s_mov_b32 s{sC+1}, {f32bits(1.4426950408889634):#x}")
    A("    s_waitcnt lgkmcnt(0)")
    nops(1)
    for j in range(4):
        for T in range(2):
            A(f"    v_mfma_f32_16x16x32_bf16 {vr(S+4*T,4)}, {vr(vK+16*T+4*j,4)}, {vr(vQ+4*j,4)}, {vr(S+4*T,4) if j else 0}")
    A(f"    v_and_b32 v40, 15, v{vLANE}            ; col")
    A(f"    v_lshlrev_b32 v42, 9, v40              ; head*512")
    A(f"    v_lshl_add_u32 v42, v41, 4, v42        ; + slab*16")
    A(f"    s_lshl_b32 s{sT0}, s{sWAVE}, 11")
    A(f"    v_add_u32 v42, s{sT0}, v42")
    A(f"    s_lshl_b32 s{sT0}, s{sWAVE}, 3")
    A(f"    v_lshlrev_b32 v43, 5, v{vLANE}         ; head*32")
    A(f"    v_add_u32 v43, s{sT0}, v43")
    nops(3)
    dump(3 + 8 * L, list(range(S, S + 8)))
    for r in range(0, 8, 2):
        bf16r_pair(S + r, S + r + 1, 44)
        A(f"    v_mul_f32 v{S+r}, s{sC}, v{S+r}")
        A(f"    v_mul_f32 v{S+r+1}, s{sC}, v{S+r+1}")
        bf16r_pair(S + r, S + r + 1, 44)
    vm, vl = 34, 35
    A(f"    v_max3_f32 v{vm}, v{S}, v{S+1}, v{S+2}")
    A(f"    v_max3_f32 v{vm}, v{vm}, v{S+3}, v{S+4}")
    A(f"    v_max3_f32 v{vm}, v{vm}, v{S+5}, v{S+6}")
    A(f"    v_max_f32 v{vm}, v{vm}, v{S+7}")
    xreduce([vm], "v_max_f32", [44], bits=(16, 32))
    A(f"    v_mul_f32 v45, s{sC+1}, v{vm}")
    for r in range(8):
        A(f"    v_fma_f32 v{S+r}, v{S+r}, s{sC+1}, -v45")
    for r in range(8):
        A(f"    v_exp_f32 v{S+r}, v{S+r}")
    A("    s_nop 0")
    P = 36
    for i in range(4):
        A(f"    v_cvt_pk_bf16_f32 v{P+i}, v{S+2*i}, v{S+2*i+1}")
    A(f"    v_add_f32 v{vl}, v{S}, v{S+1}")
    A(f"    v_add_f32 v{vl}, v{vl}, v{S+2}")
    for T in range(8):
        A(f"    v_mfma_f32_16x16x32_bf16 {vr(O+4*T,4)}, {vr(vVT+4*T,4)}, {vr(P,4)}, 0")
    for r in range(3, 8):
        A(f"    v_add_f32 v{vl}, v{vl}, v{S+r}")
    xreduce([vl], "v_add_f32", [44], bits=(16, 32))
    nops(4)
    A(f"    v_cmp_gt_u32 vcc, 4, v40")
    A(f"    s_and_saveexec_b64 {sp(sEX)}, vcc")
    for T in range(8):
        A(f"    ds_write_b128 v42, {vr(O+4*T,4)} offset:{LDS_CMB + T*64}")
    A(f"    v_cmp_gt_u32 vcc, 4, v{vLANE}")
    A(f"    s_and_b64 exec, exec, vcc")
    A(f"    ds_write_b64 v43, {vr(vm,2)} offset:{LDS_MLW}")
    A(f"    s_mov_b64 exec, {sp(sEX)}")
    A("    s_waitcnt lgkmcnt(0)")
    A("    s_barrier")
    if L == 0:
        ts("B1")
        A(f"    v_mov_b32 v58, {LDS_MODE}")
        A(f"    ds_read_b32 v58, v58")
    cmb_read4(2, LDS_CMB)
    A(f"    s_lshl_b32 s{sT0}, s{sWAVE}, 5")
    A(f"    v_mov_b32 v40, s{sT0}")
    A(f"    ds_read_b128 {vr(12,4)}, v40 offset:{LDS_MLW}")
    A(f"    ds_read_b128 {vr(16,4)}, v40 offset:{LDS_MLW+16}")
    A("    s_waitcnt lgkmcnt(0)")
    if L == 0:
        A(f"    v_readfirstlane_b32 s{sMODE}, v58")
    M, Lr = 20, 21
    A(f"    v_max3_f32 v{M}, v12, v14, v16")
    A(f"    v_max_f32 v{M}, v{M}, v18")
    for w in range(4):
        A(f"    v_sub_f32 v{12+2*w}, v{12+2*w}, v{M}")
    for w in range(4):
        A(f"    v_mul_f32 v{12+2*w}, s{sC+1}, v{12+2*w}")
    for w in range(4):
        A(f"    v_exp_f32 v{12+2*w}, v{12+2*w}")
    A("    s_nop 0")
    A(f"    v_mul_f32 v{Lr}, v12, v13")
    A(f"    v_mul_f32 v2, v12, v2")
    A(f"    v_mul_f32 v3, v12, v3")
    for w in range(1, 4):
        A(f"    v_fmac_f32 v{Lr}, v{12+2*w}, v{13+2*w}")
        A(f"    v_fmac_f32 v2, v{12+2*w}, v{2+2*w}")
        A(f"    v_fmac_f32 v3, v{12+2*w}, v{3+2*w}")
    A(f"    s_lshl_b32 s{sT0}, s{sWAVE}, 8")
    A(f"    s_lshl_b32 s{sT1}, s{sIDX}, 3")
    A(f"    s_add_u32 s{sT0}, s{sT0}, s{sT1}")
    A(f"    s_add_u32 s{sT0}, s{sT0}, {ML_OFF}")
    A(f"    v_mov_b32 v41, s{sT0}")
    A(f"    v_add_u32 v40, {O_OFF}, v{vAPUB}")
    store_local([f"global_store_dwordx2 v40, v[2:3], {sp(sLOC)}"])
    A(f"    v_cmp_eq_u32 vcc, 0, v{vLANE}")
    A(f"    s_and_saveexec_b64 {sp(sEX)}, vcc")
    store_local([f"global_store_dwordx2 v41, {vr(M,2)}, {sp(sLOC)}"])
    A(f"    s_mov_b64 exec, {sp(sEX)}")

def o_combine_wo(L):
    A("    ; ---- o combine")
    o0, o1, ml0, ml1 = 2, 6, 10, 12
    A(f"    v_add_u32 v40, {O_OFF}, v{vAO2}")
    loads = [f"global_load_dwordx4 {vr(o0,4)}, v40, {sp(sLOC)} sc1",
             f"global_load_dwordx4 {vr(o1,4)}, v40, {sp(sLOC)} offset:1024 sc1",
             f"global_load_dwordx2 {vr(ml0,2)}, v{vAML}, {sp(sLOC)} sc1",
             f"global_load_dwordx2 {vr(ml1,2)}, v{vAML}, {sp(sLOC)} offset:128 sc1"]
    poll(loads, list(range(2, 14)), 41, name="O", local=True)
    if L == 0:
        A(f"    s_lshl_b32 s{sT0}, s{sWAVE}, 12")
        A(f"    v_add_u32 v46, s{sT0}, v{vL16}")
        for p in range(4):
            A(f"    ds_write_b128 v46, {vr(232+4*p,4)} offset:{LDS_WO + p*1024}")
        A(f"    v_lshrrev_b32 v47, 4, v{vLANE}")
        A(f"    v_and_b32 v48, 15, v{vLANE}")
        A(f"    v_lshrrev_b32 v49, 2, v48")
        A(f"    v_lshl_add_u32 v47, v47, 2, v49")
        A(f"    v_lshlrev_b32 v47, 8, v47")
        A(f"    v_and_b32 v48, 3, v48")
        A(f"    v_lshl_add_u32 v47, v48, 3, v47")
        A(f"    v_add_u32 v47, s{sT0}, v47")
    M = 14
    A(f"    v_max_f32 v{M}, v{ml0}, v{ml1}")
    xreduce([M], "v_max_f32", [40], bits=(1, 2, 4, 8))
    if L == 0:
        A("    s_waitcnt lgkmcnt(0)")
        for T in range(8):
            A(f"    ds_read_b64_tr_b16 {vr(vWO+2*T,2)}, v47 offset:{LDS_WO + T*32}")
    A(f"    v_sub_f32 v{ml0}, v{ml0}, v{M}")
    A(f"    v_sub_f32 v{ml1}, v{ml1}, v{M}")
    A(f"    v_mul_f32 v{ml0}, s{sC+1}, v{ml0}")
    A(f"    v_mul_f32 v{ml1}, s{sC+1}, v{ml1}")
    A(f"    v_exp_f32 v{ml0}, v{ml0}")
    A(f"    v_exp_f32 v{ml1}, v{ml1}")
    A("    s_nop 0")
    Lr = 15
    A(f"    v_mul_f32 v{Lr}, v{ml0}, v{ml0+1}")
    A(f"    v_fmac_f32 v{Lr}, v{ml1}, v{ml1+1}")
    for e in range(4):
        A(f"    v_mul_f32 v{o0+e}, v{ml0}, v{o0+e}")
        A(f"    v_fmac_f32 v{o0+e}, v{ml1}, v{o1+e}")
    xreduce([Lr, o0, o0 + 1, o0 + 2, o0 + 3], "v_add_f32", [40, 41, 42, 43, 44], bits=(1, 2, 4, 8))
    A(f"    v_rcp_f32 v{Lr}, v{Lr}")
    A("    s_nop 0")
    for e in range(4):
        A(f"    v_mul_f32 v{o0+e}, v{o0+e}, v{Lr}")
    A(f"    v_cvt_pk_bf16_f32 v16, v{o0}, v{o0+1}")
    A(f"    v_cvt_pk_bf16_f32 v17, v{o0+2}, v{o0+3}")
    if DEBUG_DUMP:
        unpack(6, 7, 16); unpack(8, 9, 17)
        dump(4 + 8 * L, [6, 7, 8, 9])
    A("    ; ---- wo via MFMA")
    A(f"    s_mul_i32 s{sT0}, s{sWAVE}, {8*CS}")
    A(f"    s_lshl_b32 s{sT1}, s{sIDX}, 6")
    A(f"    s_add_u32 s{sT0}, s{sT0}, s{sT1}")
    A(f"    s_add_u32 s{sT0}, s{sT0}, {R_OFF}")
    A(f"    v_lshlrev_b32 v50, 2, v{vLANE}")
    A(f"    v_add_u32 v50, s{sT0}, v50")
    if L == 0:
        A("    s_waitcnt lgkmcnt(0)")
    D = 200
    for T in range(8):
        A(f"    v_mfma_f32_16x16x16_bf16 {vr(D+4*T,4)}, v[16:17], {vr(vWO+2*T,2)}, 0")
    for T in range(1, 8):
        A(f"    v_add_u32 v{50+T}, {T*CS}, v50")
    A(f"    v_cmp_gt_u32 vcc, 16, v{vLANE}")
    A(f"    s_and_saveexec_b64 {sp(sEX)}, vcc")
    nops(2)
    store_local([f"global_store_dword v{50+T}, v{D+4*T}, {sp(sLOC)}" for T in range(8)])
    A(f"    s_mov_b64 exec, {sp(sEX)}")

def x1_chain(L):
    Lskip = newlabel("w0")
    A(f"    s_cmp_eq_u32 s{sWAVE}, 0")
    A(f"    s_cbranch_scc0 {Lskip}")
    r0, r1 = 2, 6
    A(f"    v_add_u32 v40, {R_OFF}, v{vAO}")
    loads = [f"global_load_dwordx4 {vr(r0,4)}, v40, {sp(sLOC)} sc1",
             f"global_load_dwordx4 {vr(r1,4)}, v40, {sp(sLOC)} offset:1024 sc1"]
    poll(loads, list(range(2, 10)), 41, name="R", local=True)
    for e in range(4):
        A(f"    v_add_f32 v{r0+e}, v{r0+e}, v{r1+e}")
    xreduce([r0, r0 + 1, r0 + 2, r0 + 3], "v_add_f32", [40, 41, 42, 43], bits=(4, 8, 16, 32))
    A(f"    s_lshl_b32 s{sT0}, s{sG}, 11")
    A(f"    s_lshl_b32 s{sT1}, s{sIDX}, 6")
    A(f"    s_add_u32 s{sT0}, s{sT0}, s{sT1}")
    A(f"    s_add_u32 s{sT0}, s{sT0}, {P_OFF:#x}")
    A(f"    v_add_u32 v40, s{sT0}, v{vL16}")
    A(f"    v_cmp_gt_u32 vcc, 4, v{vLANE}")
    A(f"    s_and_saveexec_b64 {sp(sEX)}, vcc")
    A(f"    global_store_dwordx4 v40, {vr(r0,4)}, {sp(sGL)} sc1")
    A(f"    s_mov_b64 exec, {sp(sEX)}")
    loads = [f"global_load_dwordx2 v[2:3], v{vAP}, {sp(sGL)} sc1"]
    extra = None
    if L == 0:
        A(f"    v_and_b32 v24, 7, v{vLANE}")
        A(f"    v_lshlrev_b32 v24, 2, v24")
        loads.append(f"global_load_dword v25, v24, {sp(sDBG)} offset:192 sc1")
        def extra():
            A(f"    v_cmp_eq_u32 {sp(sCM)}, 0, v25")
            A(f"    s_or_b64 vcc, vcc, {sp(sCM)}")
    poll(loads, [2, 3], 40, extra, name="P")
    xreduce([2, 3], "v_add_f32", [40, 41], bits=(8, 16, 32))
    bf16r_pair(2, 3, 40)
    A(f"    v_add_f32 v{vXM}, v{vXM}, v2")
    A(f"    v_add_f32 v{vXM+1}, v{vXM+1}, v3")
    bf16r_pair(vXM, vXM + 1, 40)
    xl_publish(XL_OFF)
    xl_fetch(XL_OFF, "XL")
    A(f"{Lskip}:")
    A("    s_barrier")

def xl_publish(off):
    A(f"    s_lshl_b32 s{sT0}, s{sIDX}, 6")
    A(f"    s_add_u32 s{sT0}, s{sT0}, {off}")
    A(f"    v_lshlrev_b32 v40, 3, v{vLANE}")
    A(f"    v_add_u32 v40, s{sT0}, v40")
    A(f"    v_cmp_gt_u32 vcc, 8, v{vLANE}")
    A(f"    s_and_saveexec_b64 {sp(sEX)}, vcc")
    store_local([f"global_store_dwordx2 v40, {vr(vXM,2)}, {sp(sLOC)}"])
    A(f"    s_mov_b64 exec, {sp(sEX)}")

def xl_fetch(off, name):
    A(f"    v_lshlrev_b32 v41, 5, v{vLANE}")
    A(f"    v_add_u32 v40, {off}, v41")
    poll([f"global_load_dwordx4 v[2:5], v40, {sp(sLOC)} sc1",
          f"global_load_dwordx4 v[6:9], v40, {sp(sLOC)} offset:16 sc1"], list(range(2, 10)), 42, name=name, local=True)
    A(f"    ds_write_b128 v41, v[2:5] offset:{LDS_XS}")
    A(f"    ds_write_b128 v41, v[6:9] offset:{LDS_XS+16}")
    A("    s_waitcnt lgkmcnt(0)")

def b_phase(L):
    A("    ; ---- mixer MLP")
    xa = list(range(2, 10))
    ha, hb = 10, 11
    xa_, xb_ = 12, 13
    A(f"    v_lshlrev_b32 v40, 5, v{vLANE}")
    A(f"    s_lshl_b32 s{sT0}, s2, 3")
    A(f"    v_mov_b32 v41, s{sT0}")
    A(f"    ds_read_b128 v[2:5], v40 offset:{LDS_XS}")
    A(f"    ds_read_b128 v[6:9], v40 offset:{LDS_XS+16}")
    A(f"    ds_read_b64 v[10:11], v41 offset:{LDS_XS}")
    A("    s_waitcnt lgkmcnt(0)")
    dump(5 + 8 * L, xa)
    if L == 0:
        for i in range(7):
            A(f"    v_lshlrev_b32 v{vW1+i}, 16, v{vW1+i}")
            A(f"    v_lshlrev_b32 v{vB1+i}, 16, v{vB1+i}")
            A(f"    v_lshlrev_b32 v{vW2+i}, 16, v{vW2+i}")
        A(f"    v_lshlrev_b32 v{vB2}, 16, v{vB2}")
    A(f"    v_mov_b32 v{xa_}, v{ha}")
    A(f"    v_mov_b32 v{xb_}, v{hb}")
    vm, vrs = 14, 15
    ln_stats(xa, vm, vrs, [42, 43, 44, 45])
    ln_apply(xa + [ha, hb], vm, vrs, 42)
    ln_stats(xa, vm, vrs, [42, 43, 44, 45])
    ln_apply([ha, hb], vm, vrs, 42)
    dump(6 + 8 * L, [ha, hb])
    c1 = -2.0 * 0.7978845608028654 * 1.4426950408889634
    A(f"    s_mov_b32 s{sC+2}, {f32bits(c1):#x}")
    A(f"    s_mov_b32 s{sC+3}, {f32bits(c1*0.044715):#x}")
    acca, accb = 16, 17
    A(f"    v_mov_b32 v{acca}, 0")
    A(f"    v_mov_b32 v{accb}, 0")
    A(f"    v_mov_b32 v30, s{sC+2}")
    A(f"    v_mov_b32 v31, s{sC+3}")
    A(f"    v_mov_b32 v32, 1.0")
    U = 200
    Z = 216
    for i in range(7): pk2("v_pk_mul_f32", U + 2 * i, ha, vW1 + i)
    for i in range(7): bf16r_pair(U + 2 * i, U + 2 * i + 1, 24)
    for i in range(7): pk2("v_pk_add_f32", U + 2 * i, U + 2 * i, vB1 + i)
    for i in range(7): bf16r_pair(U + 2 * i, U + 2 * i + 1, 24)
    for i in range(7): A(f"    v_pk_mul_f32 {vr(Z+2*i,2)}, {vr(U+2*i,2)}, {vr(U+2*i,2)}")
    for i in range(7): A(f"    v_pk_fma_f32 {vr(Z+2*i,2)}, {vr(Z+2*i,2)}, v[30:31], v[30:31] op_sel:[0,1,0] op_sel_hi:[1,1,0]")
    for i in range(7): A(f"    v_pk_mul_f32 {vr(Z+2*i,2)}, {vr(Z+2*i,2)}, {vr(U+2*i,2)}")
    for k in range(14): A(f"    v_exp_f32 v{Z+k}, v{Z+k}")
    for i in range(7): pk2("v_pk_add_f32", Z + 2 * i, Z + 2 * i, 32)
    for k in range(14): A(f"    v_rcp_f32 v{Z+k}, v{Z+k}")
    for i in range(7): A(f"    v_pk_mul_f32 {vr(U+2*i,2)}, {vr(U+2*i,2)}, {vr(Z+2*i,2)}")
    for i in range(7): bf16r_pair(U + 2 * i, U + 2 * i + 1, 24)
    for i in range(7):
        t, sel = bc(vW2 + i)
        A(f"    v_pk_fma_f32 {vr(acca,2)}, {vr(U+2*i,2)}, {t}, {vr(acca,2)} op_sel:[0,{sel},0] op_sel_hi:[1,{sel},1]")
    xreduce([acca, accb], "v_add_f32", [40, 41])
    return acca, accb, xa_, xb_

def y_finish(acca, xa_, xb_):
    A(f"    s_lshl_b32 s{sT0}, s{sWAVE}, 3")
    A(f"    v_mov_b32 v40, s{sT0}")
    A(f"    ds_write_b64 v40, {vr(acca,2)} offset:{LDS_YS}")
    A("    s_waitcnt lgkmcnt(0)")
    A("    s_barrier")

def y_sum(xa_, xb_):
    A(f"    v_mov_b32 v40, 0")
    A(f"    ds_read_b128 {vr(2,4)}, v40 offset:{LDS_YS}")
    A(f"    ds_read_b128 {vr(6,4)}, v40 offset:{LDS_YS+16}")
    A("    s_waitcnt lgkmcnt(0)")
    for w in range(1, 4):
        A(f"    v_add_f32 v2, v2, v{2+2*w}")
        A(f"    v_add_f32 v3, v3, v{3+2*w}")
    bf16r_pair(2, 3, 40)
    A(f"    v_add_f32 v2, v2, v{vB2}")
    A(f"    v_add_f32 v3, v3, v{vB2}")
    bf16r_pair(2, 3, 40)
    A(f"    v_add_f32 v2, v{xa_}, v2")
    A(f"    v_add_f32 v3, v{xb_}, v3")

def x2_chain(acca, xa_, xb_):
    y_finish(acca, xa_, xb_)
    Lskip = newlabel("w0")
    A(f"    s_cmp_eq_u32 s{sWAVE}, 0")
    A(f"    s_cbranch_scc0 {Lskip}")
    y_sum(xa_, xb_)
    bf16r_pair(2, 3, 40)
    A(f"    s_lshl_b32 s{sT0}, s2, 6")
    A(f"    s_add_u32 s{sT0}, s{sT0}, {Y_OFF:#x}")
    A(f"    v_mov_b32 v40, s{sT0}")
    A(f"    v_cmp_eq_u32 vcc, 0, v{vLANE}")
    A(f"    s_and_saveexec_b64 {sp(sEX)}, vcc")
    A(f"    global_store_dwordx2 v40, v[2:3], {sp(sGL)} sc1")
    A(f"    s_mov_b64 exec, {sp(sEX)}")
    poll([f"global_load_dwordx2 {vr(vXM,2)}, v{vAY}, {sp(sGL)} sc1"], [vXM, vXM + 1], 40, name="Y")
    xl_publish(XL2_OFF)
    xl_fetch(XL2_OFF, "XL2")
    A(f"{Lskip}:")
    A("    s_barrier")

ts("start")
set_layer(0)
xa = list(range(24, 32)); xr = list(range(32, 36))
A("    ; ---- V transpose")
A(f"    s_waitcnt vmcnt({N_AFTER_V})")
ts("V arrived")
A(f"    s_lshl_b32 s{sT0}, s{sWAVE}, 13")
A(f"    v_add_u32 v40, s{sT0}, v{vL16}")
for i in range(8):
    A(f"    ds_write_b128 v40, {vr(vVS+4*i,4)} offset:{LDS_V + i*1024}")
A(f"    v_lshrrev_b32 v41, 4, v{vLANE}")
A(f"    v_and_b32 v42, 15, v{vLANE}")
A(f"    v_lshrrev_b32 v43, 2, v42")
A(f"    v_lshl_add_u32 v43, v41, 2, v43")
A(f"    v_lshlrev_b32 v43, 8, v43")
A(f"    v_and_b32 v42, 3, v42")
A(f"    v_lshl_add_u32 v43, v42, 3, v43")
A(f"    v_add_u32 v43, s{sT0}, v43")
A("    s_waitcnt lgkmcnt(0)")
for T in range(8):
    A(f"    ds_read_b64_tr_b16 {vr(vVT+4*T,2)}, v43 offset:{LDS_V + T*32}")
    A(f"    ds_read_b64_tr_b16 {vr(vVT+4*T+2,2)}, v43 offset:{LDS_V + T*32 + 4096}")
unpack(vXM, vXM + 1, vXP)
A("    s_waitcnt lgkmcnt(0)")
A(f"    s_add_u32 s{sTAG}, s{sTAG}, 1")
A(f"    s_addc_u32 s{sTAG+1}, s{sTAG+1}, 0")
ts("all loads+transpose")
late_loads()
A("    s_barrier")
ts("q gathered")
attention(0)
ts("attn")
o_combine_wo(0)
ts("o+wo")
x1_chain(0)
ts("x1 chain")
acca, accb, xa_, xb_ = b_phase(0)
ts("B")
x2_chain(acca, xa_, xb_)
ts("x2 chain")
q_frags()
A(f"    v_lshlrev_b32 v40, 5, v{vLANE}")
A(f"    ds_read_b128 v[24:27], v40 offset:{LDS_XS}")
A(f"    ds_read_b128 v[28:31], v40 offset:{LDS_XS+16}")
A(f"    ds_read_b64 v[32:33], v{vAXR} offset:{LDS_XS}")
A("    s_waitcnt lgkmcnt(0)")
dump(7, xa)
set_layer(1)
q_phase(1, xa, [32, 33])
ts("q2 pub")
q_gather()
ts("q2 gathered")
attention(1)
ts("attn2")
o_combine_wo(1)
ts("o+wo 2")
x1_chain(1)
ts("x1 chain 2")
acca, accb, xa_, xb_ = b_phase(1)
ts("B2")
ts_flush()
diag_flush()
A("    ; ---- final")
y_finish(acca, xa_, xb_)
A(f"    s_cmp_eq_u32 s{sWAVE}, 0")
A("    s_cbranch_scc0 L_end")
y_sum(xa_, xb_)
A(f"    v_cvt_pk_bf16_f32 v4, v2, v3")
A(f"    s_lshl_b32 s{sT0}, s2, 2")
A(f"    v_mov_b32 v40, s{sT0}")
A(f"    v_cmp_eq_u32 vcc, 0, v{vLANE}")
A(f"    s_and_saveexec_b64 {sp(sEX)}, vcc")
A(f"    global_store_dword v40, v4, {sp(sOUT)}")
A(f"    s_cmp_eq_u32 s2, 0")
A(f"    s_cbranch_scc0 L_noep")
A(f"    v_mov_b32 v40, {EPOCH_OFF}")
A(f"    v_mov_b32 v42, s{sTAG}")
A(f"    v_mov_b32 v43, s{sTAG+1}")
A(f"    global_store_dwordx2 v40, v[42:43], {sp(sWS)} sc1")
A("L_noep:")
A("    s_waitcnt vmcnt(0)")
A("    s_branch L_end")

A("L_helper:")
if TS:
    A("    v_mov_b32 v254, 0")
    A("    v_mov_b32 v253, 0")
hts("h entry")
hWQ = 64
A("    s_setprio 3")
A(f"    v_lshlrev_b32 v2, 4, v{vLANE}")
A(f"    global_load_dwordx4 v[24:27], v2, {sp(sX)}")
A(f"    s_lshr_b32 s{sT0}, s{sIDX}, 3            ; kb")
A(f"    s_lshl_b32 s{sT1}, s{sT0}, 8             ; kb*128*2")
A(f"    v_lshlrev_b32 v8, 2, v{vLANE}")
A(f"    v_add_u32 v9, s{sT1}, v8")
A(f"    global_load_dword v28, v9, {sp(sX)}")
A(f"    s_lshl_b32 s{sT1}, s{sT0}, 20")
A(f"    s_lshl_b32 s{sT2}, s{sG}, 10")
A(f"    s_add_u32 s{sT1}, s{sT1}, s{sT2}")
A(f"    s_and_b32 s{sT2}, s{sIDX}, 7")
A(f"    s_lshl_b32 s{sT2}, s{sT2}, 7")
A(f"    s_add_u32 s{sT1}, s{sT1}, s{sT2}")
A(f"    v_lshrrev_b32 v3, 3, v{vLANE}")
A(f"    v_lshlrev_b32 v9, 13, v3")
A(f"    v_and_b32 v10, 7, v{vLANE}")
A(f"    v_lshlrev_b32 v11, 4, v10")
A(f"    v_add3_u32 v9, v9, v11, s{sT1}")
for i in range(16):
    if i: A(f"    v_add_u32 v9, 0x10000, v9")
    A(f"    global_load_dwordx4 {vr(hWQ+4*i,4)}, v9, {sp(sWQ)} nt      ; rows 8i + (l>>3)")
A("    s_barrier")
hts("h issued")
A(f"    s_waitcnt vmcnt(16)")
hts("h x arrived")
hxa = list(range(40, 48))
for i in range(4): unpack(hxa[2 * i], hxa[2 * i + 1], 24 + i)
unpack(30, 31, 28)
ln_stats(hxa, 48, 49, [50, 51, 52, 53])
ln_apply([30, 31], 48, 49, 50)
A(f"    v_cvt_pk_bf16_f32 v32, v30, v31")
A(f"    ds_write_b32 v8, v32 offset:{LDS_HS}")
A("    s_waitcnt lgkmcnt(0)")
A(f"    s_add_u32 s{sTAG}, s{sTAG}, 1")
A(f"    s_addc_u32 s{sTAG+1}, s{sTAG+1}, 0")
A(f"    v_lshrrev_b32 v12, 4, v{vLANE}           ; slab")
A(f"    v_lshlrev_b32 v13, 4, v12")
hA = 130
for ks in range(4):
    A(f"    ds_read_b128 {vr(hA+4*ks,4)}, v13 offset:{LDS_HS + ks*64}")
for i in range(16):
    A(f"    s_waitcnt vmcnt({15 - i})")
    A(f"    ds_write_b128 v2, {vr(hWQ+4*i,4)} offset:{LDS_WQ + i*1024}")
A(f"    v_and_b32 v14, 15, v{vLANE}")
A(f"    v_lshrrev_b32 v15, 2, v14")
A(f"    v_lshl_add_u32 v15, v12, 3, v15")
A(f"    v_lshlrev_b32 v15, 7, v15")
A(f"    v_and_b32 v14, 3, v14")
A(f"    v_lshl_add_u32 v15, v14, 3, v15")
A("    s_waitcnt lgkmcnt(0)")
hB = 64
hD = 146
def h_reads(j):
    for ks in range(4):
        r = hB + 16 * j + 4 * ks
        A(f"    ds_read_b64_tr_b16 {vr(r,2)}, v15 offset:{LDS_WQ + ks*4096 + j*32}")
        A(f"    ds_read_b64_tr_b16 {vr(r+2,2)}, v15 offset:{LDS_WQ + ks*4096 + j*32 + 512}")
def h_mfma(j):
    for ks in range(4):
        c = "0" if ks == 0 else vr(hD + 4 * j, 4)
        A(f"    v_mfma_f32_16x16x32_bf16 {vr(hD+4*j,4)}, {vr(hA+4*ks,4)}, {vr(hB+16*j+4*ks,4)}, {c}")
h_reads(0); h_reads(1)
A("    s_waitcnt lgkmcnt(8)"); h_mfma(0); h_reads(2)
A("    s_waitcnt lgkmcnt(8)"); h_mfma(1); h_reads(3)
A("    s_waitcnt lgkmcnt(8)"); h_mfma(2)
A("    s_waitcnt lgkmcnt(0)"); h_mfma(3)
hts("h fma done")
A(f"    s_lshl_b32 s{sT0}, s{sG}, 14")
A(f"    s_lshr_b32 s{sT1}, s{sIDX}, 3")
A(f"    s_lshl_b32 s{sT1}, s{sT1}, 12")
A(f"    s_add_u32 s{sT0}, s{sT0}, s{sT1}")
A(f"    s_and_b32 s{sT1}, s{sIDX}, 7")
A(f"    s_lshl_b32 s{sT1}, s{sT1}, 9")
A(f"    s_add_u32 s{sT0}, s{sT0}, s{sT1}")
A(f"    s_add_u32 s{sT0}, s{sT0}, {QT_OFF}")
A(f"    v_lshlrev_b32 v17, 3, v{vLANE}")
A(f"    v_add_u32 v17, s{sT0}, v17")
A(f"    v_and_b32 v18, 0x31, v{vLANE}")
nops(6)
for j in range(4):
    A(f"    v_mov_b32_dpp v{hD+4*j+1}, v{hD+4*j} quad_perm:[1,1,3,3] row_mask:0xf bank_mask:0xf")
    A(f"    v_mov_b32 v{hD+4*j+2}, s{sTAG}")
    A(f"    v_mov_b32 v{hD+4*j+3}, s{sTAG+1}")
A(f"    v_cmp_eq_u32 vcc, 0, v18")
A(f"    s_and_saveexec_b64 {sp(sEX)}, vcc")
for j in range(4):
    A(f"    global_store_dwordx4 v17, {vr(hD+4*j,4)}, {sp(sWS)} offset:{j*128} sc1")
A(f"    s_mov_b64 exec, {sp(sEX)}")
hts("h q published")
A("    s_setprio 0")
for r in range(4, 8): A(f"    v_mov_b32 v{r}, -1")
def clear_local(flag):
    for L in range(2):
        set_layer(L)
        A(f"    s_mul_i32 s{sT0}, s{sIDX}, {CLR_PER_CU}")
        A(f"    v_add_u32 v36, s{sT0}, v2")
        for i in range(CLR_PER_CU // 1024):
            if i and i % 4 == 0:
                A(f"    v_add_u32 v36, 4096, v36")
            A(f"    global_store_dwordx4 v36, v[4:7], {sp(sLOC)} offset:{(i%4)*1024}{flag}")
clear_local(" sc1")
A(f"    s_lshl_b32 s{sT0}, s{sG}, 11")
A(f"    s_lshl_b32 s{sT1}, s{sIDX}, 6")
A(f"    s_add_u32 s{sT0}, s{sT0}, s{sT1}")
A(f"    s_add_u32 s{sT0}, s{sT0}, {LAYER_BASE + P_OFF:#x}")
A(f"    v_add_u32 v13, s{sT0}, v2")
A(f"    v_add_u32 v14, {LAYER_STRIDE:#x}, v13")
A(f"    s_lshl_b32 s{sT0}, s2, 6")
A(f"    s_add_u32 s{sT0}, s{sT0}, {LAYER_BASE + Y_OFF:#x}")
A(f"    v_add_u32 v15, s{sT0}, v2")
A(f"    v_cmp_gt_u32 vcc, 4, v{vLANE}")
A(f"    s_and_saveexec_b64 {sp(sEX)}, vcc")
A(f"    global_store_dwordx4 v13, v[4:7], {sp(sWS)} sc1")
A(f"    global_store_dwordx4 v14, v[4:7], {sp(sWS)} sc1")
A(f"    global_store_dwordx4 v15, v[4:7], {sp(sWS)} sc1")
A(f"    s_mov_b64 exec, {sp(sEX)}")
A(f"    v_mov_b32 v12, s{sTAG}")
A(f"    v_mov_b32 v13, s{sTAG+1}")
A(f"    s_lshl_b32 s{sT0}, s{sG}, 14")
A(f"    s_add_u32 s{sT0}, s{sT0}, {QT_OFF}")
A(f"    v_add_u32 v40, s{sT0}, v2")
for kb in range(1, 4):
    A(f"    v_add_u32 v{40+kb}, {kb*4096}, v40")
A(f"    s_getreg_b32 s{sT2}, hwreg(HW_REG_XCC_ID)")
A(f"    s_and_b32 s{sT2}, s{sT2}, 0xffff")
A(f"    v_mov_b32 v14, s{sT2}")
A(f"    v_mov_b32 v15, 0")
A(f"    s_lshl_b32 s{sT0}, s{sCU}, 6")
A(f"    v_mov_b32 v16, s{sT0}")
A(f"    s_lshl_b32 s{sT1}, s{sG}, 11")
A(f"    v_and_b32 v17, 31, v{vLANE}")
A(f"    v_lshlrev_b32 v17, 6, v17")
A(f"    v_add_u32 v17, s{sT1}, v17")
A(f"    s_mov_b32 s{sTO}, 0x8000")
A(f"    s_mov_b32 s{sT3}, 0")
A("L_h_qt:")
for kb in range(4):
    for m in range(4):
        A(f"    global_load_dwordx4 {vr(64+16*kb+4*m,4)}, v{40+kb}, {sp(sWS)} offset:{m*1024} sc1")
A("    s_waitcnt vmcnt(0)")
A(f"    s_cmp_eq_u32 s{sT3}, 0")
A("    s_cbranch_scc0 L_h_qt_nf")
A(f"    s_mov_b32 s{sT3}, 1")
A(f"    v_cmp_eq_u32 vcc, 0, v{vLANE}")
A(f"    s_and_saveexec_b64 {sp(sEX)}, vcc")
A(f"    global_store_dwordx4 v16, v[12:15], {sp(sWS)} sc1")
A(f"    s_mov_b64 exec, {sp(sEX)}")
A("L_h_qt_nf:")
A(f"    v_mov_b32 v44, 0")
for i in range(16):
    A(f"    v_xor_b32 v45, v12, v{64+4*i+2}")
    A(f"    v_xor_b32 v46, v13, v{64+4*i+3}")
    A(f"    v_or3_b32 v44, v44, v45, v46")
A(f"    v_cmp_ne_u32 vcc, 0, v44")
A("    s_cbranch_vccz L_h_qtd")
A(f"    s_sub_u32 s{sTO}, s{sTO}, 1")
A("    s_cbranch_scc0 L_h_qt")
A("L_h_qtd:")
for m in range(4):
    for kb in range(1, 4):
        A(f"    v_add_f32 v{64+4*m}, v{64+4*m}, v{64+16*kb+4*m}")
        A(f"    v_add_f32 v{65+4*m}, v{65+4*m}, v{65+16*kb+4*m}")
    A(f"    v_cvt_pk_bf16_f32 v{44+m}, v{64+4*m}, v{65+4*m}")
    A(f"    ds_write_b32 v8, v{44+m} offset:{LDS_QS + m*256}")
hts("h q gathered")
A("    s_waitcnt vmcnt(0) lgkmcnt(0)")
hts("h clears acked")
def flag_round(off, lab, barrier=False):
    A(f"    v_add_u32 v19, {off}, v17")
    if barrier:
        A("    s_barrier")
    A(f"    s_mov_b32 s{sTO}, 0x8000")
    A(f"{lab}:")
    A(f"    global_load_dwordx4 v[20:23], v19, {sp(sWS)} sc1")
    A("    s_waitcnt vmcnt(0)")
    A(f"    v_cmp_ne_u32 vcc, v20, v12")
    A(f"    v_cmp_ne_u32 {sp(sCM)}, v21, v13")
    A(f"    s_or_b64 vcc, vcc, {sp(sCM)}")
    A(f"    s_cbranch_vccz {lab}_d")
    A(f"    s_sub_u32 s{sTO}, s{sTO}, 1")
    A(f"    s_cbranch_scc0 {lab}")
    A(f"{lab}_d:")
flag_round(FL1, "L_h_f1", True)
A(f"    v_cmp_ne_u32 vcc, v22, v14")
A(f"    s_mov_b32 s{sMODE}, 1")
if FORCE_SLOW:
    A("    s_branch L_h_mode")
A("    s_cbranch_vccnz L_h_mode")
A(f"    s_mov_b32 s{sMODE}, 0")
A(f"    v_lshlrev_b32 v37, 6, v{vLANE}")
for L in range(2):
    set_layer(L)
    A(f"    s_mul_i32 s{sT0}, s{sIDX}, {CLR_PER_CU}")
    A(f"    v_add_u32 v36, s{sT0}, v37")
    A(f"    global_load_dword v{38+2*L}, v36, {sp(sLOC)}")
    A(f"    v_add_u32 v36, 4096, v36")
    A(f"    global_load_dword v{39+2*L}, v36, {sp(sLOC)}")
A("L_h_mode:")
hts("h mode")
A(f"    v_mov_b32 v24, {LDS_MODE}")
A(f"    v_mov_b32 v25, s{sMODE}")
A(f"    ds_write_b32 v24, v25")
A("    s_waitcnt lgkmcnt(0)")
A("    s_barrier                    ; B1")
A(f"    s_cmp_eq_u32 s{sIDX}, 0")
A("    s_cbranch_scc0 L_h_end")
A(f"    s_lshl_b32 s{sT0}, s{sG}, 2")
A(f"    v_mov_b32 v24, s{sT0}")
A(f"    v_mov_b32 v25, 1")
A(f"    v_cmp_eq_u32 vcc, 0, v{vLANE}")
A(f"    s_and_saveexec_b64 {sp(sEX)}, vcc")
A(f"    global_store_dword v24, v25, {sp(sDBG)} offset:192 sc1")
A("L_h_end:")
A("    s_mov_b64 exec, -1")
A("    s_waitcnt vmcnt(0)")
if TS:
    A(f"    s_lshl_b32 s{sT0}, s2, 11")
    A(f"    s_add_u32 s{sT0}, s{sT0}, {DUMP_BASE + 31 * 0x400000}")
    A(f"    v_lshlrev_b32 v255, 2, v{vLANE}")
    A(f"    v_add_u32 v255, s{sT0}, v255")
    A(f"    global_store_dword v255, v254, {sp(sWS)}")
    A("    s_waitcnt vmcnt(0)")
A("L_end:")
A("    s_endpgm")
A('.section .rodata,"a"')
A(".p2align 6")
A(f".amdhsa_kernel {KNAME}")
A("  .amdhsa_next_free_vgpr 256")
A("  .amdhsa_next_free_sgpr 80")
A("  .amdhsa_accum_offset 256")
A("  .amdhsa_group_segment_fixed_size 0")
A("  .amdhsa_kernarg_size 104")
A("  .amdhsa_user_sgpr_count 2")
A("  .amdhsa_user_sgpr_kernarg_segment_ptr 1")
A("  .amdhsa_system_sgpr_workgroup_id_x 1")
A(".end_amdhsa_kernel")

dst = [a for a in sys.argv[1:] if not a.startswith("--")]
path = dst[0] if dst else "interleave_layers__sliding_block_cached__mixer_token_mlp__decode.s"
open(path, "w").write("\n".join(out) + "\n")
print("wrote", path, len(out), "lines")
```

```python
import sys, struct

KNAME = "interleave_layers__sliding_block_cached__mixer_token_mlp__decode_kernel"
DEBUG_DUMP = "--dump" in sys.argv
FORCE_SLOW = "--slow" in sys.argv
TS = "--ts" in sys.argv

out = []
def A(s=""):
    out.append(s)
def f32bits(x):
    return struct.unpack("<I", struct.pack("<f", x))[0]
_lbl = [0]; _pc = [0]; _ts = [0]
def newlabel(p="L"):
    _lbl[0] += 1
    return f"{p}_{_lbl[0]}"

FL1 = 0x0000
FL2 = 0x4000
EPOCH_OFF = 0x8000
QT_OFF = 0x10000
LAYER_BASE = 0x100000
LAYER_STRIDE = 0x400000
GRP_STRIDE = 0x40000
CS = 2048 + 128
Q_OFF = 0x0000
ML_OFF = 0x2000
XL_OFF = 0x2400
XL2_OFF = 0x2C00
O_OFF = 0x3400
R_OFF = O_OFF + 32 * CS
GRP_USED = R_OFF + 32 * CS
CLR_PER_CU = (GRP_USED + 32 * 1024 - 1) // (32 * 1024) * 1024
assert CLR_PER_CU * 32 <= GRP_STRIDE
P_OFF = 0x200000
Y_OFF = 0x210000
DUMP_BASE = 0x4000000

LDS_V = 0x0000
LDS_CMB = 0x0000
LDS_MLW = 0x2800
HS_C = 576
HS_Q = 272
LDS_XS = 0x4000
LDS_QS = 0x8000
LDS_MODE = 0x8460
LDS_YS = 0x8480
LDS_HS = 0x8500
LDS_WQ = 0x9000
LDS_WO = 0xD000
LDS_HW = 0x8800
LDS_BYTES = 0x11000

sX, sK, sV, sWQ, sWO, sBX, sW1, sB1, sW2, sB2, sOUT, sDBG, sWS = [4 + 2 * i for i in range(13)]
sG, sIDX, sWAVE, sCU, sMODE, sTO = 30, 31, 32, 33, 34, 35
sLOC = 36; sMY = 38; sGL = 40
sT0, sT1, sT2, sT3 = 42, 43, 44, 45
sO = 46
sEX = 50
sC = 52
sCM = 64
sTAG = 66
sM1 = 76; sM2 = 78
sM3 = 80; sM4 = 82
def sp(r): return f"s[{r}:{r+1}]"

vTID, vLANE = 0, 1
vK = 64; vVT = 96; vWQ = 128; vWO = 144
vW1, vB1, vW2 = 160, 167, 174
vB2 = 181
vXM = 182
vL16 = 184
vT8 = 185
vAO = 186
vAML = 187
vAP = 188
vAY = 189
vAXR = 190
vAPUB = 191
vAO2 = 192
def vr(r, n): return f"v[{r}:{r+n-1}]"

def nops(n):
    while n > 0:
        k = min(n, 16)
        A(f"    s_nop {k-1}")
        n -= k

DPP = {1: "quad_perm:[1,0,3,2]", 2: "quad_perm:[2,3,0,1]", 4: "row_ror:4", 8: "row_ror:8"}
def xreduce(regs, op, tmp, bits=(1, 2, 4, 8, 16, 32)):
    n = len(regs)
    for b in bits:
        if b <= 8:
            if n < 3: nops(3 - n)
            for r in regs:
                A(f"    {op}_dpp v{r}, v{r}, v{r} {DPP[b]} row_mask:0xf bank_mask:0xf")
        else:
            sw = "v_permlane16_swap_b32" if b == 16 else "v_permlane32_swap_b32"
            for r, t in zip(regs, tmp):
                A(f"    v_mov_b32 v{t}, v{r}")
            nops(2 if n < 2 else 1)
            for r, t in zip(regs, tmp):
                A(f"    {sw} v{t}, v{r}")
            nops(1)
            for r, t in zip(regs, tmp):
                A(f"    {op} v{r}, v{r}, v{t}")

def bf16r_pair(a, b, t):
    A(f"    v_cvt_pk_bf16_f32 v{t}, v{a}, v{b}")
    A(f"    v_lshlrev_b32 v{a}, 16, v{t}")
    A(f"    v_and_b32 v{b}, 0xffff0000, v{t}")
def bf16r(a, t):
    A(f"    v_cvt_pk_bf16_f32 v{t}, v{a}, v{a}")
    A(f"    v_lshlrev_b32 v{a}, 16, v{t}")
def unpack(dst_lo, dst_hi, src):
    A(f"    v_lshlrev_b32 v{dst_lo}, 16, v{src}")
    A(f"    v_and_b32 v{dst_hi}, 0xffff0000, v{src}")

def max_chain(dst, regs):
    regs = list(regs)
    if len(regs) == 1:
        A(f"    v_mov_b32 v{dst}, v{regs[0]}"); return
    if len(regs) == 2:
        A(f"    v_max_u32 v{dst}, v{regs[0]}, v{regs[1]}"); return
    A(f"    v_max3_u32 v{dst}, v{regs[0]}, v{regs[1]}, v{regs[2]}")
    rest = regs[3:]
    while len(rest) >= 2:
        A(f"    v_max3_u32 v{dst}, v{dst}, v{rest[0]}, v{rest[1]}")
        rest = rest[2:]
    if rest:
        A(f"    v_max_u32 v{dst}, v{dst}, v{rest[0]}")

def ts(name=""):
    if not TS: return
    if "--tsl" in sys.argv and name not in ("entry", "B2"): return
    k = _ts[0]; _ts[0] += 1
    A(f"    s_memrealtime s[70:71]")
    A(f"    s_waitcnt lgkmcnt(0)")
    A(f"    v_writelane_b32 v254, s70, {k}")
_hts = [0]
def hts(name=""):
    if not TS: return
    if "--tsl" in sys.argv: return
    k = _hts[0]; _hts[0] += 1
    A(f"    s_memrealtime s[70:71]")
    A(f"    s_waitcnt lgkmcnt(0)")
    A(f"    v_writelane_b32 v254, s70, {k}")
def ts_flush():
    if not TS: return
    A(f"    s_lshl_b32 s{sT0}, s2, 11")
    A(f"    s_lshl_b32 s{sT1}, s{sWAVE}, 8")
    A(f"    s_add_u32 s{sT0}, s{sT0}, s{sT1}")
    A(f"    s_add_u32 s{sT0}, s{sT0}, {DUMP_BASE + 30 * 0x400000}")
    A(f"    v_lshlrev_b32 v255, 2, v{vLANE}")
    A(f"    v_add_u32 v255, s{sT0}, v255")
    A(f"    global_store_dword v255, v254, {sp(sWS)}")
    A(f"    global_store_dword v255, v253, {sp(sWS)} offset:1024")
    A("    s_waitcnt vmcnt(0)")
def diag_flush():
    if "--diag" not in sys.argv: return
    L = newlabel("dg")
    A(f"    s_cmp_eq_u32 s2, 37")
    A(f"    s_cbranch_scc0 {L}")
    A(f"    s_cmp_eq_u32 s{sWAVE}, 0")
    A(f"    s_cbranch_scc0 {L}")
    A(f"    v_readlane_b32 s72, v254, 0")
    A("    s_nop 3")
    A(f"    v_subrev_u32 v255, s72, v254")
    A(f"    v_mul_u32_u24 v252, 86, v{vLANE}")
    A(f"    v_lshrrev_b32 v252, 8, v252            ; lane/3")
    A(f"    v_mul_u32_u24 v251, 3, v252")
    A(f"    v_cmp_eq_u32 vcc, v251, v{vLANE}")
    A(f"    v_cmp_gt_u32 {sp(sCM)}, 16, v252")
    A(f"    s_and_b64 vcc, vcc, {sp(sCM)}")
    A(f"    v_lshlrev_b32 v252, 2, v252")
    A(f"    s_and_saveexec_b64 {sp(sEX)}, vcc")
    A(f"    global_store_dword v252, v255, {sp(sDBG)}")
    A(f"    s_mov_b64 exec, {sp(sEX)}")
    A("    s_waitcnt vmcnt(0)")
    A(f"{L}:")

def dump(slot, regs):
    if not DEBUG_DUMP: return
    A(f"    s_lshl_b32 s{sT0}, s2, 14")
    A(f"    s_add_u32 s{sT0}, s{sT0}, {DUMP_BASE + slot * 0x400000}")
    A(f"    v_lshlrev_b32 v255, 6, v{vTID}")
    A(f"    v_add_u32 v255, s{sT0}, v255")
    for i, r in enumerate(regs):
        A(f"    global_store_dword v255, v{r}, {sp(sWS)} offset:{4*i}")
    A("    s_waitcnt vmcnt(0)")

def poll(loads, check_regs, vtmp, extra_check=None, name="", local=False):
    L = newlabel("poll"); D = newlabel("polld"); C = newlabel("pollc")
    A(f"    s_mov_b32 s{sTO}, 0x8000")
    if "--ack" in sys.argv:
        ts("  pre-ack " + name)
        A("    s_waitcnt vmcnt(0)")
    ts("  poll begin " + name)
    if local and "--plain1" in sys.argv:
        for l in loads: A("    " + l.replace(" sc1", ""))
        A(f"    s_branch {C}")
    A(f"{L}:")
    for l in loads: A("    " + l)
    A(f"{C}:")
    A("    s_waitcnt vmcnt(0)")
    max_chain(vtmp, check_regs)
    A(f"    v_cmp_eq_u32 vcc, -1, v{vtmp}")
    if extra_check: extra_check()
    A(f"    s_cbranch_vccz {D}")
    A(f"    s_sub_u32 s{sTO}, s{sTO}, 1")
    A(f"    s_cbranch_scc0 {L}")
    A(f"{D}:")
    ts("  poll end " + name)
    if TS and "--tsl" not in sys.argv:
        k = _pc[0]; _pc[0] += 1
        A(f"    s_sub_u32 s72, 0x8000, s{sTO}")
        A(f"    v_writelane_b32 v253, s72, {k}")

def store_local(stores):
    S = newlabel("sl"); D = newlabel("sld")
    A(f"    s_cmp_eq_u32 s{sMODE}, 0")
    A(f"    s_cbranch_scc0 {S}")
    for s in stores: A("    " + s)
    A(f"    s_branch {D}")
    A(f"{S}:")
    for s in stores: A("    " + s + " sc1")
    A(f"{D}:")

def set_layer(L):
    base = LAYER_BASE + L * LAYER_STRIDE
    A(f"    ; ---- layer {L} bases")
    A(f"    s_add_u32 s{sGL}, s{sWS}, {base}")
    A(f"    s_addc_u32 s{sGL+1}, s{sWS+1}, 0")
    A(f"    s_lshl_b32 s{sT0}, s{sG}, 18            ; g*GRP_STRIDE")
    A(f"    s_add_u32 s{sLOC}, s{sGL}, s{sT0}")
    A(f"    s_addc_u32 s{sLOC+1}, s{sGL+1}, 0")

def ln_stats(xregs, vmean, vrs, t):
    s1, s2, t0, t1 = t[0], t[1], t[2], t[3]
    A(f"    v_add_f32 v{s1}, v{xregs[0]}, v{xregs[1]}")
    A(f"    v_mul_f32 v{s2}, v{xregs[0]}, v{xregs[0]}")
    A(f"    v_fmac_f32 v{s2}, v{xregs[1]}, v{xregs[1]}")
    for r in xregs[2:]:
        A(f"    v_add_f32 v{s1}, v{s1}, v{r}")
        A(f"    v_fmac_f32 v{s2}, v{r}, v{r}")
    xreduce([s1, s2], "v_add_f32", [t0, t1])
    A(f"    v_mul_f32 v{s1}, {f32bits(1/512):#x}, v{s1}")
    A(f"    v_mul_f32 v{s2}, {f32bits(1/512):#x}, v{s2}")
    A(f"    v_fma_f32 v{s2}, -v{s1}, v{s1}, v{s2}")
    A(f"    v_max_f32 v{s2}, 0, v{s2}")
    bf16r_pair(s1, s2, t0)
    A(f"    v_add_f32 v{s2}, {f32bits(1e-5):#x}, v{s2}")
    bf16r(s2, t0)
    A(f"    v_sqrt_f32 v{s2}, v{s2}")
    A("    s_nop 0")
    bf16r(s2, t0)
    A(f"    v_rcp_f32 v{vrs}, v{s2}")
    A(f"    v_mov_b32 v{vmean}, v{s1}")
    A("    s_nop 0")

def bc(r):
    return (f"v[{r & ~1}:{(r & ~1) + 1}]", r & 1)
def pk2(op, d, a, b, neg_b=False):
    t, sel = bc(b)
    neg = " neg_lo:[0,1] neg_hi:[0,1]" if neg_b else ""
    A(f"    {op} {vr(d,2)}, {vr(a,2)}, {t} op_sel:[0,{sel}] op_sel_hi:[1,{sel}]{neg}")

def ln_apply(regs, vmean, vrs, t):
    for a, b in zip(regs[0::2], regs[1::2]):
        assert b == a + 1 and a % 2 == 0
        pk2("v_pk_add_f32", a, a, vmean, neg_b=True)
        bf16r_pair(a, b, t)
        pk2("v_pk_mul_f32", a, a, vrs)
        bf16r_pair(a, b, t)

hdr = open("interleave_layers__sliding_block_cached__mixer_token_mlp__decode.s.ref").read().split("\n")
for line in hdr:
    if line.startswith("; @launch"):
        A(f"; @launch grid=(256,1,1) block=(320,1,1) lds={LDS_BYTES}")
        break
    A(line)
A('.amdgcn_target "amdgcn-amd-amdhsa--gfx950"')
A(".text")
A(f".globl {KNAME}")
A(".p2align 8")
A(f".type {KNAME},@function")
A(f"{KNAME}:")
A("    s_cmp_ge_u32 s2, 256")
A("    s_cbranch_scc1 L_end")
A("    s_load_dwordx16 s[4:19], s[0:1], 0")
A("    s_load_dwordx8 s[20:27], s[0:1], 64")
A("    s_load_dwordx2 s[28:29], s[0:1], 96")
A(f"    s_and_b32 s{sG}, s2, 7")
A(f"    s_lshr_b32 s{sIDX}, s2, 3")
A(f"    s_lshl_b32 s{sCU}, s{sG}, 5")
A(f"    s_add_u32 s{sCU}, s{sCU}, s{sIDX}")
A(f"    v_and_b32 v{vLANE}, 63, v0")
A(f"    v_lshrrev_b32 v2, 6, v0")
A("    s_nop 0")
A(f"    v_readfirstlane_b32 s{sWAVE}, v2")
A("    s_waitcnt lgkmcnt(0)")
A(f"    s_load_dwordx2 {sp(sTAG)}, {sp(sWS)}, {EPOCH_OFF}")
A(f"    s_cmp_eq_u32 s{sWAVE}, 4")
A("    s_cbranch_scc1 L_helper")
if TS:
    A("    v_mov_b32 v254, 0")
    A("    v_mov_b32 v253, 0")
ts("entry")

vXA = 2; vXR = 6; vXP = 8
A("    ; ---- prologue loads")
A(f"    v_lshlrev_b32 v{vL16}, 4, v{vLANE}")
A(f"    s_lshr_b32 s{sT0}, s{sIDX}, 3            ; kb")
A(f"    s_lshl_b32 s{sT1}, s{sT0}, 9")
A(f"    v_lshlrev_b32 v12, 3, v{vLANE}")
A(f"    v_add_u32 v{vAXR}, s{sT1}, v12")
A(f"    v_and_b32 v13, 7, v{vLANE}")
A(f"    v_lshlrev_b32 v13, 2, v13")
A(f"    s_lshl_b32 s{sT1}, s{sIDX}, 5")
A(f"    v_add_u32 v13, s{sT1}, v13")
A("    s_barrier")
A(f"    global_load_dword v{vXP}, v13, {sp(sX)}")
A(f"    s_lshl_b32 s{sT1}, s{sG}, 24")
A(f"    s_add_u32 s{sT1}, s{sT1}, {(65536-4096)*256}")
A(f"    s_lshl_b32 s{sT2}, s{sIDX}, 15")
A(f"    s_add_u32 s{sT1}, s{sT1}, s{sT2}")
A(f"    s_lshl_b32 s{sT2}, s{sWAVE}, 13")
A(f"    s_add_u32 s{sT1}, s{sT1}, s{sT2}")
A(f"    v_and_b32 v16, 15, v{vLANE}")
A(f"    v_lshlrev_b32 v16, 8, v16")
A(f"    v_lshrrev_b32 v17, 4, v{vLANE}")
A(f"    v_lshlrev_b32 v17, 4, v17")
A(f"    v_add3_u32 v16, v16, v17, s{sT1}")
A(f"    v_add_u32 v17, 4096, v16")
for T in range(2):
    for j in range(4):
        A(f"    global_load_dwordx4 {vr(vK+16*T+4*j,4)}, v{16+T}, {sp(sK)} offset:{j*64} nt")
vVS = 200
A(f"    v_add_u32 v18, s{sT1}, v{vL16}")
A(f"    v_add_u32 v19, 4096, v18")
for i in range(8):
    A(f"    global_load_dwordx4 {vr(vVS+4*i,4)}, v{18+i//4}, {sp(sV)} offset:{(i%4)*1024} nt")
N_AFTER_V = 0

A("    ; ---- persistent offsets")
A(f"    v_and_b32 v23, 4, v{vLANE}")
A(f"    v_cmp_ne_u32 {sp(sM1)}, 0, v23")
A(f"    v_and_b32 v23, 8, v{vLANE}")
A(f"    v_cmp_ne_u32 {sp(sM2)}, 0, v23")
A(f"    v_and_b32 v23, 16, v{vLANE}")
A(f"    v_cmp_ne_u32 {sp(sM3)}, 0, v23")
A(f"    v_and_b32 v23, 32, v{vLANE}")
A(f"    v_cmp_ne_u32 {sp(sM4)}, 0, v23")
A(f"    v_lshlrev_b32 v{vT8}, 3, v{vTID}")
A(f"    s_mul_i32 s{sT0}, s{sIDX}, {CS}")
A(f"    v_add_u32 v{vAO}, s{sT0}, v{vL16}")
A(f"    v_and_b32 v23, 15, v{vLANE}")
A(f"    v_lshlrev_b32 v24, 6, v23")
A(f"    v_lshrrev_b32 v25, 4, v{vLANE}")
A(f"    v_lshlrev_b32 v25, 4, v25")
A(f"    v_add3_u32 v{vAO2}, v24, v25, s{sT0}")
A(f"    s_lshr_b32 s{sT0}, s{sIDX}, 3            ; head")
A(f"    s_lshl_b32 s{sT0}, s{sT0}, 8")
A(f"    s_add_u32 s{sT0}, s{sT0}, {ML_OFF}")
A(f"    v_lshlrev_b32 v23, 3, v23")
A(f"    v_add_u32 v{vAML}, s{sT0}, v23")
A(f"    v_lshrrev_b32 v23, 3, v{vLANE}")
A(f"    v_lshlrev_b32 v24, 11, v23")
A(f"    v_and_b32 v25, 7, v{vLANE}")
A(f"    v_lshlrev_b32 v26, 3, v25")
A(f"    s_lshl_b32 s{sT0}, s{sIDX}, 6")
A(f"    s_add_u32 s{sT0}, s{sT0}, {P_OFF:#x}")
A(f"    v_add3_u32 v{vAP}, v24, v26, s{sT0}")
A(f"    v_and_b32 v23, 3, v23")
A(f"    v_lshlrev_b32 v23, 3, v23")
A(f"    v_lshlrev_b32 v26, 6, v25")
A(f"    s_lshl_b32 s{sT0}, s{sIDX}, 9")
A(f"    s_add_u32 s{sT0}, s{sT0}, {Y_OFF:#x}")
A(f"    v_add_u32 v{vAY}, s{sT0}, v26")
A(f"    v_lshrrev_b32 v23, 3, v{vTID}")
A(f"    s_mov_b32 s{sT0}, {CS}")
A(f"    v_mul_lo_u32 v23, v23, s{sT0}")
A(f"    v_and_b32 v24, 7, v{vTID}")
A(f"    v_lshlrev_b32 v24, 3, v24")
A(f"    s_lshl_b32 s{sT0}, s{sIDX}, 6")
A(f"    v_add3_u32 v{vAPUB}, v23, v24, s{sT0}")

def late_loads():
    A(f"    s_lshl_b32 s{sT1}, s{sG}, 19")
    A(f"    s_lshl_b32 s{sT2}, s{sIDX}, 14")
    A(f"    s_add_u32 s{sT1}, s{sT1}, s{sT2}")
    A(f"    s_lshl_b32 s{sT2}, s{sWAVE}, 8")
    A(f"    s_add_u32 s{sT1}, s{sT1}, s{sT2}")
    A(f"    v_lshrrev_b32 v58, 4, v{vLANE}")
    A(f"    v_lshlrev_b32 v58, 10, v58")
    A(f"    v_and_b32 v59, 15, v{vLANE}")
    A(f"    v_lshlrev_b32 v59, 4, v59")
    A(f"    v_add3_u32 v58, v58, v59, s{sT1}")
    for p in range(4):
        if p: A(f"    v_add_u32 v58, 4096, v58")
        A(f"    global_load_dwordx4 {vr(232+4*p,4)}, v58, {sp(sWO)} nt")
    A(f"    v_lshlrev_b32 v59, 1, v{vTID}")
    for i in range(7):
        A(f"    global_load_ushort v{vW1+i}, v59, {sp(sW1)} offset:{512*i}")
        A(f"    global_load_ushort v{vB1+i}, v59, {sp(sB1)} offset:{512*i}")
        A(f"    global_load_ushort v{vW2+i}, v59, {sp(sW2)} offset:{512*i}")
    A(f"    v_mov_b32 v60, 0")
    A(f"    global_load_ushort v{vB2}, v60, {sp(sB2)}")


def cmb_read4(dst, off):
    A(f"    s_mul_i32 s{sT0}, s{sWAVE}, {HS_C}")
    A(f"    v_lshlrev_b32 v57, 3, v{vLANE}")
    A(f"    v_add_u32 v57, s{sT0}, v57")
    for w in range(4):
        A(f"    ds_read_b64 {vr(dst+2*w,2)}, v57 offset:{off + w*4*HS_C}")

def q_frags():
    A(f"    v_lshrrev_b32 v47, 4, v{vLANE}")
    A(f"    v_and_b32 v48, 15, v{vLANE}")
    A(f"    v_lshrrev_b32 v49, 2, v48")
    A(f"    v_lshl_add_u32 v47, v47, 3, v49")
    A(f"    v_lshlrev_b32 v47, 7, v47")
    A(f"    v_and_b32 v48, 3, v48")
    A(f"    v_lshl_add_u32 v47, v48, 3, v47")
    A(f"    s_lshl_b32 s{sT0}, s{sWAVE}, 5")
    A(f"    v_add_u32 v47, s{sT0}, v47")
    for ks in range(4):
        A(f"    ds_read_b64_tr_b16 {vr(vWQ+4*ks,2)}, v47 offset:{LDS_WQ + ks*4096}")
        A(f"    ds_read_b64_tr_b16 {vr(vWQ+4*ks+2,2)}, v47 offset:{LDS_WQ + ks*4096 + 512}")

def q_phase(L, xa, xr):
    vm, vrs = 40, 41
    ln_stats(xa, vm, vrs, [42, 43, 44, 45])
    ln_apply(xr, vm, vrs, 42)
    A(f"    v_cvt_pk_bf16_f32 v46, v{xr[0]}, v{xr[1]}")
    A(f"    s_lshl_b32 s{sT0}, s{sWAVE}, 8")
    A(f"    v_lshlrev_b32 v47, 2, v{vLANE}")
    A(f"    v_add_u32 v47, s{sT0}, v47")
    A(f"    ds_write_b32 v47, v46 offset:{LDS_HW}")
    A(f"    v_lshrrev_b32 v48, 4, v{vLANE}")
    A(f"    v_lshlrev_b32 v48, 4, v48")
    A(f"    v_add_u32 v48, s{sT0}, v48")
    A("    s_waitcnt lgkmcnt(0)")
    for ks in range(4):
        A(f"    ds_read_b128 {vr(2+4*ks,4)}, v48 offset:{LDS_HW + ks*64}")
    A(f"    s_lshr_b32 s{sT0}, s{sIDX}, 3")
    A(f"    s_lshl_b32 s{sT0}, s{sT0}, 11")
    A(f"    s_and_b32 s{sT1}, s{sIDX}, 7")
    A(f"    s_lshl_b32 s{sT1}, s{sT1}, 8")
    A(f"    s_add_u32 s{sT0}, s{sT0}, s{sT1}")
    A(f"    s_lshl_b32 s{sT1}, s{sWAVE}, 6")
    A(f"    s_add_u32 s{sT0}, s{sT0}, s{sT1}")
    A(f"    v_lshlrev_b32 v49, 2, v{vLANE}")
    A(f"    v_add_u32 v49, s{sT0}, v49")
    A("    s_waitcnt lgkmcnt(0)")
    for ks in range(4):
        A(f"    v_mfma_f32_16x16x32_bf16 v[52:55], {vr(2+4*ks,4)}, {vr(vWQ+4*ks,4)}, {'v[52:55]' if ks else 0}")
    A(f"    v_cmp_gt_u32 vcc, 16, v{vLANE}")
    A(f"    s_and_saveexec_b64 {sp(sEX)}, vcc")
    nops(8)
    store_local([f"global_store_dword v49, v52, {sp(sLOC)}"])
    A(f"    s_mov_b64 exec, {sp(sEX)}")

def q_gather(tagged=False):
    base = 2
    loads = []; regs = []
    if not tagged:
        A(f"    v_add_u32 v60, 4096, v{vT8}")
        for kb in range(4):
            r = base + 2 * kb
            loads.append(f"global_load_dwordx2 {vr(r,2)}, v{vT8 if kb < 2 else 60}, {sp(sLOC)} offset:{(kb%2)*2048} sc1")
            regs += [r, r + 1]
        poll(loads, regs, 40, name="Q", local=True)
        for i in range(1, 4):
            A(f"    v_add_f32 v{base}, v{base}, v{base+2*i}")
            A(f"    v_add_f32 v{base+1}, v{base+1}, v{base+2*i+1}")
    else:
        A(f"    s_lshl_b32 s{sT0}, s{sG}, 14")
        A(f"    s_add_u32 s{sT0}, s{sT0}, {QT_OFF}")
        A(f"    v_lshlrev_b32 v60, 4, v{vTID}")
        A(f"    v_add_u32 v60, s{sT0}, v60")
        for kb in range(1, 4):
            A(f"    v_add_u32 v{60+kb}, {kb*4096}, v60")
        L = newlabel("pollt"); D = newlabel("polltd")
        A(f"    s_mov_b32 s{sTO}, 0x8000")
        ts("  poll begin QT")
        A(f"{L}:")
        for kb in range(4):
            A(f"    global_load_dwordx4 {vr(base+4*kb,4)}, v{60+kb}, {sp(sWS)} sc1")
        A("    s_waitcnt vmcnt(0)")
        for kb in range(4):
            A(f"    v_xor_b32 v{40+kb}, s{sTAG}, v{base+4*kb+2}")
            A(f"    v_xor_b32 v{44+kb}, s{sTAG+1}, v{base+4*kb+3}")
        A(f"    v_or3_b32 v40, v40, v41, v42")
        A(f"    v_or3_b32 v44, v44, v45, v46")
        A(f"    v_or3_b32 v40, v40, v43, v47")
        A(f"    v_or_b32 v40, v40, v44")
        A(f"    v_cmp_ne_u32 vcc, 0, v40")
        A(f"    s_cbranch_vccz {D}")
        A(f"    s_sub_u32 s{sTO}, s{sTO}, 1")
        A(f"    s_cbranch_scc0 {L}")
        A(f"{D}:")
        ts("  poll end QT")
        if "--nodefer" not in sys.argv: late_loads()
        for i in range(1, 4):
            A(f"    v_add_f32 v{base}, v{base}, v{base+4*i}")
            A(f"    v_add_f32 v{base+1}, v{base+1}, v{base+4*i+1}")
    A(f"    v_cvt_pk_bf16_f32 v40, v{base}, v{base+1}")
    A(f"    v_lshlrev_b32 v41, 2, v{vLANE}")
    A(f"    s_mul_i32 s{sT0}, s{sWAVE}, {HS_Q}")
    A(f"    v_add_u32 v41, s{sT0}, v41")
    A(f"    ds_write_b32 v41, v40 offset:{LDS_QS}")
    A("    s_waitcnt lgkmcnt(0)")
    A("    s_barrier")

def attention(L):
    vQ = 2
    A("    ; ---- attention")
    A(f"    v_and_b32 v40, 3, v{vLANE}")
    A(f"    v_mul_u32_u24 v40, {HS_Q}, v40")
    A(f"    v_lshrrev_b32 v41, 4, v{vLANE}")
    A(f"    v_lshl_add_u32 v40, v41, 4, v40")
    for j in range(4):
        A(f"    ds_read_b128 {vr(vQ+4*j,4)}, v40 offset:{LDS_QS + j*64}")
    S = 24
    O = 200
    A(f"    s_mov_b32 s{sC}, {f32bits(128 ** -0.5):#x}")
    A(f"    s_mov_b32 s{sC+1}, {f32bits(1.4426950408889634):#x}")
    A("    s_waitcnt lgkmcnt(0)")
    nops(1)
    for j in range(4):
        for T in range(2):
            A(f"    v_mfma_f32_16x16x32_bf16 {vr(S+4*T,4)}, {vr(vK+16*T+4*j,4)}, {vr(vQ+4*j,4)}, {vr(S+4*T,4) if j else 0}")
    A(f"    v_and_b32 v40, 3, v{vLANE}             ; head")
    A(f"    v_mul_u32_u24 v42, {HS_C}, v40         ; head*HS_C")
    A(f"    v_lshl_add_u32 v42, v41, 4, v42        ; + slab*16")
    A(f"    v_bfe_u32 v40, v{vLANE}, 2, 2          ; dup")
    A(f"    v_lshl_add_u32 v42, v40, 7, v42        ; + dup*128")
    A(f"    s_mul_i32 s{sT0}, s{sWAVE}, {4*HS_C}")
    A(f"    v_add_u32 v42, s{sT0}, v42")
    A(f"    s_lshl_b32 s{sT0}, s{sWAVE}, 3")
    A(f"    v_lshlrev_b32 v43, 5, v{vLANE}         ; head*32")
    A(f"    v_add_u32 v43, s{sT0}, v43")
    nops(3)
    dump(3 + 8 * L, list(range(S, S + 8)))
    for r in range(0, 8, 2):
        bf16r_pair(S + r, S + r + 1, 44)
        A(f"    v_mul_f32 v{S+r}, s{sC}, v{S+r}")
        A(f"    v_mul_f32 v{S+r+1}, s{sC}, v{S+r+1}")
        bf16r_pair(S + r, S + r + 1, 44)
    vm, vl = 34, 35
    A(f"    v_max3_f32 v{vm}, v{S}, v{S+1}, v{S+2}")
    A(f"    v_max3_f32 v{vm}, v{vm}, v{S+3}, v{S+4}")
    A(f"    v_max3_f32 v{vm}, v{vm}, v{S+5}, v{S+6}")
    A(f"    v_max_f32 v{vm}, v{vm}, v{S+7}")
    xreduce([vm], "v_max_f32", [44], bits=(16, 32))
    A(f"    v_mul_f32 v45, s{sC+1}, v{vm}")
    for r in range(8):
        A(f"    v_fma_f32 v{S+r}, v{S+r}, s{sC+1}, -v45")
    for r in range(8):
        A(f"    v_exp_f32 v{S+r}, v{S+r}")
    A("    s_nop 0")
    P = 36
    for i in range(4):
        A(f"    v_cvt_pk_bf16_f32 v{P+i}, v{S+2*i}, v{S+2*i+1}")
    A(f"    v_add_f32 v{vl}, v{S}, v{S+1}")
    A(f"    v_add_f32 v{vl}, v{vl}, v{S+2}")
    for T in range(8):
        A(f"    v_mfma_f32_16x16x32_bf16 {vr(O+4*T,4)}, {vr(vVT+4*T,4)}, {vr(P,4)}, 0")
    for r in range(3, 8):
        A(f"    v_add_f32 v{vl}, v{vl}, v{S+r}")
    xreduce([vl], "v_add_f32", [44], bits=(16, 32))
    nops(4)
    for j in range(2):
        for r in range(4):
            A(f"    v_cndmask_b32 v{2+4*j+r}, v{O+4*j+r}, v{O+8+4*j+r}, {sp(sM1)}")
            A(f"    v_cndmask_b32 v{10+4*j+r}, v{O+16+4*j+r}, v{O+24+4*j+r}, {sp(sM1)}")
    for k in range(8):
        A(f"    v_cndmask_b32 v{2+k}, v{2+k}, v{10+k}, {sp(sM2)}")
    A(f"    ds_write_b128 v42, v[2:5] offset:{LDS_CMB}")
    A(f"    ds_write_b128 v42, v[6:9] offset:{LDS_CMB + 64}")
    A(f"    v_cmp_gt_u32 vcc, 4, v{vLANE}")
    A(f"    s_and_saveexec_b64 {sp(sEX)}, vcc")
    A(f"    ds_write_b64 v43, {vr(vm,2)} offset:{LDS_MLW}")
    A(f"    s_mov_b64 exec, {sp(sEX)}")
    A("    s_waitcnt lgkmcnt(0)")
    A("    s_barrier")
    if L == 0:
        ts("B1")
        A(f"    v_mov_b32 v58, {LDS_MODE}")
        A(f"    ds_read_b32 v58, v58")
    cmb_read4(2, LDS_CMB)
    A(f"    s_lshl_b32 s{sT0}, s{sWAVE}, 5")
    A(f"    v_mov_b32 v40, s{sT0}")
    A(f"    ds_read_b128 {vr(12,4)}, v40 offset:{LDS_MLW}")
    A(f"    ds_read_b128 {vr(16,4)}, v40 offset:{LDS_MLW+16}")
    A("    s_waitcnt lgkmcnt(0)")
    if L == 0:
        A(f"    v_readfirstlane_b32 s{sMODE}, v58")
    M, Lr = 20, 21
    A(f"    v_max3_f32 v{M}, v12, v14, v16")
    A(f"    v_max_f32 v{M}, v{M}, v18")
    for w in range(4):
        A(f"    v_sub_f32 v{12+2*w}, v{12+2*w}, v{M}")
    for w in range(4):
        A(f"    v_mul_f32 v{12+2*w}, s{sC+1}, v{12+2*w}")
    for w in range(4):
        A(f"    v_exp_f32 v{12+2*w}, v{12+2*w}")
    A("    s_nop 0")
    A(f"    v_mul_f32 v{Lr}, v12, v13")
    A(f"    v_mul_f32 v2, v12, v2")
    A(f"    v_mul_f32 v3, v12, v3")
    for w in range(1, 4):
        A(f"    v_fmac_f32 v{Lr}, v{12+2*w}, v{13+2*w}")
        A(f"    v_fmac_f32 v2, v{12+2*w}, v{2+2*w}")
        A(f"    v_fmac_f32 v3, v{12+2*w}, v{3+2*w}")
    A(f"    s_lshl_b32 s{sT0}, s{sWAVE}, 8")
    A(f"    s_lshl_b32 s{sT1}, s{sIDX}, 3")
    A(f"    s_add_u32 s{sT0}, s{sT0}, s{sT1}")
    A(f"    s_add_u32 s{sT0}, s{sT0}, {ML_OFF}")
    A(f"    v_mov_b32 v41, s{sT0}")
    A(f"    v_add_u32 v40, {O_OFF}, v{vAPUB}")
    store_local([f"global_store_dwordx2 v40, v[2:3], {sp(sLOC)}"])
    A(f"    v_cmp_eq_u32 vcc, 0, v{vLANE}")
    A(f"    s_and_saveexec_b64 {sp(sEX)}, vcc")
    store_local([f"global_store_dwordx2 v41, {vr(M,2)}, {sp(sLOC)}"])
    A(f"    s_mov_b64 exec, {sp(sEX)}")

def o_combine_wo(L):
    A("    ; ---- o combine")
    o0, o1, ml0, ml1 = 2, 6, 10, 12
    A(f"    v_add_u32 v40, {O_OFF}, v{vAO2}")
    loads = [f"global_load_dwordx4 {vr(o0,4)}, v40, {sp(sLOC)} sc1",
             f"global_load_dwordx4 {vr(o1,4)}, v40, {sp(sLOC)} offset:1024 sc1",
             f"global_load_dwordx2 {vr(ml0,2)}, v{vAML}, {sp(sLOC)} sc1",
             f"global_load_dwordx2 {vr(ml1,2)}, v{vAML}, {sp(sLOC)} offset:128 sc1"]
    poll(loads, list(range(2, 14)), 41, name="O", local=True)
    if L == 0:
        A(f"    s_lshl_b32 s{sT0}, s{sWAVE}, 12")
        A(f"    v_add_u32 v46, s{sT0}, v{vL16}")
        for p in range(4):
            A(f"    ds_write_b128 v46, {vr(232+4*p,4)} offset:{LDS_WO + p*1024}")
        A(f"    v_lshrrev_b32 v47, 4, v{vLANE}")
        A(f"    v_and_b32 v48, 15, v{vLANE}")
        A(f"    v_lshrrev_b32 v49, 2, v48")
        A(f"    v_lshl_add_u32 v47, v47, 2, v49")
        A(f"    v_lshlrev_b32 v47, 8, v47")
        A(f"    v_and_b32 v48, 3, v48")
        A(f"    v_lshl_add_u32 v47, v48, 3, v47")
        A(f"    v_add_u32 v47, s{sT0}, v47")
    M = 14
    A(f"    v_max_f32 v{M}, v{ml0}, v{ml1}")
    xreduce([M], "v_max_f32", [40], bits=(1, 2, 4, 8))
    if L == 0:
        A("    s_waitcnt lgkmcnt(0)")
        for T in range(8):
            A(f"    ds_read_b64_tr_b16 {vr(vWO+2*T,2)}, v47 offset:{LDS_WO + T*32}")
    A(f"    v_sub_f32 v{ml0}, v{ml0}, v{M}")
    A(f"    v_sub_f32 v{ml1}, v{ml1}, v{M}")
    A(f"    v_mul_f32 v{ml0}, s{sC+1}, v{ml0}")
    A(f"    v_mul_f32 v{ml1}, s{sC+1}, v{ml1}")
    A(f"    v_exp_f32 v{ml0}, v{ml0}")
    A(f"    v_exp_f32 v{ml1}, v{ml1}")
    A("    s_nop 0")
    Lr = 15
    A(f"    v_mul_f32 v{Lr}, v{ml0}, v{ml0+1}")
    A(f"    v_fmac_f32 v{Lr}, v{ml1}, v{ml1+1}")
    for e in range(4):
        A(f"    v_mul_f32 v{o0+e}, v{ml0}, v{o0+e}")
        A(f"    v_fmac_f32 v{o0+e}, v{ml1}, v{o1+e}")
    xreduce([Lr, o0, o0 + 1, o0 + 2, o0 + 3], "v_add_f32", [40, 41, 42, 43, 44], bits=(1, 2, 4, 8))
    A(f"    v_rcp_f32 v{Lr}, v{Lr}")
    A("    s_nop 0")
    for e in range(4):
        A(f"    v_mul_f32 v{o0+e}, v{o0+e}, v{Lr}")
    A(f"    v_cvt_pk_bf16_f32 v16, v{o0}, v{o0+1}")
    A(f"    v_cvt_pk_bf16_f32 v17, v{o0+2}, v{o0+3}")
    if DEBUG_DUMP:
        unpack(6, 7, 16); unpack(8, 9, 17)
        dump(4 + 8 * L, [6, 7, 8, 9])
    A("    ; ---- wo via MFMA")
    A(f"    s_mul_i32 s{sT0}, s{sWAVE}, {8*CS}")
    A(f"    s_lshl_b32 s{sT1}, s{sIDX}, 6")
    A(f"    s_add_u32 s{sT0}, s{sT0}, s{sT1}")
    A(f"    s_add_u32 s{sT0}, s{sT0}, {R_OFF}")
    A(f"    v_and_b32 v50, 15, v{vLANE}")
    A(f"    v_lshlrev_b32 v50, 2, v50")
    A(f"    v_lshrrev_b32 v51, 4, v{vLANE}")
    A(f"    v_mul_u32_u24 v51, {2*CS}, v51")
    A(f"    v_add3_u32 v50, v50, v51, s{sT0}")
    if L == 0:
        A("    s_waitcnt lgkmcnt(0)")
    D = 200
    for T in range(8):
        A(f"    v_mfma_f32_16x16x16_bf16 {vr(D+4*T,4)}, v[16:17], {vr(vWO+2*T,2)}, 0")
    nops(8)
    for j in range(2):
        A(f"    v_cndmask_b32 v{2+j}, v{D+4*j}, v{D+8+4*j}, {sp(sM3)}")
        A(f"    v_cndmask_b32 v{4+j}, v{D+16+4*j}, v{D+24+4*j}, {sp(sM3)}")
    for j in range(2):
        A(f"    v_cndmask_b32 v{2+j}, v{2+j}, v{4+j}, {sp(sM4)}")
    store_local([f"global_store_dword v50, v2, {sp(sLOC)}", f"global_store_dword v50, v3, {sp(sLOC)} offset:{CS}"])

def x1_chain(L):
    Lskip = newlabel("w0")
    A(f"    s_cmp_eq_u32 s{sWAVE}, 0")
    A(f"    s_cbranch_scc0 {Lskip}")
    r0, r1 = 2, 6
    A(f"    v_add_u32 v40, {R_OFF}, v{vAO}")
    loads = [f"global_load_dwordx4 {vr(r0,4)}, v40, {sp(sLOC)} sc1",
             f"global_load_dwordx4 {vr(r1,4)}, v40, {sp(sLOC)} offset:1024 sc1"]
    poll(loads, list(range(2, 10)), 41, name="R", local=True)
    for e in range(4):
        A(f"    v_add_f32 v{r0+e}, v{r0+e}, v{r1+e}")
    xreduce([r0, r0 + 1, r0 + 2, r0 + 3], "v_add_f32", [40, 41, 42, 43], bits=(4, 8, 16, 32))
    A(f"    s_lshl_b32 s{sT0}, s{sG}, 11")
    A(f"    s_lshl_b32 s{sT1}, s{sIDX}, 6")
    A(f"    s_add_u32 s{sT0}, s{sT0}, s{sT1}")
    A(f"    s_add_u32 s{sT0}, s{sT0}, {P_OFF:#x}")
    A(f"    v_add_u32 v40, s{sT0}, v{vL16}")
    A(f"    v_cmp_gt_u32 vcc, 4, v{vLANE}")
    A(f"    s_and_saveexec_b64 {sp(sEX)}, vcc")
    A(f"    global_store_dwordx4 v40, {vr(r0,4)}, {sp(sGL)} sc1")
    A(f"    s_mov_b64 exec, {sp(sEX)}")
    loads = [f"global_load_dwordx2 v[2:3], v{vAP}, {sp(sGL)} sc1"]
    extra = None
    if L == 0:
        A(f"    v_and_b32 v24, 7, v{vLANE}")
        A(f"    v_lshlrev_b32 v24, 2, v24")
        loads.append(f"global_load_dword v25, v24, {sp(sDBG)} offset:192 sc1")
        def extra():
            A(f"    v_cmp_eq_u32 {sp(sCM)}, 0, v25")
            A(f"    s_or_b64 vcc, vcc, {sp(sCM)}")
    poll(loads, [2, 3], 40, extra, name="P")
    xreduce([2, 3], "v_add_f32", [40, 41], bits=(8, 16, 32))
    bf16r_pair(2, 3, 40)
    A(f"    v_add_f32 v{vXM}, v{vXM}, v2")
    A(f"    v_add_f32 v{vXM+1}, v{vXM+1}, v3")
    bf16r_pair(vXM, vXM + 1, 40)
    xl_publish(XL_OFF)
    xl_fetch(XL_OFF, "XL")
    A(f"{Lskip}:")
    A("    s_barrier")

def xl_publish(off):
    A(f"    s_lshl_b32 s{sT0}, s{sIDX}, 6")
    A(f"    s_add_u32 s{sT0}, s{sT0}, {off}")
    A(f"    v_lshlrev_b32 v40, 3, v{vLANE}")
    A(f"    v_add_u32 v40, s{sT0}, v40")
    A(f"    v_cmp_gt_u32 vcc, 8, v{vLANE}")
    A(f"    s_and_saveexec_b64 {sp(sEX)}, vcc")
    store_local([f"global_store_dwordx2 v40, {vr(vXM,2)}, {sp(sLOC)}"])
    A(f"    s_mov_b64 exec, {sp(sEX)}")

def xl_fetch(off, name):
    A(f"    v_lshlrev_b32 v41, 5, v{vLANE}")
    A(f"    v_add_u32 v40, {off}, v41")
    poll([f"global_load_dwordx4 v[2:5], v40, {sp(sLOC)} sc1",
          f"global_load_dwordx4 v[6:9], v40, {sp(sLOC)} offset:16 sc1"], list(range(2, 10)), 42, name=name, local=True)
    A(f"    ds_write_b128 v41, v[2:5] offset:{LDS_XS}")
    A(f"    ds_write_b128 v41, v[6:9] offset:{LDS_XS+16}")
    A("    s_waitcnt lgkmcnt(0)")

def b_phase(L):
    A("    ; ---- mixer MLP")
    xa = list(range(2, 10))
    ha, hb = 10, 11
    xa_, xb_ = 12, 13
    A(f"    v_lshlrev_b32 v40, 5, v{vLANE}")
    A(f"    s_lshl_b32 s{sT0}, s2, 3")
    A(f"    v_mov_b32 v41, s{sT0}")
    A(f"    ds_read_b128 v[2:5], v40 offset:{LDS_XS}")
    A(f"    ds_read_b128 v[6:9], v40 offset:{LDS_XS+16}")
    A(f"    ds_read_b64 v[10:11], v41 offset:{LDS_XS}")
    A("    s_waitcnt lgkmcnt(0)")
    dump(5 + 8 * L, xa)
    if L == 0:
        for i in range(7):
            A(f"    v_lshlrev_b32 v{vW1+i}, 16, v{vW1+i}")
            A(f"    v_lshlrev_b32 v{vB1+i}, 16, v{vB1+i}")
            A(f"    v_lshlrev_b32 v{vW2+i}, 16, v{vW2+i}")
        A(f"    v_lshlrev_b32 v{vB2}, 16, v{vB2}")
    A(f"    v_mov_b32 v{xa_}, v{ha}")
    A(f"    v_mov_b32 v{xb_}, v{hb}")
    vm, vrs = 14, 15
    ln_stats(xa, vm, vrs, [42, 43, 44, 45])
    ln_apply(xa + [ha, hb], vm, vrs, 42)
    ln_stats(xa, vm, vrs, [42, 43, 44, 45])
    ln_apply([ha, hb], vm, vrs, 42)
    dump(6 + 8 * L, [ha, hb])
    c1 = -2.0 * 0.7978845608028654 * 1.4426950408889634
    A(f"    s_mov_b32 s{sC+2}, {f32bits(c1):#x}")
    A(f"    s_mov_b32 s{sC+3}, {f32bits(c1*0.044715):#x}")
    acca, accb = 16, 17
    A(f"    v_mov_b32 v{acca}, 0")
    A(f"    v_mov_b32 v{accb}, 0")
    A(f"    v_mov_b32 v30, s{sC+2}")
    A(f"    v_mov_b32 v31, s{sC+3}")
    A(f"    v_mov_b32 v32, 1.0")
    U = 200
    Z = 216
    for i in range(7): pk2("v_pk_mul_f32", U + 2 * i, ha, vW1 + i)
    for i in range(7): bf16r_pair(U + 2 * i, U + 2 * i + 1, 24)
    for i in range(7): pk2("v_pk_add_f32", U + 2 * i, U + 2 * i, vB1 + i)
    for i in range(7): bf16r_pair(U + 2 * i, U + 2 * i + 1, 24)
    for i in range(7): A(f"    v_pk_mul_f32 {vr(Z+2*i,2)}, {vr(U+2*i,2)}, {vr(U+2*i,2)}")
    for i in range(7): A(f"    v_pk_fma_f32 {vr(Z+2*i,2)}, {vr(Z+2*i,2)}, v[30:31], v[30:31] op_sel:[0,1,0] op_sel_hi:[1,1,0]")
    for i in range(7): A(f"    v_pk_mul_f32 {vr(Z+2*i,2)}, {vr(Z+2*i,2)}, {vr(U+2*i,2)}")
    for k in range(14): A(f"    v_exp_f32 v{Z+k}, v{Z+k}")
    for i in range(7): pk2("v_pk_add_f32", Z + 2 * i, Z + 2 * i, 32)
    for k in range(14): A(f"    v_rcp_f32 v{Z+k}, v{Z+k}")
    for i in range(7): A(f"    v_pk_mul_f32 {vr(U+2*i,2)}, {vr(U+2*i,2)}, {vr(Z+2*i,2)}")
    for i in range(7): bf16r_pair(U + 2 * i, U + 2 * i + 1, 24)
    for i in range(7):
        t, sel = bc(vW2 + i)
        A(f"    v_pk_fma_f32 {vr(acca,2)}, {vr(U+2*i,2)}, {t}, {vr(acca,2)} op_sel:[0,{sel},0] op_sel_hi:[1,{sel},1]")
    xreduce([acca, accb], "v_add_f32", [40, 41])
    return acca, accb, xa_, xb_

def y_finish(acca, xa_, xb_):
    A(f"    s_lshl_b32 s{sT0}, s{sWAVE}, 3")
    A(f"    v_mov_b32 v40, s{sT0}")
    A(f"    ds_write_b64 v40, {vr(acca,2)} offset:{LDS_YS}")
    A("    s_waitcnt lgkmcnt(0)")
    A("    s_barrier")

def y_sum(xa_, xb_):
    A(f"    v_mov_b32 v40, 0")
    A(f"    ds_read_b128 {vr(2,4)}, v40 offset:{LDS_YS}")
    A(f"    ds_read_b128 {vr(6,4)}, v40 offset:{LDS_YS+16}")
    A("    s_waitcnt lgkmcnt(0)")
    for w in range(1, 4):
        A(f"    v_add_f32 v2, v2, v{2+2*w}")
        A(f"    v_add_f32 v3, v3, v{3+2*w}")
    bf16r_pair(2, 3, 40)
    A(f"    v_add_f32 v2, v2, v{vB2}")
    A(f"    v_add_f32 v3, v3, v{vB2}")
    bf16r_pair(2, 3, 40)
    A(f"    v_add_f32 v2, v{xa_}, v2")
    A(f"    v_add_f32 v3, v{xb_}, v3")

def x2_chain(acca, xa_, xb_):
    y_finish(acca, xa_, xb_)
    Lskip = newlabel("w0")
    A(f"    s_cmp_eq_u32 s{sWAVE}, 0")
    A(f"    s_cbranch_scc0 {Lskip}")
    y_sum(xa_, xb_)
    bf16r_pair(2, 3, 40)
    A(f"    s_lshl_b32 s{sT0}, s2, 6")
    A(f"    s_add_u32 s{sT0}, s{sT0}, {Y_OFF:#x}")
    A(f"    v_mov_b32 v40, s{sT0}")
    A(f"    v_cmp_eq_u32 vcc, 0, v{vLANE}")
    A(f"    s_and_saveexec_b64 {sp(sEX)}, vcc")
    A(f"    global_store_dwordx2 v40, v[2:3], {sp(sGL)} sc1")
    A(f"    s_mov_b64 exec, {sp(sEX)}")
    poll([f"global_load_dwordx2 {vr(vXM,2)}, v{vAY}, {sp(sGL)} sc1"], [vXM, vXM + 1], 40, name="Y")
    xl_publish(XL2_OFF)
    xl_fetch(XL2_OFF, "XL2")
    A(f"{Lskip}:")
    A("    s_barrier")

ts("start")
set_layer(0)
xa = list(range(24, 32)); xr = list(range(32, 36))
A("    ; ---- V transpose")
A(f"    s_waitcnt vmcnt({N_AFTER_V})")
ts("V arrived")
A(f"    s_lshl_b32 s{sT0}, s{sWAVE}, 13")
A(f"    v_add_u32 v40, s{sT0}, v{vL16}")
for i in range(8):
    A(f"    ds_write_b128 v40, {vr(vVS+4*i,4)} offset:{LDS_V + i*1024}")
A(f"    v_lshrrev_b32 v41, 4, v{vLANE}")
A(f"    v_and_b32 v42, 15, v{vLANE}")
A(f"    v_lshrrev_b32 v43, 2, v42")
A(f"    v_lshl_add_u32 v43, v41, 2, v43")
A(f"    v_lshlrev_b32 v43, 8, v43")
A(f"    v_and_b32 v42, 3, v42")
A(f"    v_lshl_add_u32 v43, v42, 3, v43")
A(f"    v_add_u32 v43, s{sT0}, v43")
A("    s_waitcnt lgkmcnt(0)")
for T in range(8):
    A(f"    ds_read_b64_tr_b16 {vr(vVT+4*T,2)}, v43 offset:{LDS_V + T*32}")
    A(f"    ds_read_b64_tr_b16 {vr(vVT+4*T+2,2)}, v43 offset:{LDS_V + T*32 + 4096}")
unpack(vXM, vXM + 1, vXP)
A("    s_waitcnt lgkmcnt(0)")
A(f"    s_add_u32 s{sTAG}, s{sTAG}, 1")
A(f"    s_addc_u32 s{sTAG+1}, s{sTAG+1}, 0")
ts("all loads+transpose")
late_loads()
A("    s_barrier")
ts("q gathered")
attention(0)
ts("attn")
o_combine_wo(0)
ts("o+wo")
x1_chain(0)
ts("x1 chain")
acca, accb, xa_, xb_ = b_phase(0)
ts("B")
x2_chain(acca, xa_, xb_)
ts("x2 chain")
q_frags()
A(f"    v_lshlrev_b32 v40, 5, v{vLANE}")
A(f"    ds_read_b128 v[24:27], v40 offset:{LDS_XS}")
A(f"    ds_read_b128 v[28:31], v40 offset:{LDS_XS+16}")
A(f"    ds_read_b64 v[32:33], v{vAXR} offset:{LDS_XS}")
A("    s_waitcnt lgkmcnt(0)")
dump(7, xa)
set_layer(1)
q_phase(1, xa, [32, 33])
ts("q2 pub")
q_gather()
ts("q2 gathered")
attention(1)
ts("attn2")
o_combine_wo(1)
ts("o+wo 2")
x1_chain(1)
ts("x1 chain 2")
acca, accb, xa_, xb_ = b_phase(1)
ts("B2")
ts_flush()
diag_flush()
A("    ; ---- final")
y_finish(acca, xa_, xb_)
A(f"    s_cmp_eq_u32 s{sWAVE}, 0")
A("    s_cbranch_scc0 L_end")
y_sum(xa_, xb_)
A(f"    v_cvt_pk_bf16_f32 v4, v2, v3")
A(f"    s_lshl_b32 s{sT0}, s2, 2")
A(f"    v_mov_b32 v40, s{sT0}")
A(f"    v_cmp_eq_u32 vcc, 0, v{vLANE}")
A(f"    s_and_saveexec_b64 {sp(sEX)}, vcc")
A(f"    global_store_dword v40, v4, {sp(sOUT)}")
A(f"    s_cmp_eq_u32 s2, 0")
A(f"    s_cbranch_scc0 L_noep")
A(f"    v_mov_b32 v40, {EPOCH_OFF}")
A(f"    v_mov_b32 v42, s{sTAG}")
A(f"    v_mov_b32 v43, s{sTAG+1}")
A(f"    global_store_dwordx2 v40, v[42:43], {sp(sWS)} sc1")
A("L_noep:")
A("    s_waitcnt vmcnt(0)")
A("    s_branch L_end")

A("L_helper:")
if TS:
    A("    v_mov_b32 v254, 0")
    A("    v_mov_b32 v253, 0")
hts("h entry")
hWQ = 64
A("    s_setprio 3")
A(f"    v_lshlrev_b32 v2, 4, v{vLANE}")
A(f"    global_load_dwordx4 v[24:27], v2, {sp(sX)}")
A(f"    s_lshr_b32 s{sT0}, s{sIDX}, 3            ; kb")
A(f"    s_lshl_b32 s{sT1}, s{sT0}, 8             ; kb*128*2")
A(f"    v_lshlrev_b32 v8, 2, v{vLANE}")
A(f"    v_add_u32 v9, s{sT1}, v8")
A(f"    global_load_dword v28, v9, {sp(sX)}")
A(f"    s_lshl_b32 s{sT1}, s{sT0}, 20")
A(f"    s_lshl_b32 s{sT2}, s{sG}, 10")
A(f"    s_add_u32 s{sT1}, s{sT1}, s{sT2}")
A(f"    s_and_b32 s{sT2}, s{sIDX}, 7")
A(f"    s_lshl_b32 s{sT2}, s{sT2}, 7")
A(f"    s_add_u32 s{sT1}, s{sT1}, s{sT2}")
A(f"    v_lshrrev_b32 v3, 3, v{vLANE}")
A(f"    v_lshlrev_b32 v9, 13, v3")
A(f"    v_and_b32 v10, 7, v{vLANE}")
A(f"    v_lshlrev_b32 v11, 4, v10")
A(f"    v_add3_u32 v9, v9, v11, s{sT1}")
for i in range(16):
    if i: A(f"    v_add_u32 v9, 0x10000, v9")
    A(f"    global_load_dwordx4 {vr(hWQ+4*i,4)}, v9, {sp(sWQ)} nt      ; rows 8i + (l>>3)")
A("    s_barrier")
hts("h issued")
A(f"    s_waitcnt vmcnt(16)")
hts("h x arrived")
hxa = list(range(40, 48))
for i in range(4): unpack(hxa[2 * i], hxa[2 * i + 1], 24 + i)
unpack(30, 31, 28)
ln_stats(hxa, 48, 49, [50, 51, 52, 53])
ln_apply([30, 31], 48, 49, 50)
A(f"    v_cvt_pk_bf16_f32 v32, v30, v31")
A(f"    ds_write_b32 v8, v32 offset:{LDS_HS}")
A("    s_waitcnt lgkmcnt(0)")
A(f"    s_add_u32 s{sTAG}, s{sTAG}, 1")
A(f"    s_addc_u32 s{sTAG+1}, s{sTAG+1}, 0")
A(f"    v_lshrrev_b32 v12, 4, v{vLANE}           ; slab")
A(f"    v_lshlrev_b32 v13, 4, v12")
hA = 130
for ks in range(4):
    A(f"    ds_read_b128 {vr(hA+4*ks,4)}, v13 offset:{LDS_HS + ks*64}")
for i in range(16):
    A(f"    s_waitcnt vmcnt({15 - i})")
    A(f"    ds_write_b128 v2, {vr(hWQ+4*i,4)} offset:{LDS_WQ + i*1024}")
A(f"    v_and_b32 v14, 15, v{vLANE}")
A(f"    v_lshrrev_b32 v15, 2, v14")
A(f"    v_lshl_add_u32 v15, v12, 3, v15")
A(f"    v_lshlrev_b32 v15, 7, v15")
A(f"    v_and_b32 v14, 3, v14")
A(f"    v_lshl_add_u32 v15, v14, 3, v15")
A("    s_waitcnt lgkmcnt(0)")
hB = 64
hD = 146
def h_reads(j):
    for ks in range(4):
        r = hB + 16 * j + 4 * ks
        A(f"    ds_read_b64_tr_b16 {vr(r,2)}, v15 offset:{LDS_WQ + ks*4096 + j*32}")
        A(f"    ds_read_b64_tr_b16 {vr(r+2,2)}, v15 offset:{LDS_WQ + ks*4096 + j*32 + 512}")
def h_mfma(j):
    for ks in range(4):
        c = "0" if ks == 0 else vr(hD + 4 * j, 4)
        A(f"    v_mfma_f32_16x16x32_bf16 {vr(hD+4*j,4)}, {vr(hA+4*ks,4)}, {vr(hB+16*j+4*ks,4)}, {c}")
h_reads(0); h_reads(1)
A("    s_waitcnt lgkmcnt(8)"); h_mfma(0); h_reads(2)
A("    s_waitcnt lgkmcnt(8)"); h_mfma(1); h_reads(3)
A("    s_waitcnt lgkmcnt(8)"); h_mfma(2)
A("    s_waitcnt lgkmcnt(0)"); h_mfma(3)
hts("h fma done")
A(f"    s_lshl_b32 s{sT0}, s{sG}, 14")
A(f"    s_lshr_b32 s{sT1}, s{sIDX}, 3")
A(f"    s_lshl_b32 s{sT1}, s{sT1}, 12")
A(f"    s_add_u32 s{sT0}, s{sT0}, s{sT1}")
A(f"    s_and_b32 s{sT1}, s{sIDX}, 7")
A(f"    s_lshl_b32 s{sT1}, s{sT1}, 9")
A(f"    s_add_u32 s{sT0}, s{sT0}, s{sT1}")
A(f"    s_add_u32 s{sT0}, s{sT0}, {QT_OFF}")
A(f"    v_lshlrev_b32 v17, 3, v{vLANE}")
A(f"    v_add_u32 v17, s{sT0}, v17")
A(f"    v_and_b32 v18, 0x31, v{vLANE}")
nops(6)
for j in range(4):
    A(f"    v_mov_b32_dpp v{hD+4*j+1}, v{hD+4*j} quad_perm:[1,1,3,3] row_mask:0xf bank_mask:0xf")
    A(f"    v_mov_b32 v{hD+4*j+2}, s{sTAG}")
    A(f"    v_mov_b32 v{hD+4*j+3}, s{sTAG+1}")
A(f"    v_cmp_eq_u32 vcc, 0, v18")
A(f"    s_and_saveexec_b64 {sp(sEX)}, vcc")
for j in range(4):
    A(f"    global_store_dwordx4 v17, {vr(hD+4*j,4)}, {sp(sWS)} offset:{j*128} sc1")
A(f"    s_mov_b64 exec, {sp(sEX)}")
hts("h q published")
A("    s_setprio 0")
for r in range(4, 8): A(f"    v_mov_b32 v{r}, -1")
def clear_local(flag):
    for L in range(2):
        set_layer(L)
        A(f"    s_mul_i32 s{sT0}, s{sIDX}, {CLR_PER_CU}")
        A(f"    v_add_u32 v36, s{sT0}, v2")
        for i in range(CLR_PER_CU // 1024):
            if i and i % 4 == 0:
                A(f"    v_add_u32 v36, 4096, v36")
            A(f"    global_store_dwordx4 v36, v[4:7], {sp(sLOC)} offset:{(i%4)*1024}{flag}")
clear_local(" sc1")
A(f"    s_lshl_b32 s{sT0}, s{sG}, 11")
A(f"    s_lshl_b32 s{sT1}, s{sIDX}, 6")
A(f"    s_add_u32 s{sT0}, s{sT0}, s{sT1}")
A(f"    s_add_u32 s{sT0}, s{sT0}, {LAYER_BASE + P_OFF:#x}")
A(f"    v_add_u32 v13, s{sT0}, v2")
A(f"    v_add_u32 v14, {LAYER_STRIDE:#x}, v13")
A(f"    s_lshl_b32 s{sT0}, s2, 6")
A(f"    s_add_u32 s{sT0}, s{sT0}, {LAYER_BASE + Y_OFF:#x}")
A(f"    v_add_u32 v15, s{sT0}, v2")
A(f"    v_cmp_gt_u32 vcc, 4, v{vLANE}")
A(f"    s_and_saveexec_b64 {sp(sEX)}, vcc")
A(f"    global_store_dwordx4 v13, v[4:7], {sp(sWS)} sc1")
A(f"    global_store_dwordx4 v14, v[4:7], {sp(sWS)} sc1")
A(f"    global_store_dwordx4 v15, v[4:7], {sp(sWS)} sc1")
A(f"    s_mov_b64 exec, {sp(sEX)}")
A(f"    v_mov_b32 v12, s{sTAG}")
A(f"    v_mov_b32 v13, s{sTAG+1}")
A(f"    s_lshl_b32 s{sT0}, s{sG}, 14")
A(f"    s_add_u32 s{sT0}, s{sT0}, {QT_OFF}")
A(f"    v_add_u32 v40, s{sT0}, v2")
for kb in range(1, 4):
    A(f"    v_add_u32 v{40+kb}, {kb*4096}, v40")
A(f"    s_getreg_b32 s{sT2}, hwreg(HW_REG_XCC_ID)")
A(f"    s_and_b32 s{sT2}, s{sT2}, 0xffff")
A(f"    v_mov_b32 v14, s{sT2}")
A(f"    v_mov_b32 v15, 0")
A(f"    s_lshl_b32 s{sT0}, s{sCU}, 6")
A(f"    v_mov_b32 v16, s{sT0}")
A(f"    s_lshl_b32 s{sT1}, s{sG}, 11")
A(f"    v_and_b32 v17, 31, v{vLANE}")
A(f"    v_lshlrev_b32 v17, 6, v17")
A(f"    v_add_u32 v17, s{sT1}, v17")
A(f"    s_mov_b32 s{sTO}, 0x8000")
A(f"    s_mov_b32 s{sT3}, 0")
A("L_h_qt:")
for kb in range(4):
    for m in range(4):
        A(f"    global_load_dwordx4 {vr(64+16*kb+4*m,4)}, v{40+kb}, {sp(sWS)} offset:{m*1024} sc1")
A("    s_waitcnt vmcnt(0)")
A(f"    s_cmp_eq_u32 s{sT3}, 0")
A("    s_cbranch_scc0 L_h_qt_nf")
A(f"    s_mov_b32 s{sT3}, 1")
A(f"    v_cmp_eq_u32 vcc, 0, v{vLANE}")
A(f"    s_and_saveexec_b64 {sp(sEX)}, vcc")
A(f"    global_store_dwordx4 v16, v[12:15], {sp(sWS)} sc1")
A(f"    s_mov_b64 exec, {sp(sEX)}")
A("L_h_qt_nf:")
A(f"    v_mov_b32 v44, 0")
for i in range(16):
    A(f"    v_xor_b32 v45, v12, v{64+4*i+2}")
    A(f"    v_xor_b32 v46, v13, v{64+4*i+3}")
    A(f"    v_or3_b32 v44, v44, v45, v46")
A(f"    v_cmp_ne_u32 vcc, 0, v44")
A("    s_cbranch_vccz L_h_qtd")
A(f"    s_sub_u32 s{sTO}, s{sTO}, 1")
A("    s_cbranch_scc0 L_h_qt")
A("L_h_qtd:")
for m in range(4):
    for kb in range(1, 4):
        A(f"    v_add_f32 v{64+4*m}, v{64+4*m}, v{64+16*kb+4*m}")
        A(f"    v_add_f32 v{65+4*m}, v{65+4*m}, v{65+16*kb+4*m}")
    A(f"    v_cvt_pk_bf16_f32 v{44+m}, v{64+4*m}, v{65+4*m}")
    A(f"    ds_write_b32 v8, v{44+m} offset:{LDS_QS + m*HS_Q}")
hts("h q gathered")
A("    s_waitcnt vmcnt(0) lgkmcnt(0)")
hts("h clears acked")
def flag_round(off, lab, barrier=False):
    A(f"    v_add_u32 v19, {off}, v17")
    if barrier:
        A("    s_barrier")
    A(f"    s_mov_b32 s{sTO}, 0x8000")
    A(f"{lab}:")
    A(f"    global_load_dwordx4 v[20:23], v19, {sp(sWS)} sc1")
    A("    s_waitcnt vmcnt(0)")
    A(f"    v_cmp_ne_u32 vcc, v20, v12")
    A(f"    v_cmp_ne_u32 {sp(sCM)}, v21, v13")
    A(f"    s_or_b64 vcc, vcc, {sp(sCM)}")
    A(f"    s_cbranch_vccz {lab}_d")
    A(f"    s_sub_u32 s{sTO}, s{sTO}, 1")
    A(f"    s_cbranch_scc0 {lab}")
    A(f"{lab}_d:")
flag_round(FL1, "L_h_f1", True)
A(f"    v_cmp_ne_u32 vcc, v22, v14")
A(f"    s_mov_b32 s{sMODE}, 1")
if FORCE_SLOW:
    A("    s_branch L_h_mode")
A("    s_cbranch_vccnz L_h_mode")
A(f"    s_mov_b32 s{sMODE}, 0")
A(f"    v_lshlrev_b32 v37, 6, v{vLANE}")
for L in range(2):
    set_layer(L)
    A(f"    s_mul_i32 s{sT0}, s{sIDX}, {CLR_PER_CU}")
    A(f"    v_add_u32 v36, s{sT0}, v37")
    A(f"    global_load_dword v{38+2*L}, v36, {sp(sLOC)}")
    A(f"    v_add_u32 v36, 4096, v36")
    A(f"    global_load_dword v{39+2*L}, v36, {sp(sLOC)}")
A("L_h_mode:")
hts("h mode")
A(f"    v_mov_b32 v24, {LDS_MODE}")
A(f"    v_mov_b32 v25, s{sMODE}")
A(f"    ds_write_b32 v24, v25")
A("    s_waitcnt lgkmcnt(0)")
A("    s_barrier                    ; B1")
A(f"    s_cmp_eq_u32 s{sIDX}, 0")
A("    s_cbranch_scc0 L_h_end")
A(f"    s_lshl_b32 s{sT0}, s{sG}, 2")
A(f"    v_mov_b32 v24, s{sT0}")
A(f"    v_mov_b32 v25, 1")
A(f"    v_cmp_eq_u32 vcc, 0, v{vLANE}")
A(f"    s_and_saveexec_b64 {sp(sEX)}, vcc")
A(f"    global_store_dword v24, v25, {sp(sDBG)} offset:192 sc1")
A("L_h_end:")
A("    s_mov_b64 exec, -1")
A("    s_waitcnt vmcnt(0)")
if TS:
    A(f"    s_lshl_b32 s{sT0}, s2, 11")
    A(f"    s_add_u32 s{sT0}, s{sT0}, {DUMP_BASE + 31 * 0x400000}")
    A(f"    v_lshlrev_b32 v255, 2, v{vLANE}")
    A(f"    v_add_u32 v255, s{sT0}, v255")
    A(f"    global_store_dword v255, v254, {sp(sWS)}")
    A("    s_waitcnt vmcnt(0)")
A("L_end:")
A("    s_endpgm")
A('.section .rodata,"a"')
A(".p2align 6")
A(f".amdhsa_kernel {KNAME}")
A("  .amdhsa_next_free_vgpr 256")
A("  .amdhsa_next_free_sgpr 88")
A("  .amdhsa_accum_offset 256")
A("  .amdhsa_group_segment_fixed_size 0")
A("  .amdhsa_kernarg_size 104")
A("  .amdhsa_user_sgpr_count 2")
A("  .amdhsa_user_sgpr_kernarg_segment_ptr 1")
A("  .amdhsa_system_sgpr_workgroup_id_x 1")
A(".end_amdhsa_kernel")

dst = [a for a in sys.argv[1:] if not a.startswith("--")]
path = dst[0] if dst else "interleave_layers__sliding_block_cached__mixer_token_mlp__decode.s"
open(path, "w").write("\n".join(out) + "\n")
print("wrote", path, len(out), "lines")
```

```python
import sys, struct

KNAME = "interleave_layers__sliding_block_cached__mixer_token_mlp__decode_kernel"
DEBUG_DUMP = "--dump" in sys.argv
FORCE_SLOW = "--slow" in sys.argv
TS = "--ts" in sys.argv

out = []
def A(s=""):
    out.append(s)
def f32bits(x):
    return struct.unpack("<I", struct.pack("<f", x))[0]
_lbl = [0]; _pc = [0]; _ts = [0]
def newlabel(p="L"):
    _lbl[0] += 1
    return f"{p}_{_lbl[0]}"

FL1 = 0x0000
FL2 = 0x4000
EPOCH_OFF = 0x8000
QT_OFF = 0x10000
LAYER_BASE = 0x30000
LAYER_STRIDE = 0x150000
GRP_STRIDE = 0x28000
CS = 2048 + 128
Q_OFF = 0x0000
ML_OFF = 0x2000
XL_OFF = 0x2400
XL2_OFF = 0x2C00
O_OFF = 0x3400
R_OFF = O_OFF + 32 * CS
GRP_USED = R_OFF + 32 * CS
CLR_PER_CU = (GRP_USED + 32 * 1024 - 1) // (32 * 1024) * 1024
assert CLR_PER_CU * 32 <= GRP_STRIDE
P_OFF = 0x140000
Y_OFF = 0x144000
DUMP_BASE = 0x4000000

LDS_V = 0x0000
LDS_CMB = 0x0000
LDS_MLW = 0x2800
HS_C = 576
HS_Q = 272
LDS_XS = 0x4000
LDS_QS = 0x8000
LDS_MODE = 0x8460
LDS_YS = 0x8480
LDS_HS = 0x8500
LDS_WQ = 0x9000
LDS_WO = 0xD000
LDS_HW = 0x8800
LDS_BYTES = 0x11000

sX, sK, sV, sWQ, sWO, sBX, sW1, sB1, sW2, sB2, sOUT, sDBG, sWS = [4 + 2 * i for i in range(13)]
sG, sIDX, sWAVE, sCU, sMODE, sTO = 30, 31, 32, 33, 34, 35
sLOC = 36; sMY = 38; sGL = 40
sT0, sT1, sT2, sT3 = 42, 43, 44, 45
sO = 46
sEX = 50
sC = 52
sCM = 64
sTAG = 66
sM1 = 76; sM2 = 78
sM3 = 80; sM4 = 82
def sp(r): return f"s[{r}:{r+1}]"

vTID, vLANE = 0, 1
vK = 64; vVT = 96; vWQ = 128; vWO = 144
vW1, vB1, vW2 = 160, 167, 174
vB2 = 181
vXM = 182
vL16 = 184
vT8 = 185
vAO = 186
vAML = 187
vAP = 188
vAY = 189
vAXR = 190
vAPUB = 191
vAO2 = 192
def vr(r, n): return f"v[{r}:{r+n-1}]"

def nops(n):
    while n > 0:
        k = min(n, 16)
        A(f"    s_nop {k-1}")
        n -= k

DPP = {1: "quad_perm:[1,0,3,2]", 2: "quad_perm:[2,3,0,1]", 4: "row_ror:4", 8: "row_ror:8"}
def xreduce(regs, op, tmp, bits=(1, 2, 4, 8, 16, 32)):
    n = len(regs)
    for b in bits:
        if b <= 8:
            if n < 3: nops(3 - n)
            for r in regs:
                A(f"    {op}_dpp v{r}, v{r}, v{r} {DPP[b]} row_mask:0xf bank_mask:0xf")
        else:
            sw = "v_permlane16_swap_b32" if b == 16 else "v_permlane32_swap_b32"
            for r, t in zip(regs, tmp):
                A(f"    v_mov_b32 v{t}, v{r}")
            nops(2 if n < 2 else 1)
            for r, t in zip(regs, tmp):
                A(f"    {sw} v{t}, v{r}")
            nops(1)
            for r, t in zip(regs, tmp):
                A(f"    {op} v{r}, v{r}, v{t}")

def bf16r_pair(a, b, t):
    A(f"    v_cvt_pk_bf16_f32 v{t}, v{a}, v{b}")
    A(f"    v_lshlrev_b32 v{a}, 16, v{t}")
    A(f"    v_and_b32 v{b}, 0xffff0000, v{t}")
def bf16r(a, t):
    A(f"    v_cvt_pk_bf16_f32 v{t}, v{a}, v{a}")
    A(f"    v_lshlrev_b32 v{a}, 16, v{t}")
def unpack(dst_lo, dst_hi, src):
    A(f"    v_lshlrev_b32 v{dst_lo}, 16, v{src}")
    A(f"    v_and_b32 v{dst_hi}, 0xffff0000, v{src}")

def max_chain(dst, regs):
    regs = list(regs)
    if len(regs) == 1:
        A(f"    v_mov_b32 v{dst}, v{regs[0]}"); return
    if len(regs) == 2:
        A(f"    v_max_u32 v{dst}, v{regs[0]}, v{regs[1]}"); return
    A(f"    v_max3_u32 v{dst}, v{regs[0]}, v{regs[1]}, v{regs[2]}")
    rest = regs[3:]
    while len(rest) >= 2:
        A(f"    v_max3_u32 v{dst}, v{dst}, v{rest[0]}, v{rest[1]}")
        rest = rest[2:]
    if rest:
        A(f"    v_max_u32 v{dst}, v{dst}, v{rest[0]}")

def ts(name=""):
    if not TS: return
    if "--tsl" in sys.argv and name not in ("entry", "B2"): return
    k = _ts[0]; _ts[0] += 1
    A(f"    s_memrealtime s[70:71]")
    A(f"    s_waitcnt lgkmcnt(0)")
    A(f"    v_writelane_b32 v254, s70, {k}")
_hts = [0]
def hts(name=""):
    if not TS: return
    if "--tsl" in sys.argv: return
    k = _hts[0]; _hts[0] += 1
    A(f"    s_memrealtime s[70:71]")
    A(f"    s_waitcnt lgkmcnt(0)")
    A(f"    v_writelane_b32 v254, s70, {k}")
def ts_flush():
    if not TS: return
    A(f"    s_lshl_b32 s{sT0}, s2, 11")
    A(f"    s_lshl_b32 s{sT1}, s{sWAVE}, 8")
    A(f"    s_add_u32 s{sT0}, s{sT0}, s{sT1}")
    A(f"    s_add_u32 s{sT0}, s{sT0}, {DUMP_BASE + 30 * 0x400000}")
    A(f"    v_lshlrev_b32 v255, 2, v{vLANE}")
    A(f"    v_add_u32 v255, s{sT0}, v255")
    A(f"    global_store_dword v255, v254, {sp(sWS)}")
    A(f"    global_store_dword v255, v253, {sp(sWS)} offset:1024")
    A("    s_waitcnt vmcnt(0)")
def diag_flush():
    if "--diag" not in sys.argv: return
    L = newlabel("dg")
    A(f"    s_cmp_eq_u32 s2, 37")
    A(f"    s_cbranch_scc0 {L}")
    A(f"    s_cmp_eq_u32 s{sWAVE}, 0")
    A(f"    s_cbranch_scc0 {L}")
    A(f"    v_readlane_b32 s72, v254, 0")
    A("    s_nop 3")
    A(f"    v_subrev_u32 v255, s72, v254")
    A(f"    v_mul_u32_u24 v252, 86, v{vLANE}")
    A(f"    v_lshrrev_b32 v252, 8, v252            ; lane/3")
    A(f"    v_mul_u32_u24 v251, 3, v252")
    A(f"    v_cmp_eq_u32 vcc, v251, v{vLANE}")
    A(f"    v_cmp_gt_u32 {sp(sCM)}, 16, v252")
    A(f"    s_and_b64 vcc, vcc, {sp(sCM)}")
    A(f"    v_lshlrev_b32 v252, 2, v252")
    A(f"    s_and_saveexec_b64 {sp(sEX)}, vcc")
    A(f"    global_store_dword v252, v255, {sp(sDBG)}")
    A(f"    s_mov_b64 exec, {sp(sEX)}")
    A("    s_waitcnt vmcnt(0)")
    A(f"{L}:")

def dump(slot, regs):
    if not DEBUG_DUMP: return
    A(f"    s_lshl_b32 s{sT0}, s2, 14")
    A(f"    s_add_u32 s{sT0}, s{sT0}, {DUMP_BASE + slot * 0x400000}")
    A(f"    v_lshlrev_b32 v255, 6, v{vTID}")
    A(f"    v_add_u32 v255, s{sT0}, v255")
    for i, r in enumerate(regs):
        A(f"    global_store_dword v255, v{r}, {sp(sWS)} offset:{4*i}")
    A("    s_waitcnt vmcnt(0)")

def poll(loads, check_regs, vtmp, extra_check=None, name="", local=False):
    L = newlabel("poll"); D = newlabel("polld"); C = newlabel("pollc")
    A(f"    s_mov_b32 s{sTO}, 0x8000")
    if "--ack" in sys.argv:
        ts("  pre-ack " + name)
        A("    s_waitcnt vmcnt(0)")
    ts("  poll begin " + name)
    if local and "--plain1" in sys.argv:
        for l in loads: A("    " + l.replace(" sc1", ""))
        A(f"    s_branch {C}")
    A(f"{L}:")
    for l in loads: A("    " + l)
    A(f"{C}:")
    A("    s_waitcnt vmcnt(0)")
    max_chain(vtmp, check_regs)
    A(f"    v_cmp_eq_u32 vcc, -1, v{vtmp}")
    if extra_check: extra_check()
    A(f"    s_cbranch_vccz {D}")
    A(f"    s_sub_u32 s{sTO}, s{sTO}, 1")
    A(f"    s_cbranch_scc0 {L}")
    A(f"{D}:")
    ts("  poll end " + name)
    if TS and "--tsl" not in sys.argv:
        k = _pc[0]; _pc[0] += 1
        A(f"    s_sub_u32 s72, 0x8000, s{sTO}")
        A(f"    v_writelane_b32 v253, s72, {k}")

def store_local(stores):
    S = newlabel("sl"); D = newlabel("sld")
    A(f"    s_cmp_eq_u32 s{sMODE}, 0")
    A(f"    s_cbranch_scc0 {S}")
    for s in stores: A("    " + s)
    A(f"    s_branch {D}")
    A(f"{S}:")
    for s in stores: A("    " + s + " sc1")
    A(f"{D}:")

def set_layer(L):
    base = LAYER_BASE + L * LAYER_STRIDE
    A(f"    ; ---- layer {L} bases")
    A(f"    s_add_u32 s{sGL}, s{sWS}, {base}")
    A(f"    s_addc_u32 s{sGL+1}, s{sWS+1}, 0")
    A(f"    s_mul_i32 s{sT0}, s{sG}, {GRP_STRIDE}")
    A(f"    s_add_u32 s{sLOC}, s{sGL}, s{sT0}")
    A(f"    s_addc_u32 s{sLOC+1}, s{sGL+1}, 0")

def ln_stats(xregs, vmean, vrs, t):
    s1, s2, t0, t1 = t[0], t[1], t[2], t[3]
    A(f"    v_add_f32 v{s1}, v{xregs[0]}, v{xregs[1]}")
    A(f"    v_mul_f32 v{s2}, v{xregs[0]}, v{xregs[0]}")
    A(f"    v_fmac_f32 v{s2}, v{xregs[1]}, v{xregs[1]}")
    for r in xregs[2:]:
        A(f"    v_add_f32 v{s1}, v{s1}, v{r}")
        A(f"    v_fmac_f32 v{s2}, v{r}, v{r}")
    xreduce([s1, s2], "v_add_f32", [t0, t1])
    A(f"    v_mul_f32 v{s1}, {f32bits(1/512):#x}, v{s1}")
    A(f"    v_mul_f32 v{s2}, {f32bits(1/512):#x}, v{s2}")
    A(f"    v_fma_f32 v{s2}, -v{s1}, v{s1}, v{s2}")
    A(f"    v_max_f32 v{s2}, 0, v{s2}")
    bf16r_pair(s1, s2, t0)
    A(f"    v_add_f32 v{s2}, {f32bits(1e-5):#x}, v{s2}")
    bf16r(s2, t0)
    A(f"    v_sqrt_f32 v{s2}, v{s2}")
    A("    s_nop 0")
    bf16r(s2, t0)
    A(f"    v_rcp_f32 v{vrs}, v{s2}")
    A(f"    v_mov_b32 v{vmean}, v{s1}")
    A("    s_nop 0")

def bc(r):
    return (f"v[{r & ~1}:{(r & ~1) + 1}]", r & 1)
def pk2(op, d, a, b, neg_b=False):
    t, sel = bc(b)
    neg = " neg_lo:[0,1] neg_hi:[0,1]" if neg_b else ""
    A(f"    {op} {vr(d,2)}, {vr(a,2)}, {t} op_sel:[0,{sel}] op_sel_hi:[1,{sel}]{neg}")

def ln_apply(regs, vmean, vrs, t):
    for a, b in zip(regs[0::2], regs[1::2]):
        assert b == a + 1 and a % 2 == 0
        pk2("v_pk_add_f32", a, a, vmean, neg_b=True)
        bf16r_pair(a, b, t)
        pk2("v_pk_mul_f32", a, a, vrs)
        bf16r_pair(a, b, t)

hdr = open("interleave_layers__sliding_block_cached__mixer_token_mlp__decode.s.ref").read().split("\n")
for line in hdr:
    if line.startswith("; @launch"):
        A(f"; @launch grid=(256,1,1) block=(320,1,1) lds={LDS_BYTES}")
        break
    A(line)
A('.amdgcn_target "amdgcn-amd-amdhsa--gfx950"')
A(".text")
A(f".globl {KNAME}")
A(".p2align 8")
A(f".type {KNAME},@function")
A(f"{KNAME}:")
A("    s_cmp_ge_u32 s2, 256")
A("    s_cbranch_scc1 L_end")
A("    s_load_dwordx16 s[4:19], s[0:1], 0")
A("    s_load_dwordx8 s[20:27], s[0:1], 64")
A("    s_load_dwordx2 s[28:29], s[0:1], 96")
A(f"    s_and_b32 s{sG}, s2, 7")
A(f"    s_lshr_b32 s{sIDX}, s2, 3")
A(f"    s_lshl_b32 s{sCU}, s{sG}, 5")
A(f"    s_add_u32 s{sCU}, s{sCU}, s{sIDX}")
A(f"    v_and_b32 v{vLANE}, 63, v0")
A(f"    v_lshrrev_b32 v2, 6, v0")
A("    s_nop 0")
A(f"    v_readfirstlane_b32 s{sWAVE}, v2")
A("    s_waitcnt lgkmcnt(0)")
A(f"    s_load_dwordx2 {sp(sTAG)}, {sp(sWS)}, {EPOCH_OFF}")
A(f"    s_cmp_eq_u32 s{sWAVE}, 4")
A("    s_cbranch_scc1 L_helper")
if TS:
    A("    v_mov_b32 v254, 0")
    A("    v_mov_b32 v253, 0")
ts("entry")

vXA = 2; vXR = 6; vXP = 8
A("    ; ---- prologue loads")
A(f"    v_lshlrev_b32 v{vL16}, 4, v{vLANE}")
A(f"    s_lshr_b32 s{sT0}, s{sIDX}, 3            ; kb")
A(f"    s_lshl_b32 s{sT1}, s{sT0}, 9")
A(f"    v_lshlrev_b32 v12, 3, v{vLANE}")
A(f"    v_add_u32 v{vAXR}, s{sT1}, v12")
A(f"    v_and_b32 v13, 7, v{vLANE}")
A(f"    v_lshlrev_b32 v13, 2, v13")
A(f"    s_lshl_b32 s{sT1}, s{sIDX}, 5")
A(f"    v_add_u32 v13, s{sT1}, v13")
A("    s_barrier")
A(f"    global_load_dword v{vXP}, v13, {sp(sX)}")
A(f"    s_lshl_b32 s{sT1}, s{sG}, 24")
A(f"    s_add_u32 s{sT1}, s{sT1}, {(65536-4096)*256}")
A(f"    s_lshl_b32 s{sT2}, s{sIDX}, 15")
A(f"    s_add_u32 s{sT1}, s{sT1}, s{sT2}")
A(f"    s_lshl_b32 s{sT2}, s{sWAVE}, 13")
A(f"    s_add_u32 s{sT1}, s{sT1}, s{sT2}")
A(f"    v_and_b32 v16, 15, v{vLANE}")
A(f"    v_lshlrev_b32 v16, 8, v16")
A(f"    v_lshrrev_b32 v17, 4, v{vLANE}")
A(f"    v_lshlrev_b32 v17, 4, v17")
A(f"    v_add3_u32 v16, v16, v17, s{sT1}")
A(f"    v_add_u32 v17, 4096, v16")
for T in range(2):
    for j in range(4):
        A(f"    global_load_dwordx4 {vr(vK+16*T+4*j,4)}, v{16+T}, {sp(sK)} offset:{j*64} nt")
vVS = 200
A(f"    v_add_u32 v18, s{sT1}, v{vL16}")
A(f"    v_add_u32 v19, 4096, v18")
for i in range(8):
    A(f"    global_load_dwordx4 {vr(vVS+4*i,4)}, v{18+i//4}, {sp(sV)} offset:{(i%4)*1024} nt")
N_AFTER_V = 0

A("    ; ---- persistent offsets")
A(f"    v_and_b32 v23, 4, v{vLANE}")
A(f"    v_cmp_ne_u32 {sp(sM1)}, 0, v23")
A(f"    v_and_b32 v23, 8, v{vLANE}")
A(f"    v_cmp_ne_u32 {sp(sM2)}, 0, v23")
A(f"    v_and_b32 v23, 16, v{vLANE}")
A(f"    v_cmp_ne_u32 {sp(sM3)}, 0, v23")
A(f"    v_and_b32 v23, 32, v{vLANE}")
A(f"    v_cmp_ne_u32 {sp(sM4)}, 0, v23")
A(f"    v_lshlrev_b32 v{vT8}, 3, v{vTID}")
A(f"    s_mul_i32 s{sT0}, s{sIDX}, {CS}")
A(f"    v_add_u32 v{vAO}, s{sT0}, v{vL16}")
A(f"    v_and_b32 v23, 15, v{vLANE}")
A(f"    v_lshlrev_b32 v24, 6, v23")
A(f"    v_lshrrev_b32 v25, 4, v{vLANE}")
A(f"    v_lshlrev_b32 v25, 4, v25")
A(f"    v_add3_u32 v{vAO2}, v24, v25, s{sT0}")
A(f"    s_lshr_b32 s{sT0}, s{sIDX}, 3            ; head")
A(f"    s_lshl_b32 s{sT0}, s{sT0}, 8")
A(f"    s_add_u32 s{sT0}, s{sT0}, {ML_OFF}")
A(f"    v_lshlrev_b32 v23, 3, v23")
A(f"    v_add_u32 v{vAML}, s{sT0}, v23")
A(f"    v_lshrrev_b32 v23, 3, v{vLANE}")
A(f"    v_lshlrev_b32 v24, 11, v23")
A(f"    v_and_b32 v25, 7, v{vLANE}")
A(f"    v_lshlrev_b32 v26, 3, v25")
A(f"    s_lshl_b32 s{sT0}, s{sIDX}, 6")
A(f"    s_add_u32 s{sT0}, s{sT0}, {P_OFF:#x}")
A(f"    v_add3_u32 v{vAP}, v24, v26, s{sT0}")
A(f"    v_and_b32 v23, 3, v23")
A(f"    v_lshlrev_b32 v23, 3, v23")
A(f"    v_lshlrev_b32 v26, 6, v25")
A(f"    s_lshl_b32 s{sT0}, s{sIDX}, 9")
A(f"    s_add_u32 s{sT0}, s{sT0}, {Y_OFF:#x}")
A(f"    v_add_u32 v{vAY}, s{sT0}, v26")
A(f"    v_lshrrev_b32 v23, 3, v{vTID}")
A(f"    s_mov_b32 s{sT0}, {CS}")
A(f"    v_mul_lo_u32 v23, v23, s{sT0}")
A(f"    v_and_b32 v24, 7, v{vTID}")
A(f"    v_lshlrev_b32 v24, 3, v24")
A(f"    s_lshl_b32 s{sT0}, s{sIDX}, 6")
A(f"    v_add3_u32 v{vAPUB}, v23, v24, s{sT0}")

def late_loads():
    A(f"    s_lshl_b32 s{sT1}, s{sG}, 19")
    A(f"    s_lshl_b32 s{sT2}, s{sIDX}, 14")
    A(f"    s_add_u32 s{sT1}, s{sT1}, s{sT2}")
    A(f"    s_lshl_b32 s{sT2}, s{sWAVE}, 8")
    A(f"    s_add_u32 s{sT1}, s{sT1}, s{sT2}")
    A(f"    v_lshrrev_b32 v58, 4, v{vLANE}")
    A(f"    v_lshlrev_b32 v58, 10, v58")
    A(f"    v_and_b32 v59, 15, v{vLANE}")
    A(f"    v_lshlrev_b32 v59, 4, v59")
    A(f"    v_add3_u32 v58, v58, v59, s{sT1}")
    for p in range(4):
        if p: A(f"    v_add_u32 v58, 4096, v58")
        A(f"    global_load_dwordx4 {vr(232+4*p,4)}, v58, {sp(sWO)} nt")
    A(f"    v_lshlrev_b32 v59, 1, v{vTID}")
    for i in range(7):
        A(f"    global_load_ushort v{vW1+i}, v59, {sp(sW1)} offset:{512*i}")
        A(f"    global_load_ushort v{vB1+i}, v59, {sp(sB1)} offset:{512*i}")
        A(f"    global_load_ushort v{vW2+i}, v59, {sp(sW2)} offset:{512*i}")
    A(f"    v_mov_b32 v60, 0")
    A(f"    global_load_ushort v{vB2}, v60, {sp(sB2)}")


def cmb_read4(dst, off):
    A(f"    s_mul_i32 s{sT0}, s{sWAVE}, {HS_C}")
    A(f"    v_lshlrev_b32 v57, 3, v{vLANE}")
    A(f"    v_add_u32 v57, s{sT0}, v57")
    for w in range(4):
        A(f"    ds_read_b64 {vr(dst+2*w,2)}, v57 offset:{off + w*4*HS_C}")

def q_frags():
    A(f"    v_lshrrev_b32 v47, 4, v{vLANE}")
    A(f"    v_and_b32 v48, 15, v{vLANE}")
    A(f"    v_lshrrev_b32 v49, 2, v48")
    A(f"    v_lshl_add_u32 v47, v47, 3, v49")
    A(f"    v_lshlrev_b32 v47, 7, v47")
    A(f"    v_and_b32 v48, 3, v48")
    A(f"    v_lshl_add_u32 v47, v48, 3, v47")
    A(f"    s_lshl_b32 s{sT0}, s{sWAVE}, 5")
    A(f"    v_add_u32 v47, s{sT0}, v47")
    for ks in range(4):
        A(f"    ds_read_b64_tr_b16 {vr(vWQ+4*ks,2)}, v47 offset:{LDS_WQ + ks*4096}")
        A(f"    ds_read_b64_tr_b16 {vr(vWQ+4*ks+2,2)}, v47 offset:{LDS_WQ + ks*4096 + 512}")

def q_phase(L, xa, xr):
    vm, vrs = 40, 41
    ln_stats(xa, vm, vrs, [42, 43, 44, 45])
    ln_apply(xr, vm, vrs, 42)
    A(f"    v_cvt_pk_bf16_f32 v46, v{xr[0]}, v{xr[1]}")
    A(f"    s_lshl_b32 s{sT0}, s{sWAVE}, 8")
    A(f"    v_lshlrev_b32 v47, 2, v{vLANE}")
    A(f"    v_add_u32 v47, s{sT0}, v47")
    A(f"    ds_write_b32 v47, v46 offset:{LDS_HW}")
    A(f"    v_lshrrev_b32 v48, 4, v{vLANE}")
    A(f"    v_lshlrev_b32 v48, 4, v48")
    A(f"    v_add_u32 v48, s{sT0}, v48")
    A("    s_waitcnt lgkmcnt(0)")
    for ks in range(4):
        A(f"    ds_read_b128 {vr(2+4*ks,4)}, v48 offset:{LDS_HW + ks*64}")
    A(f"    s_lshr_b32 s{sT0}, s{sIDX}, 3")
    A(f"    s_lshl_b32 s{sT0}, s{sT0}, 11")
    A(f"    s_and_b32 s{sT1}, s{sIDX}, 7")
    A(f"    s_lshl_b32 s{sT1}, s{sT1}, 8")
    A(f"    s_add_u32 s{sT0}, s{sT0}, s{sT1}")
    A(f"    s_lshl_b32 s{sT1}, s{sWAVE}, 6")
    A(f"    s_add_u32 s{sT0}, s{sT0}, s{sT1}")
    A(f"    v_lshlrev_b32 v49, 2, v{vLANE}")
    A(f"    v_add_u32 v49, s{sT0}, v49")
    A("    s_waitcnt lgkmcnt(0)")
    for ks in range(4):
        A(f"    v_mfma_f32_16x16x32_bf16 v[52:55], {vr(2+4*ks,4)}, {vr(vWQ+4*ks,4)}, {'v[52:55]' if ks else 0}")
    A(f"    v_cmp_gt_u32 vcc, 16, v{vLANE}")
    A(f"    s_and_saveexec_b64 {sp(sEX)}, vcc")
    nops(8)
    store_local([f"global_store_dword v49, v52, {sp(sLOC)}"])
    A(f"    s_mov_b64 exec, {sp(sEX)}")

def q_gather(tagged=False):
    base = 2
    loads = []; regs = []
    if not tagged:
        A(f"    v_add_u32 v60, 4096, v{vT8}")
        for kb in range(4):
            r = base + 2 * kb
            loads.append(f"global_load_dwordx2 {vr(r,2)}, v{vT8 if kb < 2 else 60}, {sp(sLOC)} offset:{(kb%2)*2048} sc1")
            regs += [r, r + 1]
        poll(loads, regs, 40, name="Q", local=True)
        for i in range(1, 4):
            A(f"    v_add_f32 v{base}, v{base}, v{base+2*i}")
            A(f"    v_add_f32 v{base+1}, v{base+1}, v{base+2*i+1}")
    else:
        A(f"    s_lshl_b32 s{sT0}, s{sG}, 14")
        A(f"    s_add_u32 s{sT0}, s{sT0}, {QT_OFF}")
        A(f"    v_lshlrev_b32 v60, 4, v{vTID}")
        A(f"    v_add_u32 v60, s{sT0}, v60")
        for kb in range(1, 4):
            A(f"    v_add_u32 v{60+kb}, {kb*4096}, v60")
        L = newlabel("pollt"); D = newlabel("polltd")
        A(f"    s_mov_b32 s{sTO}, 0x8000")
        ts("  poll begin QT")
        A(f"{L}:")
        for kb in range(4):
            A(f"    global_load_dwordx4 {vr(base+4*kb,4)}, v{60+kb}, {sp(sWS)} sc1")
        A("    s_waitcnt vmcnt(0)")
        for kb in range(4):
            A(f"    v_xor_b32 v{40+kb}, s{sTAG}, v{base+4*kb+2}")
            A(f"    v_xor_b32 v{44+kb}, s{sTAG+1}, v{base+4*kb+3}")
        A(f"    v_or3_b32 v40, v40, v41, v42")
        A(f"    v_or3_b32 v44, v44, v45, v46")
        A(f"    v_or3_b32 v40, v40, v43, v47")
        A(f"    v_or_b32 v40, v40, v44")
        A(f"    v_cmp_ne_u32 vcc, 0, v40")
        A(f"    s_cbranch_vccz {D}")
        A(f"    s_sub_u32 s{sTO}, s{sTO}, 1")
        A(f"    s_cbranch_scc0 {L}")
        A(f"{D}:")
        ts("  poll end QT")
        if "--nodefer" not in sys.argv: late_loads()
        for i in range(1, 4):
            A(f"    v_add_f32 v{base}, v{base}, v{base+4*i}")
            A(f"    v_add_f32 v{base+1}, v{base+1}, v{base+4*i+1}")
    A(f"    v_cvt_pk_bf16_f32 v40, v{base}, v{base+1}")
    A(f"    v_lshlrev_b32 v41, 2, v{vLANE}")
    A(f"    s_mul_i32 s{sT0}, s{sWAVE}, {HS_Q}")
    A(f"    v_add_u32 v41, s{sT0}, v41")
    A(f"    ds_write_b32 v41, v40 offset:{LDS_QS}")
    A("    s_waitcnt lgkmcnt(0)")
    A("    s_barrier")

def attention(L):
    vQ = 2
    A("    ; ---- attention")
    A(f"    v_and_b32 v40, 3, v{vLANE}")
    A(f"    v_mul_u32_u24 v40, {HS_Q}, v40")
    A(f"    v_lshrrev_b32 v41, 4, v{vLANE}")
    A(f"    v_lshl_add_u32 v40, v41, 4, v40")
    for j in range(4):
        A(f"    ds_read_b128 {vr(vQ+4*j,4)}, v40 offset:{LDS_QS + j*64}")
    S = 24
    O = 200
    A(f"    s_mov_b32 s{sC}, {f32bits(128 ** -0.5):#x}")
    A(f"    s_mov_b32 s{sC+1}, {f32bits(1.4426950408889634):#x}")
    A("    s_waitcnt lgkmcnt(0)")
    nops(1)
    for j in range(4):
        for T in range(2):
            A(f"    v_mfma_f32_16x16x32_bf16 {vr(S+4*T,4)}, {vr(vK+16*T+4*j,4)}, {vr(vQ+4*j,4)}, {vr(S+4*T,4) if j else 0}")
    A(f"    v_and_b32 v40, 3, v{vLANE}             ; head")
    A(f"    v_mul_u32_u24 v42, {HS_C}, v40         ; head*HS_C")
    A(f"    v_lshl_add_u32 v42, v41, 4, v42        ; + slab*16")
    A(f"    v_bfe_u32 v40, v{vLANE}, 2, 2          ; dup")
    A(f"    v_lshl_add_u32 v42, v40, 7, v42        ; + dup*128")
    A(f"    s_mul_i32 s{sT0}, s{sWAVE}, {4*HS_C}")
    A(f"    v_add_u32 v42, s{sT0}, v42")
    A(f"    s_lshl_b32 s{sT0}, s{sWAVE}, 3")
    A(f"    v_lshlrev_b32 v43, 5, v{vLANE}         ; head*32")
    A(f"    v_add_u32 v43, s{sT0}, v43")
    nops(3)
    dump(3 + 8 * L, list(range(S, S + 8)))
    for r in range(0, 8, 2):
        bf16r_pair(S + r, S + r + 1, 44)
        A(f"    v_mul_f32 v{S+r}, s{sC}, v{S+r}")
        A(f"    v_mul_f32 v{S+r+1}, s{sC}, v{S+r+1}")
        bf16r_pair(S + r, S + r + 1, 44)
    vm, vl = 34, 35
    A(f"    v_max3_f32 v{vm}, v{S}, v{S+1}, v{S+2}")
    A(f"    v_max3_f32 v{vm}, v{vm}, v{S+3}, v{S+4}")
    A(f"    v_max3_f32 v{vm}, v{vm}, v{S+5}, v{S+6}")
    A(f"    v_max_f32 v{vm}, v{vm}, v{S+7}")
    xreduce([vm], "v_max_f32", [44], bits=(16, 32))
    A(f"    v_mul_f32 v45, s{sC+1}, v{vm}")
    for r in range(8):
        A(f"    v_fma_f32 v{S+r}, v{S+r}, s{sC+1}, -v45")
    for r in range(8):
        A(f"    v_exp_f32 v{S+r}, v{S+r}")
    A("    s_nop 0")
    P = 36
    for i in range(4):
        A(f"    v_cvt_pk_bf16_f32 v{P+i}, v{S+2*i}, v{S+2*i+1}")
    A(f"    v_add_f32 v{vl}, v{S}, v{S+1}")
    A(f"    v_add_f32 v{vl}, v{vl}, v{S+2}")
    for T in range(8):
        A(f"    v_mfma_f32_16x16x32_bf16 {vr(O+4*T,4)}, {vr(vVT+4*T,4)}, {vr(P,4)}, 0")
    for r in range(3, 8):
        A(f"    v_add_f32 v{vl}, v{vl}, v{S+r}")
    xreduce([vl], "v_add_f32", [44], bits=(16, 32))
    nops(4)
    for j in range(2):
        for r in range(4):
            A(f"    v_cndmask_b32 v{2+4*j+r}, v{O+4*j+r}, v{O+8+4*j+r}, {sp(sM1)}")
            A(f"    v_cndmask_b32 v{10+4*j+r}, v{O+16+4*j+r}, v{O+24+4*j+r}, {sp(sM1)}")
    for k in range(8):
        A(f"    v_cndmask_b32 v{2+k}, v{2+k}, v{10+k}, {sp(sM2)}")
    A(f"    ds_write_b128 v42, v[2:5] offset:{LDS_CMB}")
    A(f"    ds_write_b128 v42, v[6:9] offset:{LDS_CMB + 64}")
    A(f"    v_cmp_gt_u32 vcc, 4, v{vLANE}")
    A(f"    s_and_saveexec_b64 {sp(sEX)}, vcc")
    A(f"    ds_write_b64 v43, {vr(vm,2)} offset:{LDS_MLW}")
    A(f"    s_mov_b64 exec, {sp(sEX)}")
    A("    s_waitcnt lgkmcnt(0)")
    A("    s_barrier")
    if L == 0:
        ts("B1")
        A(f"    v_mov_b32 v58, {LDS_MODE}")
        A(f"    ds_read_b32 v58, v58")
    cmb_read4(2, LDS_CMB)
    A(f"    s_lshl_b32 s{sT0}, s{sWAVE}, 5")
    A(f"    v_mov_b32 v40, s{sT0}")
    A(f"    ds_read_b128 {vr(12,4)}, v40 offset:{LDS_MLW}")
    A(f"    ds_read_b128 {vr(16,4)}, v40 offset:{LDS_MLW+16}")
    A("    s_waitcnt lgkmcnt(0)")
    if L == 0:
        A(f"    v_readfirstlane_b32 s{sMODE}, v58")
    M, Lr = 20, 21
    A(f"    v_max3_f32 v{M}, v12, v14, v16")
    A(f"    v_max_f32 v{M}, v{M}, v18")
    for w in range(4):
        A(f"    v_sub_f32 v{12+2*w}, v{12+2*w}, v{M}")
    for w in range(4):
        A(f"    v_mul_f32 v{12+2*w}, s{sC+1}, v{12+2*w}")
    for w in range(4):
        A(f"    v_exp_f32 v{12+2*w}, v{12+2*w}")
    A("    s_nop 0")
    A(f"    v_mul_f32 v{Lr}, v12, v13")
    A(f"    v_mul_f32 v2, v12, v2")
    A(f"    v_mul_f32 v3, v12, v3")
    for w in range(1, 4):
        A(f"    v_fmac_f32 v{Lr}, v{12+2*w}, v{13+2*w}")
        A(f"    v_fmac_f32 v2, v{12+2*w}, v{2+2*w}")
        A(f"    v_fmac_f32 v3, v{12+2*w}, v{3+2*w}")
    A(f"    s_lshl_b32 s{sT0}, s{sWAVE}, 8")
    A(f"    s_lshl_b32 s{sT1}, s{sIDX}, 3")
    A(f"    s_add_u32 s{sT0}, s{sT0}, s{sT1}")
    A(f"    s_add_u32 s{sT0}, s{sT0}, {ML_OFF}")
    A(f"    v_mov_b32 v41, s{sT0}")
    A(f"    v_add_u32 v40, {O_OFF}, v{vAPUB}")
    store_local([f"global_store_dwordx2 v40, v[2:3], {sp(sLOC)}"])
    A(f"    v_cmp_eq_u32 vcc, 0, v{vLANE}")
    A(f"    s_and_saveexec_b64 {sp(sEX)}, vcc")
    store_local([f"global_store_dwordx2 v41, {vr(M,2)}, {sp(sLOC)}"])
    A(f"    s_mov_b64 exec, {sp(sEX)}")

def o_combine_wo(L):
    A("    ; ---- o combine")
    o0, o1, ml0, ml1 = 2, 6, 10, 12
    A(f"    v_add_u32 v40, {O_OFF}, v{vAO2}")
    loads = [f"global_load_dwordx4 {vr(o0,4)}, v40, {sp(sLOC)} sc1",
             f"global_load_dwordx4 {vr(o1,4)}, v40, {sp(sLOC)} offset:1024 sc1",
             f"global_load_dwordx2 {vr(ml0,2)}, v{vAML}, {sp(sLOC)} sc1",
             f"global_load_dwordx2 {vr(ml1,2)}, v{vAML}, {sp(sLOC)} offset:128 sc1"]
    poll(loads, list(range(2, 14)), 41, name="O", local=True)
    if L == 0:
        A(f"    s_lshl_b32 s{sT0}, s{sWAVE}, 12")
        A(f"    v_add_u32 v46, s{sT0}, v{vL16}")
        for p in range(4):
            A(f"    ds_write_b128 v46, {vr(232+4*p,4)} offset:{LDS_WO + p*1024}")
        A(f"    v_lshrrev_b32 v47, 4, v{vLANE}")
        A(f"    v_and_b32 v48, 15, v{vLANE}")
        A(f"    v_lshrrev_b32 v49, 2, v48")
        A(f"    v_lshl_add_u32 v47, v47, 2, v49")
        A(f"    v_lshlrev_b32 v47, 8, v47")
        A(f"    v_and_b32 v48, 3, v48")
        A(f"    v_lshl_add_u32 v47, v48, 3, v47")
        A(f"    v_add_u32 v47, s{sT0}, v47")
    M = 14
    A(f"    v_max_f32 v{M}, v{ml0}, v{ml1}")
    xreduce([M], "v_max_f32", [40], bits=(1, 2, 4, 8))
    if L == 0:
        A("    s_waitcnt lgkmcnt(0)")
        for T in range(8):
            A(f"    ds_read_b64_tr_b16 {vr(vWO+2*T,2)}, v47 offset:{LDS_WO + T*32}")
    A(f"    v_sub_f32 v{ml0}, v{ml0}, v{M}")
    A(f"    v_sub_f32 v{ml1}, v{ml1}, v{M}")
    A(f"    v_mul_f32 v{ml0}, s{sC+1}, v{ml0}")
    A(f"    v_mul_f32 v{ml1}, s{sC+1}, v{ml1}")
    A(f"    v_exp_f32 v{ml0}, v{ml0}")
    A(f"    v_exp_f32 v{ml1}, v{ml1}")
    A("    s_nop 0")
    Lr = 15
    A(f"    v_mul_f32 v{Lr}, v{ml0}, v{ml0+1}")
    A(f"    v_fmac_f32 v{Lr}, v{ml1}, v{ml1+1}")
    for e in range(4):
        A(f"    v_mul_f32 v{o0+e}, v{ml0}, v{o0+e}")
        A(f"    v_fmac_f32 v{o0+e}, v{ml1}, v{o1+e}")
    xreduce([Lr, o0, o0 + 1, o0 + 2, o0 + 3], "v_add_f32", [40, 41, 42, 43, 44], bits=(1, 2, 4, 8))
    A(f"    v_rcp_f32 v{Lr}, v{Lr}")
    A("    s_nop 0")
    for e in range(4):
        A(f"    v_mul_f32 v{o0+e}, v{o0+e}, v{Lr}")
    A(f"    v_cvt_pk_bf16_f32 v16, v{o0}, v{o0+1}")
    A(f"    v_cvt_pk_bf16_f32 v17, v{o0+2}, v{o0+3}")
    if DEBUG_DUMP:
        unpack(6, 7, 16); unpack(8, 9, 17)
        dump(4 + 8 * L, [6, 7, 8, 9])
    A("    ; ---- wo via MFMA")
    A(f"    s_mul_i32 s{sT0}, s{sWAVE}, {8*CS}")
    A(f"    s_lshl_b32 s{sT1}, s{sIDX}, 6")
    A(f"    s_add_u32 s{sT0}, s{sT0}, s{sT1}")
    A(f"    s_add_u32 s{sT0}, s{sT0}, {R_OFF}")
    A(f"    v_and_b32 v50, 15, v{vLANE}")
    A(f"    v_lshlrev_b32 v50, 2, v50")
    A(f"    v_lshrrev_b32 v51, 4, v{vLANE}")
    A(f"    v_mul_u32_u24 v51, {2*CS}, v51")
    A(f"    v_add3_u32 v50, v50, v51, s{sT0}")
    if L == 0:
        A("    s_waitcnt lgkmcnt(0)")
    D = 200
    for T in range(8):
        A(f"    v_mfma_f32_16x16x16_bf16 {vr(D+4*T,4)}, v[16:17], {vr(vWO+2*T,2)}, 0")
    nops(8)
    for j in range(2):
        A(f"    v_cndmask_b32 v{2+j}, v{D+4*j}, v{D+8+4*j}, {sp(sM3)}")
        A(f"    v_cndmask_b32 v{4+j}, v{D+16+4*j}, v{D+24+4*j}, {sp(sM3)}")
    for j in range(2):
        A(f"    v_cndmask_b32 v{2+j}, v{2+j}, v{4+j}, {sp(sM4)}")
    store_local([f"global_store_dword v50, v2, {sp(sLOC)}", f"global_store_dword v50, v3, {sp(sLOC)} offset:{CS}"])

def x1_chain(L):
    Lskip = newlabel("w0")
    A(f"    s_cmp_eq_u32 s{sWAVE}, 0")
    A(f"    s_cbranch_scc0 {Lskip}")
    r0, r1 = 2, 6
    A(f"    v_add_u32 v40, {R_OFF}, v{vAO}")
    loads = [f"global_load_dwordx4 {vr(r0,4)}, v40, {sp(sLOC)} sc1",
             f"global_load_dwordx4 {vr(r1,4)}, v40, {sp(sLOC)} offset:1024 sc1"]
    poll(loads, list(range(2, 10)), 41, name="R", local=True)
    for e in range(4):
        A(f"    v_add_f32 v{r0+e}, v{r0+e}, v{r1+e}")
    xreduce([r0, r0 + 1, r0 + 2, r0 + 3], "v_add_f32", [40, 41, 42, 43], bits=(4, 8, 16, 32))
    A(f"    s_lshl_b32 s{sT0}, s{sG}, 11")
    A(f"    s_lshl_b32 s{sT1}, s{sIDX}, 6")
    A(f"    s_add_u32 s{sT0}, s{sT0}, s{sT1}")
    A(f"    s_add_u32 s{sT0}, s{sT0}, {P_OFF:#x}")
    A(f"    v_add_u32 v40, s{sT0}, v{vL16}")
    A(f"    v_cmp_gt_u32 vcc, 4, v{vLANE}")
    A(f"    s_and_saveexec_b64 {sp(sEX)}, vcc")
    A(f"    global_store_dwordx4 v40, {vr(r0,4)}, {sp(sGL)} sc1")
    A(f"    s_mov_b64 exec, {sp(sEX)}")
    loads = [f"global_load_dwordx2 v[2:3], v{vAP}, {sp(sGL)} sc1"]
    extra = None
    if L == 0:
        A(f"    v_and_b32 v24, 7, v{vLANE}")
        A(f"    v_lshlrev_b32 v24, 2, v24")
        loads.append(f"global_load_dword v25, v24, {sp(sDBG)} offset:192 sc1")
        def extra():
            A(f"    v_cmp_eq_u32 {sp(sCM)}, 0, v25")
            A(f"    s_or_b64 vcc, vcc, {sp(sCM)}")
    poll(loads, [2, 3], 40, extra, name="P")
    xreduce([2, 3], "v_add_f32", [40, 41], bits=(8, 16, 32))
    bf16r_pair(2, 3, 40)
    A(f"    v_add_f32 v{vXM}, v{vXM}, v2")
    A(f"    v_add_f32 v{vXM+1}, v{vXM+1}, v3")
    bf16r_pair(vXM, vXM + 1, 40)
    xl_publish(XL_OFF)
    xl_fetch(XL_OFF, "XL")
    A(f"{Lskip}:")
    A("    s_barrier")

def xl_publish(off):
    A(f"    s_lshl_b32 s{sT0}, s{sIDX}, 6")
    A(f"    s_add_u32 s{sT0}, s{sT0}, {off}")
    A(f"    v_lshlrev_b32 v40, 3, v{vLANE}")
    A(f"    v_add_u32 v40, s{sT0}, v40")
    A(f"    v_cmp_gt_u32 vcc, 8, v{vLANE}")
    A(f"    s_and_saveexec_b64 {sp(sEX)}, vcc")
    store_local([f"global_store_dwordx2 v40, {vr(vXM,2)}, {sp(sLOC)}"])
    A(f"    s_mov_b64 exec, {sp(sEX)}")

def xl_fetch(off, name):
    A(f"    v_lshlrev_b32 v41, 5, v{vLANE}")
    A(f"    v_add_u32 v40, {off}, v41")
    poll([f"global_load_dwordx4 v[2:5], v40, {sp(sLOC)} sc1",
          f"global_load_dwordx4 v[6:9], v40, {sp(sLOC)} offset:16 sc1"], list(range(2, 10)), 42, name=name, local=True)
    A(f"    ds_write_b128 v41, v[2:5] offset:{LDS_XS}")
    A(f"    ds_write_b128 v41, v[6:9] offset:{LDS_XS+16}")
    A("    s_waitcnt lgkmcnt(0)")

def b_phase(L):
    A("    ; ---- mixer MLP")
    xa = list(range(2, 10))
    ha, hb = 10, 11
    xa_, xb_ = 12, 13
    A(f"    v_lshlrev_b32 v40, 5, v{vLANE}")
    A(f"    s_lshl_b32 s{sT0}, s2, 3")
    A(f"    v_mov_b32 v41, s{sT0}")
    A(f"    ds_read_b128 v[2:5], v40 offset:{LDS_XS}")
    A(f"    ds_read_b128 v[6:9], v40 offset:{LDS_XS+16}")
    A(f"    ds_read_b64 v[10:11], v41 offset:{LDS_XS}")
    A("    s_waitcnt lgkmcnt(0)")
    dump(5 + 8 * L, xa)
    if L == 0:
        for i in range(7):
            A(f"    v_lshlrev_b32 v{vW1+i}, 16, v{vW1+i}")
            A(f"    v_lshlrev_b32 v{vB1+i}, 16, v{vB1+i}")
            A(f"    v_lshlrev_b32 v{vW2+i}, 16, v{vW2+i}")
        A(f"    v_lshlrev_b32 v{vB2}, 16, v{vB2}")
    A(f"    v_mov_b32 v{xa_}, v{ha}")
    A(f"    v_mov_b32 v{xb_}, v{hb}")
    vm, vrs = 14, 15
    ln_stats(xa, vm, vrs, [42, 43, 44, 45])
    ln_apply(xa + [ha, hb], vm, vrs, 42)
    ln_stats(xa, vm, vrs, [42, 43, 44, 45])
    ln_apply([ha, hb], vm, vrs, 42)
    dump(6 + 8 * L, [ha, hb])
    c1 = -2.0 * 0.7978845608028654 * 1.4426950408889634
    A(f"    s_mov_b32 s{sC+2}, {f32bits(c1):#x}")
    A(f"    s_mov_b32 s{sC+3}, {f32bits(c1*0.044715):#x}")
    acca, accb = 16, 17
    A(f"    v_mov_b32 v{acca}, 0")
    A(f"    v_mov_b32 v{accb}, 0")
    A(f"    v_mov_b32 v30, s{sC+2}")
    A(f"    v_mov_b32 v31, s{sC+3}")
    A(f"    v_mov_b32 v32, 1.0")
    U = 200
    Z = 216
    for i in range(7): pk2("v_pk_mul_f32", U + 2 * i, ha, vW1 + i)
    for i in range(7): bf16r_pair(U + 2 * i, U + 2 * i + 1, 24)
    for i in range(7): pk2("v_pk_add_f32", U + 2 * i, U + 2 * i, vB1 + i)
    for i in range(7): bf16r_pair(U + 2 * i, U + 2 * i + 1, 24)
    for i in range(7): A(f"    v_pk_mul_f32 {vr(Z+2*i,2)}, {vr(U+2*i,2)}, {vr(U+2*i,2)}")
    for i in range(7): A(f"    v_pk_fma_f32 {vr(Z+2*i,2)}, {vr(Z+2*i,2)}, v[30:31], v[30:31] op_sel:[0,1,0] op_sel_hi:[1,1,0]")
    for i in range(7): A(f"    v_pk_mul_f32 {vr(Z+2*i,2)}, {vr(Z+2*i,2)}, {vr(U+2*i,2)}")
    for k in range(14): A(f"    v_exp_f32 v{Z+k}, v{Z+k}")
    for i in range(7): pk2("v_pk_add_f32", Z + 2 * i, Z + 2 * i, 32)
    for k in range(14): A(f"    v_rcp_f32 v{Z+k}, v{Z+k}")
    for i in range(7): A(f"    v_pk_mul_f32 {vr(U+2*i,2)}, {vr(U+2*i,2)}, {vr(Z+2*i,2)}")
    for i in range(7): bf16r_pair(U + 2 * i, U + 2 * i + 1, 24)
    for i in range(7):
        t, sel = bc(vW2 + i)
        A(f"    v_pk_fma_f32 {vr(acca,2)}, {vr(U+2*i,2)}, {t}, {vr(acca,2)} op_sel:[0,{sel},0] op_sel_hi:[1,{sel},1]")
    xreduce([acca, accb], "v_add_f32", [40, 41])
    return acca, accb, xa_, xb_

def y_finish(acca, xa_, xb_):
    A(f"    s_lshl_b32 s{sT0}, s{sWAVE}, 3")
    A(f"    v_mov_b32 v40, s{sT0}")
    A(f"    ds_write_b64 v40, {vr(acca,2)} offset:{LDS_YS}")
    A("    s_waitcnt lgkmcnt(0)")
    A("    s_barrier")

def y_sum(xa_, xb_):
    A(f"    v_mov_b32 v40, 0")
    A(f"    ds_read_b128 {vr(2,4)}, v40 offset:{LDS_YS}")
    A(f"    ds_read_b128 {vr(6,4)}, v40 offset:{LDS_YS+16}")
    A("    s_waitcnt lgkmcnt(0)")
    for w in range(1, 4):
        A(f"    v_add_f32 v2, v2, v{2+2*w}")
        A(f"    v_add_f32 v3, v3, v{3+2*w}")
    bf16r_pair(2, 3, 40)
    A(f"    v_add_f32 v2, v2, v{vB2}")
    A(f"    v_add_f32 v3, v3, v{vB2}")
    bf16r_pair(2, 3, 40)
    A(f"    v_add_f32 v2, v{xa_}, v2")
    A(f"    v_add_f32 v3, v{xb_}, v3")

def x2_chain(acca, xa_, xb_):
    y_finish(acca, xa_, xb_)
    Lskip = newlabel("w0")
    A(f"    s_cmp_eq_u32 s{sWAVE}, 0")
    A(f"    s_cbranch_scc0 {Lskip}")
    y_sum(xa_, xb_)
    bf16r_pair(2, 3, 40)
    A(f"    s_lshl_b32 s{sT0}, s2, 6")
    A(f"    s_add_u32 s{sT0}, s{sT0}, {Y_OFF:#x}")
    A(f"    v_mov_b32 v40, s{sT0}")
    A(f"    v_cmp_eq_u32 vcc, 0, v{vLANE}")
    A(f"    s_and_saveexec_b64 {sp(sEX)}, vcc")
    A(f"    global_store_dwordx2 v40, v[2:3], {sp(sGL)} sc1")
    A(f"    s_mov_b64 exec, {sp(sEX)}")
    poll([f"global_load_dwordx2 {vr(vXM,2)}, v{vAY}, {sp(sGL)} sc1"], [vXM, vXM + 1], 40, name="Y")
    xl_publish(XL2_OFF)
    xl_fetch(XL2_OFF, "XL2")
    A(f"{Lskip}:")
    A("    s_barrier")

ts("start")
set_layer(0)
xa = list(range(24, 32)); xr = list(range(32, 36))
A("    ; ---- V transpose")
A(f"    s_waitcnt vmcnt({N_AFTER_V})")
ts("V arrived")
A(f"    s_lshl_b32 s{sT0}, s{sWAVE}, 13")
A(f"    v_add_u32 v40, s{sT0}, v{vL16}")
for i in range(8):
    A(f"    ds_write_b128 v40, {vr(vVS+4*i,4)} offset:{LDS_V + i*1024}")
A(f"    v_lshrrev_b32 v41, 4, v{vLANE}")
A(f"    v_and_b32 v42, 15, v{vLANE}")
A(f"    v_lshrrev_b32 v43, 2, v42")
A(f"    v_lshl_add_u32 v43, v41, 2, v43")
A(f"    v_lshlrev_b32 v43, 8, v43")
A(f"    v_and_b32 v42, 3, v42")
A(f"    v_lshl_add_u32 v43, v42, 3, v43")
A(f"    v_add_u32 v43, s{sT0}, v43")
A("    s_waitcnt lgkmcnt(0)")
for T in range(8):
    A(f"    ds_read_b64_tr_b16 {vr(vVT+4*T,2)}, v43 offset:{LDS_V + T*32}")
    A(f"    ds_read_b64_tr_b16 {vr(vVT+4*T+2,2)}, v43 offset:{LDS_V + T*32 + 4096}")
unpack(vXM, vXM + 1, vXP)
A("    s_waitcnt lgkmcnt(0)")
A(f"    s_add_u32 s{sTAG}, s{sTAG}, 1")
A(f"    s_addc_u32 s{sTAG+1}, s{sTAG+1}, 0")
ts("all loads+transpose")
late_loads()
A("    s_barrier")
ts("q gathered")
attention(0)
ts("attn")
o_combine_wo(0)
ts("o+wo")
x1_chain(0)
ts("x1 chain")
acca, accb, xa_, xb_ = b_phase(0)
ts("B")
x2_chain(acca, xa_, xb_)
ts("x2 chain")
q_frags()
A(f"    v_lshlrev_b32 v40, 5, v{vLANE}")
A(f"    ds_read_b128 v[24:27], v40 offset:{LDS_XS}")
A(f"    ds_read_b128 v[28:31], v40 offset:{LDS_XS+16}")
A(f"    ds_read_b64 v[32:33], v{vAXR} offset:{LDS_XS}")
A("    s_waitcnt lgkmcnt(0)")
dump(7, xa)
set_layer(1)
q_phase(1, xa, [32, 33])
ts("q2 pub")
q_gather()
ts("q2 gathered")
attention(1)
ts("attn2")
o_combine_wo(1)
ts("o+wo 2")
x1_chain(1)
ts("x1 chain 2")
acca, accb, xa_, xb_ = b_phase(1)
ts("B2")
ts_flush()
diag_flush()
A("    ; ---- final")
y_finish(acca, xa_, xb_)
A(f"    s_cmp_eq_u32 s{sWAVE}, 0")
A("    s_cbranch_scc0 L_end")
y_sum(xa_, xb_)
A(f"    v_cvt_pk_bf16_f32 v4, v2, v3")
A(f"    s_lshl_b32 s{sT0}, s2, 2")
A(f"    v_mov_b32 v40, s{sT0}")
A(f"    v_cmp_eq_u32 vcc, 0, v{vLANE}")
A(f"    s_and_saveexec_b64 {sp(sEX)}, vcc")
A(f"    global_store_dword v40, v4, {sp(sOUT)}")
A(f"    s_cmp_eq_u32 s2, 0")
A(f"    s_cbranch_scc0 L_noep")
A(f"    v_mov_b32 v40, {EPOCH_OFF}")
A(f"    v_mov_b32 v42, s{sTAG}")
A(f"    v_mov_b32 v43, s{sTAG+1}")
A(f"    global_store_dwordx2 v40, v[42:43], {sp(sWS)} sc1")
A("L_noep:")
A("    s_waitcnt vmcnt(0)")
A("    s_branch L_end")

A("L_helper:")
if TS:
    A("    v_mov_b32 v254, 0")
    A("    v_mov_b32 v253, 0")
hts("h entry")
hWQ = 64
A("    s_setprio 3")
A(f"    v_lshlrev_b32 v2, 4, v{vLANE}")
A(f"    global_load_dwordx4 v[24:27], v2, {sp(sX)}")
A(f"    s_lshr_b32 s{sT0}, s{sIDX}, 3            ; kb")
A(f"    s_lshl_b32 s{sT1}, s{sT0}, 8             ; kb*128*2")
A(f"    v_lshlrev_b32 v8, 2, v{vLANE}")
A(f"    v_add_u32 v9, s{sT1}, v8")
A(f"    global_load_dword v28, v9, {sp(sX)}")
A(f"    s_lshl_b32 s{sT1}, s{sT0}, 20")
A(f"    s_lshl_b32 s{sT2}, s{sG}, 10")
A(f"    s_add_u32 s{sT1}, s{sT1}, s{sT2}")
A(f"    s_and_b32 s{sT2}, s{sIDX}, 7")
A(f"    s_lshl_b32 s{sT2}, s{sT2}, 7")
A(f"    s_add_u32 s{sT1}, s{sT1}, s{sT2}")
A(f"    v_lshrrev_b32 v3, 3, v{vLANE}")
A(f"    v_lshlrev_b32 v9, 13, v3")
A(f"    v_and_b32 v10, 7, v{vLANE}")
A(f"    v_lshlrev_b32 v11, 4, v10")
A(f"    v_add3_u32 v9, v9, v11, s{sT1}")
for i in range(16):
    if i: A(f"    v_add_u32 v9, 0x10000, v9")
    A(f"    global_load_dwordx4 {vr(hWQ+4*i,4)}, v9, {sp(sWQ)} nt      ; rows 8i + (l>>3)")
A("    s_barrier")
hts("h issued")
A(f"    s_waitcnt vmcnt(16)")
hts("h x arrived")
hxa = list(range(40, 48))
for i in range(4): unpack(hxa[2 * i], hxa[2 * i + 1], 24 + i)
unpack(30, 31, 28)
ln_stats(hxa, 48, 49, [50, 51, 52, 53])
ln_apply([30, 31], 48, 49, 50)
A(f"    v_cvt_pk_bf16_f32 v32, v30, v31")
A(f"    ds_write_b32 v8, v32 offset:{LDS_HS}")
A("    s_waitcnt lgkmcnt(0)")
A(f"    s_add_u32 s{sTAG}, s{sTAG}, 1")
A(f"    s_addc_u32 s{sTAG+1}, s{sTAG+1}, 0")
A(f"    v_lshrrev_b32 v12, 4, v{vLANE}           ; slab")
A(f"    v_lshlrev_b32 v13, 4, v12")
hA = 130
for ks in range(4):
    A(f"    ds_read_b128 {vr(hA+4*ks,4)}, v13 offset:{LDS_HS + ks*64}")
for i in range(16):
    A(f"    s_waitcnt vmcnt({15 - i})")
    A(f"    ds_write_b128 v2, {vr(hWQ+4*i,4)} offset:{LDS_WQ + i*1024}")
A(f"    v_and_b32 v14, 15, v{vLANE}")
A(f"    v_lshrrev_b32 v15, 2, v14")
A(f"    v_lshl_add_u32 v15, v12, 3, v15")
A(f"    v_lshlrev_b32 v15, 7, v15")
A(f"    v_and_b32 v14, 3, v14")
A(f"    v_lshl_add_u32 v15, v14, 3, v15")
A("    s_waitcnt lgkmcnt(0)")
hB = 64
hD = 146
def h_reads(j):
    for ks in range(4):
        r = hB + 16 * j + 4 * ks
        A(f"    ds_read_b64_tr_b16 {vr(r,2)}, v15 offset:{LDS_WQ + ks*4096 + j*32}")
        A(f"    ds_read_b64_tr_b16 {vr(r+2,2)}, v15 offset:{LDS_WQ + ks*4096 + j*32 + 512}")
def h_mfma(j):
    for ks in range(4):
        c = "0" if ks == 0 else vr(hD + 4 * j, 4)
        A(f"    v_mfma_f32_16x16x32_bf16 {vr(hD+4*j,4)}, {vr(hA+4*ks,4)}, {vr(hB+16*j+4*ks,4)}, {c}")
h_reads(0); h_reads(1)
A("    s_waitcnt lgkmcnt(8)"); h_mfma(0); h_reads(2)
A("    s_waitcnt lgkmcnt(8)"); h_mfma(1); h_reads(3)
A("    s_waitcnt lgkmcnt(8)"); h_mfma(2)
A("    s_waitcnt lgkmcnt(0)"); h_mfma(3)
hts("h fma done")
A(f"    s_lshl_b32 s{sT0}, s{sG}, 14")
A(f"    s_lshr_b32 s{sT1}, s{sIDX}, 3")
A(f"    s_lshl_b32 s{sT1}, s{sT1}, 12")
A(f"    s_add_u32 s{sT0}, s{sT0}, s{sT1}")
A(f"    s_and_b32 s{sT1}, s{sIDX}, 7")
A(f"    s_lshl_b32 s{sT1}, s{sT1}, 9")
A(f"    s_add_u32 s{sT0}, s{sT0}, s{sT1}")
A(f"    s_add_u32 s{sT0}, s{sT0}, {QT_OFF}")
A(f"    v_lshlrev_b32 v17, 3, v{vLANE}")
A(f"    v_add_u32 v17, s{sT0}, v17")
A(f"    v_and_b32 v18, 0x31, v{vLANE}")
nops(6)
for j in range(4):
    A(f"    v_mov_b32_dpp v{hD+4*j+1}, v{hD+4*j} quad_perm:[1,1,3,3] row_mask:0xf bank_mask:0xf")
    A(f"    v_mov_b32 v{hD+4*j+2}, s{sTAG}")
    A(f"    v_mov_b32 v{hD+4*j+3}, s{sTAG+1}")
A(f"    v_cmp_eq_u32 vcc, 0, v18")
A(f"    s_and_saveexec_b64 {sp(sEX)}, vcc")
for j in range(4):
    A(f"    global_store_dwordx4 v17, {vr(hD+4*j,4)}, {sp(sWS)} offset:{j*128} sc1")
A(f"    s_mov_b64 exec, {sp(sEX)}")
hts("h q published")
A("    s_setprio 0")
for r in range(4, 8): A(f"    v_mov_b32 v{r}, -1")
def clear_local(flag):
    for L in range(2):
        set_layer(L)
        A(f"    s_mul_i32 s{sT0}, s{sIDX}, {CLR_PER_CU}")
        A(f"    v_add_u32 v36, s{sT0}, v2")
        for i in range(CLR_PER_CU // 1024):
            if i and i % 4 == 0:
                A(f"    v_add_u32 v36, 4096, v36")
            A(f"    global_store_dwordx4 v36, v[4:7], {sp(sLOC)} offset:{(i%4)*1024}{flag}")
clear_local(" sc1")
A(f"    s_lshl_b32 s{sT0}, s{sG}, 11")
A(f"    s_lshl_b32 s{sT1}, s{sIDX}, 6")
A(f"    s_add_u32 s{sT0}, s{sT0}, s{sT1}")
A(f"    s_add_u32 s{sT0}, s{sT0}, {LAYER_BASE + P_OFF:#x}")
A(f"    v_add_u32 v13, s{sT0}, v2")
A(f"    v_add_u32 v14, {LAYER_STRIDE:#x}, v13")
A(f"    s_lshl_b32 s{sT0}, s2, 6")
A(f"    s_add_u32 s{sT0}, s{sT0}, {LAYER_BASE + Y_OFF:#x}")
A(f"    v_add_u32 v15, s{sT0}, v2")
A(f"    v_cmp_gt_u32 vcc, 4, v{vLANE}")
A(f"    s_and_saveexec_b64 {sp(sEX)}, vcc")
A(f"    global_store_dwordx4 v13, v[4:7], {sp(sWS)} sc1")
A(f"    global_store_dwordx4 v14, v[4:7], {sp(sWS)} sc1")
A(f"    global_store_dwordx4 v15, v[4:7], {sp(sWS)} sc1")
A(f"    s_mov_b64 exec, {sp(sEX)}")
A(f"    v_mov_b32 v12, s{sTAG}")
A(f"    v_mov_b32 v13, s{sTAG+1}")
A(f"    s_lshl_b32 s{sT0}, s{sG}, 14")
A(f"    s_add_u32 s{sT0}, s{sT0}, {QT_OFF}")
A(f"    v_add_u32 v40, s{sT0}, v2")
for kb in range(1, 4):
    A(f"    v_add_u32 v{40+kb}, {kb*4096}, v40")
A(f"    s_getreg_b32 s{sT2}, hwreg(HW_REG_XCC_ID)")
A(f"    s_and_b32 s{sT2}, s{sT2}, 0xffff")
A(f"    v_mov_b32 v14, s{sT2}")
A(f"    v_mov_b32 v15, 0")
A(f"    s_lshl_b32 s{sT0}, s{sCU}, 6")
A(f"    v_mov_b32 v16, s{sT0}")
A(f"    s_lshl_b32 s{sT1}, s{sG}, 11")
A(f"    v_and_b32 v17, 31, v{vLANE}")
A(f"    v_lshlrev_b32 v17, 6, v17")
A(f"    v_add_u32 v17, s{sT1}, v17")
A(f"    s_mov_b32 s{sTO}, 0x8000")
A(f"    s_mov_b32 s{sT3}, 0")
A("L_h_qt:")
for kb in range(4):
    for m in range(4):
        A(f"    global_load_dwordx4 {vr(64+16*kb+4*m,4)}, v{40+kb}, {sp(sWS)} offset:{m*1024} sc1")
A("    s_waitcnt vmcnt(0)")
A(f"    s_cmp_eq_u32 s{sT3}, 0")
A("    s_cbranch_scc0 L_h_qt_nf")
A(f"    s_mov_b32 s{sT3}, 1")
A(f"    v_cmp_eq_u32 vcc, 0, v{vLANE}")
A(f"    s_and_saveexec_b64 {sp(sEX)}, vcc")
A(f"    global_store_dwordx4 v16, v[12:15], {sp(sWS)} sc1")
A(f"    s_mov_b64 exec, {sp(sEX)}")
A("L_h_qt_nf:")
A(f"    v_mov_b32 v44, 0")
for i in range(16):
    A(f"    v_xor_b32 v45, v12, v{64+4*i+2}")
    A(f"    v_xor_b32 v46, v13, v{64+4*i+3}")
    A(f"    v_or3_b32 v44, v44, v45, v46")
A(f"    v_cmp_ne_u32 vcc, 0, v44")
A("    s_cbranch_vccz L_h_qtd")
A(f"    s_sub_u32 s{sTO}, s{sTO}, 1")
A("    s_cbranch_scc0 L_h_qt")
A("L_h_qtd:")
for m in range(4):
    for kb in range(1, 4):
        A(f"    v_add_f32 v{64+4*m}, v{64+4*m}, v{64+16*kb+4*m}")
        A(f"    v_add_f32 v{65+4*m}, v{65+4*m}, v{65+16*kb+4*m}")
    A(f"    v_cvt_pk_bf16_f32 v{44+m}, v{64+4*m}, v{65+4*m}")
    A(f"    ds_write_b32 v8, v{44+m} offset:{LDS_QS + m*HS_Q}")
hts("h q gathered")
A("    s_waitcnt vmcnt(0) lgkmcnt(0)")
hts("h clears acked")
def flag_round(off, lab, barrier=False):
    A(f"    v_add_u32 v19, {off}, v17")
    if barrier:
        A("    s_barrier")
    A(f"    s_mov_b32 s{sTO}, 0x8000")
    A(f"{lab}:")
    A(f"    global_load_dwordx4 v[20:23], v19, {sp(sWS)} sc1")
    A("    s_waitcnt vmcnt(0)")
    A(f"    v_cmp_ne_u32 vcc, v20, v12")
    A(f"    v_cmp_ne_u32 {sp(sCM)}, v21, v13")
    A(f"    s_or_b64 vcc, vcc, {sp(sCM)}")
    A(f"    s_cbranch_vccz {lab}_d")
    A(f"    s_sub_u32 s{sTO}, s{sTO}, 1")
    A(f"    s_cbranch_scc0 {lab}")
    A(f"{lab}_d:")
flag_round(FL1, "L_h_f1", True)
A(f"    v_cmp_ne_u32 vcc, v22, v14")
A(f"    s_mov_b32 s{sMODE}, 1")
if FORCE_SLOW:
    A("    s_branch L_h_mode")
A("    s_cbranch_vccnz L_h_mode")
A(f"    s_mov_b32 s{sMODE}, 0")
A(f"    v_lshlrev_b32 v37, 6, v{vLANE}")
for L in range(2):
    set_layer(L)
    A(f"    s_mul_i32 s{sT0}, s{sIDX}, {CLR_PER_CU}")
    A(f"    v_add_u32 v36, s{sT0}, v37")
    A(f"    global_load_dword v{38+2*L}, v36, {sp(sLOC)}")
    A(f"    v_add_u32 v36, 4096, v36")
    A(f"    v_cmp_gt_u32 vcc, {(CLR_PER_CU-4096)//64}, v{vLANE}")
    A(f"    s_and_saveexec_b64 {sp(sEX)}, vcc")
    A(f"    global_load_dword v{39+2*L}, v36, {sp(sLOC)}")
    A(f"    s_mov_b64 exec, {sp(sEX)}")
A("L_h_mode:")
hts("h mode")
A(f"    v_mov_b32 v24, {LDS_MODE}")
A(f"    v_mov_b32 v25, s{sMODE}")
A(f"    ds_write_b32 v24, v25")
A("    s_waitcnt lgkmcnt(0)")
A("    s_barrier                    ; B1")
A(f"    s_cmp_eq_u32 s{sIDX}, 0")
A("    s_cbranch_scc0 L_h_end")
A(f"    s_lshl_b32 s{sT0}, s{sG}, 2")
A(f"    v_mov_b32 v24, s{sT0}")
A(f"    v_mov_b32 v25, 1")
A(f"    v_cmp_eq_u32 vcc, 0, v{vLANE}")
A(f"    s_and_saveexec_b64 {sp(sEX)}, vcc")
A(f"    global_store_dword v24, v25, {sp(sDBG)} offset:192 sc1")
A("L_h_end:")
A("    s_mov_b64 exec, -1")
A("    s_waitcnt vmcnt(0)")
if TS:
    A(f"    s_lshl_b32 s{sT0}, s2, 11")
    A(f"    s_add_u32 s{sT0}, s{sT0}, {DUMP_BASE + 31 * 0x400000}")
    A(f"    v_lshlrev_b32 v255, 2, v{vLANE}")
    A(f"    v_add_u32 v255, s{sT0}, v255")
    A(f"    global_store_dword v255, v254, {sp(sWS)}")
    A("    s_waitcnt vmcnt(0)")
A("L_end:")
A("    s_endpgm")
A('.section .rodata,"a"')
A(".p2align 6")
A(f".amdhsa_kernel {KNAME}")
A("  .amdhsa_next_free_vgpr 256")
A("  .amdhsa_next_free_sgpr 88")
A("  .amdhsa_accum_offset 256")
A("  .amdhsa_group_segment_fixed_size 0")
A("  .amdhsa_kernarg_size 104")
A("  .amdhsa_user_sgpr_count 2")
A("  .amdhsa_user_sgpr_kernarg_segment_ptr 1")
A("  .amdhsa_system_sgpr_workgroup_id_x 1")
A(".end_amdhsa_kernel")

dst = [a for a in sys.argv[1:] if not a.startswith("--")]
path = dst[0] if dst else "interleave_layers__sliding_block_cached__mixer_token_mlp__decode.s"
open(path, "w").write("\n".join(out) + "\n")
print("wrote", path, len(out), "lines")
```
